```python
import torch

def _softmax(x, axis=-1):
    return torch.softmax(x, dim=axis)
def _gelu(x):
    return torch.nn.functional.gelu(x, approximate="tanh")
def _silu(x):
    return torch.nn.functional.silu(x)
def _sigmoid(x):
    return torch.sigmoid(x)
def _layernorm(x, axis=-1, eps=1e-5):
    m = x.mean(dim=axis, keepdim=True)
    v = x.var(dim=axis, keepdim=True, unbiased=False)
    return (x - m) / torch.sqrt(v + eps)
def _scatter_add(tgt, idx, src, axis=0):
    return tgt.clone().index_add_(axis, idx, src)
def _segment_sum(src, seg, n):
    out = torch.zeros((n,) + src.shape[1:], dtype=src.dtype)
    return out.index_add_(0, seg, src)
def _pad(x, pw):
    flat = tuple(v for pair in reversed(pw) for v in pair)
    return torch.nn.functional.pad(x, flat)

kernel_name = 'concat_heads__compressed_kv_cla__sliding_local_dilated__prompt'

def setup_inputs():

    _w = (lambda a: (lambda t: t.to(torch.bfloat16) if t.is_floating_point() else t)(torch.as_tensor(a)))
    def _A_setup():
        B, H, Sq, Sk, D, M = 1, 32, 2048, 2048, 128, 640
        Dc = 4 * D
        return {
            "x": _w((lambda *s: torch.randn(*s, dtype=torch.bfloat16) * 0.2)(B, Sq, M)),
            "c_kv": _w((lambda *s: torch.randn(*s, dtype=torch.bfloat16) * 1.6)(B, Sk, Dc)),
            "w_q": _w((lambda *s: torch.randn(*s, dtype=torch.bfloat16) * 3.2)(M, H, D) * (M ** -0.5)),
            "w_uk": _w((lambda *s: torch.randn(*s, dtype=torch.bfloat16) * 3.2)(Dc, H, D) * (Dc ** -0.5)),
            "w_uv": _w((lambda *s: torch.randn(*s, dtype=torch.bfloat16) * 1.6)(Dc, H, D) * (Dc ** -0.5)),
            "w_o": _w((lambda *s: torch.randn(*s, dtype=torch.bfloat16) * 1.6)(H, D, M) * ((H * D) ** -0.5)),
        }
    _A_in = _A_setup()

    def _B_setup():
        B, S, D = 1, 2048, 640
        return {
            "x": _w((lambda *s: torch.randn(*s, dtype=torch.bfloat16) * 0.4)(B, S, D)),
            "wqkv": _w((lambda *s: torch.randn(*s, dtype=torch.bfloat16) * 0.4)(D, 3 * D)),
            "wo": _w((lambda *s: torch.randn(*s, dtype=torch.bfloat16) * 0.05)(D, D)),
        }
    _B_in = _B_setup()

    return {
        "A_x": _A_in["x"],
        "A_c_kv": _A_in["c_kv"],
        "A_w_q": _A_in["w_q"],
        "A_w_uk": _A_in["w_uk"],
        "A_w_uv": _A_in["w_uv"],
        "A_w_o": _A_in["w_o"],
        "B_x": _B_in["x"],
        "B_wqkv": _B_in["wqkv"],
        "B_wo": _B_in["wo"],
    }

def reference(A_x, A_c_kv, A_w_q, A_w_uk, A_w_uv, A_w_o, B_x, B_wqkv, B_wo):
    def _A_ref(x, c_kv, w_q, w_uk, w_uv, w_o):
        B, Sq, M = x.shape[0], x.shape[1], x.shape[2]
        Sk = c_kv.shape[1]
        H, D = w_q.shape[1], w_q.shape[2]
        q = torch.einsum("bqm,mhd->bhqd", x, w_q)
        k = torch.einsum("bkc,chd->bhkd", c_kv, w_uk)
        v = torch.einsum("bkc,chd->bhkd", c_kv, w_uv)
        scores = torch.einsum("bhqd,bhkd->bhqk", q, k) * (D ** -0.5)
        off = Sk - Sq
        qi = torch.arange(Sq)[:, None]
        kj = torch.arange(Sk)[None, :]
        cmask = kj <= (qi + off)
        scores = torch.where(cmask[None, None], scores, -1e9)
        p = _softmax(scores, axis=-1)
        ctx = torch.einsum("bhqk,bhkd->bhqd", p, v)
        return torch.einsum("bhqd,hdm->bqm", ctx, w_o)

    def _B_ref(x, wqkv, wo):
        B, S, D = x.shape
        H = 32; Dh = D // H
        W, dil = 8, 2
        qkv = (lambda x, *d: x.permute(*d))((x @ wqkv).reshape(B, S, 3, H, Dh), 2, 0, 3, 1, 4)
        q, k, v = qkv[0], qkv[1], qkv[2]
        scale = Dh ** -0.5
        pos = torch.arange(S)
        off = torch.arange(W) * dil
        idx = pos[:, None] - off[None, :]
        mask = idx >= 0
        idx_c = torch.where(mask, idx, 0).reshape(-1)
        kg = k[:, :, idx_c, :].reshape(B, H, S, W, Dh)
        vg = v[:, :, idx_c, :].reshape(B, H, S, W, Dh)
        logits = torch.einsum("bhsd,bhswd->bhsw", q, kg) * scale
        logits = torch.where(mask[None, None, :, :], logits, -1e9)
        attn = _softmax(logits, axis=-1)
        o = torch.einsum("bhsw,bhswd->bhsd", attn, vg)
        return (lambda x, *d: x.permute(*d))(o, 0, 2, 1, 3).reshape(B, S, D) @ wo

    a = _A_ref(A_x, A_c_kv, A_w_q, A_w_uk, A_w_uv, A_w_o)
    b = _B_ref(B_x, B_wqkv, B_wo)
    return torch.concatenate([a, b], axis=-1)
```

```python
from common import *
from sched import *
from kvgemm import setup, stamp, S_W, S_H, S_RT, SRD_A, SRD_B, SRD_WS, WS_STAMP
import kvgemm
S_N, S_EV, S_A, S_A0, S_SRC, S_T, S_C = 48, 49, 50, 51, 52, 53, 58
S_MASK = 92
S_NEG = 57
V_L16, V_P = 4, 5
OA, OB, LA, LB, SX, SY, PX, PY, CA, CB = 16, 80, 144, 152, 160, 176, 192, 200, 208, 224
VT = 240
QA, QB, KF, VF, ONES = 0, 32, 64, 96, 128
XR = 132
LQ = 98304
V_WA, V_WQ, V_X = 144, 152, 156
CSCALE = (128 ** -0.5) * 1.4426950408889634
import struct
def f2u(x): return struct.unpack("<I", struct.pack("<f", x))[0]

def koff(f): return (f >> 1) * 4096 + (f & 1) * 1024
def rdK(f): return f"ds_read_b128 {ar(KF + 4*f)}, v{V_P} offset:{koff(f)}"
def rdV(f): return f"ds_read_b128 {ar(VF + 4*f)}, v{V_P} offset:{koff(f) + 2048}"
def dma_blk():
    return ([f"s_and_b32 m0, s{S_SRC}, 0x1ffff"],
            [f"buffer_load_dwordx4 v{V_L16}, {sr(SRD_WS)}, s{S_SRC} offen offset:{p*1024} lds" for p in range(4)],
            [f"s_add_u32 s{S_SRC}, s{S_SRC}, 16384"])
ADV = [f"v_add_u32 v{V_P}, 0x4000, v{V_P}", f"v_and_b32 v{V_P}, 0x1ffff, v{V_P}"]

def qk(S, Q, C, czero=False):
    m = []
    for ks in range(2):
        for qs in range(2):
            d = vr(S + (qs*2 + ks)*4)
            for s in range(4):
                c = d if s else ("0" if czero else vr(C + (qs*2 + ks)*4))
                m.append(mfma16(d, ar(KF + (ks*4 + s)*4), ar(Q + (qs*4 + s)*4), c))
    return m
def pv(O, L, P):
    m = []
    for dt in range(8):
        for qs in range(2):
            m.append(mfma16(vr(O + (qs*8 + dt)*4), ar(VF + 4*dt), vr(P + 4*qs)))
    for qs in range(2):
        m.append(mfma16(vr(L + 4*qs), ar(ONES), vr(P + 4*qs)))
    return m
def softmax_ops(S, P):
    order = []
    for ks in range(2):
        for qs in range(2):
            for j in range(4): order.append((qs, ks, j))
    exps = [f"v_exp_f32 v{S+(qs*2+ks)*4+j}, v{S+(qs*2+ks)*4+j}" for qs, ks, j in order]
    cvts = []
    for k in range(8):
        qs, ks, j = order[2*k]
        r = S + (qs*2 + ks)*4 + j
        cvts.append(f"v_cvt_pk_bf16_f32 v{P + 4*qs + 2*ks + j//2}, v{r}, v{r+1}")
    return exps, cvts

def half(fill, base, S, P, reads1, reads2, bar, dma, adv_first, adv_mid):
    e, c = softmax_ops(S, P)
    for k in range(16): fill.setdefault(base + 2*k, []).append(e[k])
    put = lambda g, x: fill.setdefault(base + g, []).append(x)
    if adv_first:
        put(1, ADV[0]); put(3, ADV[1])
    if bar:
        put(5, bar); put(5, "s_barrier")
    kg = [7, 9, 11, 13, 15, 17, 19, 21]
    for k, r in enumerate(reads1): put(kg[k], r)
    if adv_mid:
        put(21, ADV[0]); put(21, ADV[1])
    vg = [23, 23, 25, 27, 29, 31, 32, 32] if adv_mid else [19, 21, 23, 25, 27, 29, 31, 32]
    for k, r in enumerate(reads2): put(vg[k], r)
    cg = [3, 7, 11, 15, 19, 23, 27, 31]
    for k in range(8): put(cg[k], c[k])
    if dma:
        pre, d, post = dma_blk()
        put(7, pre[0])
        for g, x in zip([9, 13, 17, 25], d): put(g, x)
        put(29, post[0])

def body(mode, nb):
    QX = QA if mode == "S" else QB
    CX = CA if mode == "S" else CB
    OX, LX = (OA, LA) if mode in "ST" else (OB, LB)
    mf = qk(SX, QX, CX) + pv(OX, LX, PX) + qk(SY, QB, CB) + pv(OB, LB, PY)
    fill = {}
    K = [rdK(f) for f in range(8)]; V = [rdV(f) for f in range(8)]
    if nb == 1: w0, w1 = None, 8
    elif nb == 2: w0, w1 = 12, (8 if mode == "S" else 12)
    else: w0, w1 = 4, 0
    b0 = None if w0 is None else f"s_waitcnt vmcnt({w0}) lgkmcnt(0)"
    b1 = f"s_waitcnt vmcnt({w1}) lgkmcnt(0)"
    if mode == "S":
        half(fill, 0, SY, PY, [], [], b0, nb >= 1, False, False)
        half(fill, 34, SX, PX, K, V, b1, nb == 2, False, True)
    else:
        half(fill, 0, SY, PY, K, V, b0, nb >= 1, False, False)
        half(fill, 34, SX, PX, K, V, b1, nb == 2, True, False)
        fill.setdefault(67, []).extend(ADV)
    fill.setdefault(33, []).append(f"s_add_u32 s{S_N}, s{S_N}, 1")
    fill.setdefault(67, []).append(f"s_cmp_lg_u32 s{S_N}, s{S_EV}")
    return interleave(mf, fill)

def mask_c(b, C, src):
    for j in range(4):
        b(f"v_cndmask_b32 v{C+j}, v{src[0]}, v{VT+15}, {sr(S_MASK+2*j, 2)}")
        b(f"v_cndmask_b32 v{C+12+j}, v{src[1]}, v{VT+15}, {sr(S_MASK+2*j, 2)}")
        b(f"v_mov_b32 v{C+4+j}, v{VT+15}")

XSLOT = [65536, 0, 32768]
V_XD, V_XA = 160, 168
XF = 132
def qproj(b, vm, dev):
    srd(b, SRD_A, 4, SZ['A_x']); srd(b, SRD_B, 8, SZ['A_wq']); srd(b, SRD_WS, 26, WS_END)
    T = S_T
    S_MW, S_MX, S_OW, S_OX = 54, 55, 56, 57
    b(f"""s_lshl_b32 s{S_A0}, s{S_RT}, 2
    s_add_u32 s{S_A}, s{S_A0}, s{S_W}
    v_lshlrev_b32 v{V_L16}, 4, v1""")
    b(f"""s_lshl_b32 s{T}, s{S_W}, 17
    s_lshl_b32 s{S_MW}, s{S_H}, 8
    s_add_u32 s{T}, s{T}, s{S_MW}
    v_lshrrev_b32 v2, 4, v1
    v_lshlrev_b32 v3, 2, v2
    v_lshlrev_b32 v2, 13, v2
    v_add_u32 v2, s{T}, v2
    v_and_b32 v6, 15, v1
    v_xor_b32 v3, v3, v6
    v_lshl_add_u32 v6, v3, 4, v2
    v_xor_b32 v3, 2, v3
    v_lshl_add_u32 v7, v3, 4, v2""")
    for p in range(4): b(f"v_add_u32 v{V_WQ+p}, {p*4*8192 - p*1024}, v{6 + ((p>>1)&1)}")
    b(f"s_lshl_b32 s{S_MW}, s{S_W}, 12\ns_add_u32 s{S_MW}, s{S_MW}, {LQ}\ns_lshl_b32 s{S_MX}, s{S_W}, 13")
    def dmaW(st, p):
        vm.issue(("W", st))
        return f"buffer_load_dwordx4 v{V_WQ+p}, {sr(SRD_B)}, s{S_OW} offen offset:{p*1024} lds"
    def preW(st): return [f"s_add_u32 m0, s{S_MW}, {(st%4)*16384}", f"s_mov_b32 s{S_OW}, {st*64*8192}"]
    def dmaX(st, p):
        vm.issue(("x", st))
        return f"buffer_load_dwordx4 v{V_XD+p}, {sr(SRD_A)}, s{S_OX} offen offset:{(p&3)*1024} lds"
    def preX(st, half): return [f"s_add_u32 m0, s{S_MX}, {XSLOT[st%3] + half*4096}", f"s_mov_b32 s{S_OX}, {st*128}"]
    b.ext(preW(0))
    for p in range(4): b(dmaW(0, p))
    b(f"""s_mul_i32 s{T}, s{S_A}, {32*1280}
    s_sub_u32 s{S_OX}, {63*32*1280}, s{T}
    v_lshrrev_b32 v2, 3, v1
    v_mul_u32_u24 v2, 1280, v2
    v_lshrrev_b32 v3, 4, v1
    v_and_b32 v6, 7, v1
    v_xor_b32 v3, v3, v6
    v_lshl_add_u32 v6, v3, 4, v2
    v_xor_b32 v3, 4, v3
    v_lshl_add_u32 v7, v3, 4, v2""")
    for p in range(8):
        b(f"v_add_u32 v{V_XD+p}, {(p&3)*(8*1280 - 1024)}, v{6 + (p&1)}")
        b(f"v_add_u32 v{V_XD+p}, s{T if p < 4 else S_OX}, v{V_XD+p}")
    def allX(st):
        for half in range(2):
            b.ext(preX(st, half))
            for p in range(4): b(dmaX(st, half*4 + p))
    allX(0)
    for st in (1, 2):
        b.ext(preW(st))
        for p in range(4): b(dmaW(st, p))
        allX(st)
    b(f"""v_lshrrev_b32 v2, 4, v1
    v_lshrrev_b32 v3, 2, v1
    v_and_b32 v3, 3, v3
    v_lshl_add_u32 v6, v2, 3, v3
    v_lshlrev_b32 v6, 8, v6
    v_add_u32 v6, {LQ}, v6
    v_and_b32 v7, 1, v1
    v_lshl_add_u32 v6, v7, 3, v6
    v_and_b32 v2, 1, v2
    v_lshlrev_b32 v2, 1, v2
    v_lshl_or_b32 v2, v3, 2, v2
    v_lshrrev_b32 v3, 1, v1
    v_and_b32 v3, 1, v3
    v_xor_b32 v2, v2, v3""")
    for ct in range(8): b(f"v_xor_b32 v3, {2*ct}, v2\nv_lshl_add_u32 v{V_WA+ct}, v3, 4, v6")
    b(f"""v_and_b32 v2, 15, v1
    v_lshrrev_b32 v3, 1, v2
    v_lshlrev_b32 v2, 7, v2
    v_add_u32 v2, s{S_MX}, v2
    v_lshrrev_b32 v6, 4, v1
    v_xor_b32 v3, v3, v6
    v_lshl_add_u32 v{V_XA}, v3, 4, v2
    v_xor_b32 v3, 4, v3
    v_lshl_add_u32 v{V_XA+1}, v3, 4, v2
    v_add_u32 v{V_XA+2}, 0x10000, v{V_XA}
    v_add_u32 v{V_XA+3}, 0x10000, v{V_XA+1}""")
    b(f"""s_mul_i32 s{S_SRC}, s{S_H}, {KV_HS}
    s_lshl_b32 s{T}, s{S_W}, 12
    s_add_u32 s{S_SRC}, s{S_SRC}, s{T}
    s_mov_b32 s{S_C}, {f2u(CSCALE)}
    s_mov_b32 s{S_C+1}, {f2u(CSCALE)}""")
    def wf(kk, dt): return KF + (kk & 1) * 32 + 4*dt
    def rdW(kk, dt, u):
        return f"ds_read_b64_tr_b16 {ar(wf(kk, dt) + 2*u, 2)}, v{V_WA+dt} offset:{((kk>>1)%4)*16384 + (32*(kk&1) + 4*u)*256}"
    def xf(st, ks, qs): return XF + (st & 1) * 32 + (ks*4 + qs)*4
    def rdX(st, ks, qs):
        sl = XSLOT[st % 3]
        hi = sl >= 65536
        return f"ds_read_b128 {ar(xf(st, ks, qs))}, v{V_XA + ks + 2*hi} offset:{sl - 65536*hi + qs*2048}"
    b(f"s_waitcnt vmcnt({vm.need(('W', 0), ('x', 0))})\ns_barrier")
    first = [rdW(0, dt, u) for dt in range(8) for u in range(2)] + [rdX(0, ks, qs) for ks in range(2) for qs in range(4)]
    b.ext(first)
    stamp(b, 1, dev)
    if dev: b("s_waitcnt lgkmcnt(0)")
    code = []
    nkv = 0
    for kk in range(20):
        st = kk // 2; ks = kk % 2
        mf = []
        for dt in range(8):
            for qs in range(4):
                d = vr(16 + (dt*4 + qs)*4)
                mf.append(mfma16(d, ar(wf(kk, dt)), ar(xf(st, ks, qs)), d if kk else "0"))
        fill = {}
        put = lambda g, x: fill.setdefault(g, []).extend([x] if isinstance(x, str) else x)
        pre = []
        if ks == 1 and kk + 1 < 20:
            put(1, [f"s_waitcnt vmcnt({vm.need(('W', st+1))}) lgkmcnt(0)", "s_barrier"])
        if kk == 19: put(1, ["s_waitcnt lgkmcnt(0)", "s_barrier"])
        if ks == 0 and st + 1 < 10:
            put(1, f"s_waitcnt vmcnt({vm.need(('x', st+1))}) lgkmcnt(0)")
        if kk + 1 < 20:
            rs = [rdW(kk+1, dt, u) for dt in range(8) for u in range(2)]
            gs = [2, 3, 5, 6, 8, 9, 11, 12, 14, 15, 17, 18, 20, 21, 23, 24]
            for g, r in zip(gs, rs): put(g, r)
        if st + 1 < 10:
            for g, qs in zip([22, 25, 26, 27], range(4)): put(g, rdX(st+1, ks, qs))
        if st + 3 < 10:
            put(3 if ks == 0 else 3, preX(st+3, ks))
            for g, p in zip([4, 7, 10, 13], range(4)): put(g, dmaX(st+3, ks*4 + p))
            put(15, preW(st+3))
            for g, p in zip([16, 19], range(2)): put(g, dmaW(st+3, ks*2 + p))
        elif kk >= 15 and nkv < 5:
            pr, d, post = dma_blk()
            put(3, pr)
            for g, x in zip([4, 10, 16, 22], d): put(g, x); vm.issue(("KV", nkv))
            put(25, post)
            nkv += 1
        code += pre + interleave(mf, fill)
    b.ext(add_lgkm_waits(code, first))
    stamp(b, 2, dev)
    pre, d, post = dma_blk()
    b(f"s_cmp_lg_u32 s{S_A0}, 0\ns_cbranch_scc1 LA_nob5")
    x5 = Blk(); x5.ext(pre); x5("s_nop 0"); x5.ext(d); x5.ext(post)
    b.ext(x5); b("LA_nob5:")
    b("s_nop 4")
    for qs in range(4):
        for s in range(4):
            t = VT + 4*((qs*4+s) % 2)
            for k in range(2):
                r = 16 + ((2*s + k)*4 + qs)*4
                b(f"v_pk_mul_f32 v[{r}:{r+1}], v[{r}:{r+1}], s[{S_C}:{S_C+1}]")
                b(f"v_pk_mul_f32 v[{r+2}:{r+3}], v[{r+2}:{r+3}], s[{S_C}:{S_C+1}]")
            for k in range(2):
                r = 16 + ((2*s + k)*4 + qs)*4
                b(f"v_cvt_pk_bf16_f32 v{t+2*k}, v{r}, v{r+1}")
                b(f"v_cvt_pk_bf16_f32 v{t+2*k+1}, v{r+2}, v{r+3}")
            for k in range(4): b(f"v_accvgpr_write_b32 a{(qs*4+s)*4 + k}, v{t+k}")

def attn_prologue(b, dev):
    T = S_T
    b(f"""v_lshrrev_b32 v2, 4, v1
    v_lshlrev_b32 v2, 2, v2
    v_and_b32 v3, 15, v1
    v_mov_b32 v{VT+15}, 0xf149f2ca
    v_mov_b32 v{V_P}, v{V_L16}
    v_mov_b32 v6, 0x3f803f80""")
    for j in range(4):
        b(f"v_add_u32 v7, {j}, v2\nv_cmp_gt_u32 {sr(S_MASK+2*j, 2)}, v7, v3\nv_accvgpr_write_b32 a{ONES+j}, v6")
    b("s_waitcnt vmcnt(8)\ns_barrier")
    for f in range(8): b(rdK(f))
    for r in range(CA, CA+16): b(f"v_mov_b32 v{r}, 0")
    b(f"v_mov_b32 v6, 0\ns_cmp_lg_u32 s{S_A}, 0\ns_cbranch_scc1 LA_nomask0")
    mask_c(b, CA, [6, 6])
    b("LA_nomask0:")
    b("s_waitcnt lgkmcnt(0)")
    b.ext(qk(SX, QA, CA)); b.ext(qk(SY, QB, 0, czero=True))
    b.ext(ADV)
    for f in range(8): b(rdK(f))
    b.ext(ADV)
    for f in range(8): b(rdV(f))
    for r in range(OA, LB+8): b(f"v_mov_b32 v{r}, 0")
    for (S, C, tb) in ((SX, CA, VT), (SY, CB, VT+4)):
        for qs in range(2):
            r = S + qs*8; m = tb + 2*qs
            b(f"""v_max3_f32 v{m}, v{r}, v{r+1}, v{r+2}
            v_max3_f32 v{m+1}, v{r+3}, v{r+4}, v{r+5}
            v_max3_f32 v{m}, v{m}, v{r+6}, v{r+7}
            v_max_f32 v{m}, v{m}, v{m+1}
            v_mov_b32 v{m+1}, v{m}""")
    b("s_nop 1")
    for m in (VT, VT+2, VT+4, VT+6): b(f"v_permlane32_swap_b32 v{m}, v{m+1}")
    for m in (VT, VT+2, VT+4, VT+6): b(f"v_max_f32 v{m}, v{m}, v{m+1}\nv_mov_b32 v{m+1}, v{m}")
    b("s_nop 1")
    for m in (VT, VT+2, VT+4, VT+6): b(f"v_permlane16_swap_b32 v{m}, v{m+1}")
    for m in (VT, VT+2, VT+4, VT+6): b(f"v_max_f32 v{m}, v{m}, v{m+1}\nv_sub_f32 v{m}, 0, v{m}")
    for (S, C, tb) in ((SX, CA, VT), (SY, CB, VT+4)):
        for qs in range(2):
            for k in range(8):
                b(f"v_add_f32 v{S+qs*8+k}, v{S+qs*8+k}, v{tb+2*qs}")
                b(f"v_mov_b32 v{C+qs*8+k}, v{tb+2*qs}")
    e, c = softmax_ops(SX, PX)
    b.ext(e); b.ext(c)
    b(f"s_mov_b32 s{S_N}, 0\ns_waitcnt lgkmcnt(0)")

def handler(b):
    T = S_T
    b("LA_H:")
    b(f"s_cmp_eq_u32 s{S_N}, 32\ns_cbranch_scc1 LA_fin")
    b(f"s_add_u32 s{T}, s{S_N}, 1\ns_cmp_lg_u32 s{T}, s{S_A}\ns_cbranch_scc1 LA_h1")
    e1 = Blk(); e1(f"v_mov_b32 v{VT}, v{CA}"); mask_c(e1, CA, [VT, CA+8]); b.ext(e1)
    b("LA_h1:")
    b(f"s_cmp_lg_u32 s{S_N}, 31\ns_cbranch_scc1 LA_h2")
    e4 = Blk(); e4(f"v_mov_b32 v{VT}, v{CB}"); mask_c(e4, CB, [VT, CB+8]); b.ext(e4)
    b("LA_h2:")
    b(f"s_mov_b32 s{S_EV}, 32")
    for expr in (("s_sub_u32", S_A0, 1), ("s_sub_u32", S_A, 1), ("s_add_u32", S_A, 0), ("s_add_u32", S_A, 1)):
        b(f"{expr[0]} s{T}, s{expr[1]}, {expr[2]}\ns_cmp_gt_i32 s{T}, s{S_N}\ns_cselect_b32 s{T}, s{T}, 32\ns_min_u32 s{S_EV}, s{S_EV}, s{T}")
    for cst in (30, 31):
        b(f"s_cmp_lt_u32 s{S_N}, {cst}\ns_cselect_b32 s{T}, {cst}, 32\ns_min_u32 s{S_EV}, s{S_EV}, s{T}")
    b(f"""s_cmp_ge_u32 s{S_N}, 30
    s_cbranch_scc1 LA_sel0
    s_cmp_gt_u32 s{S_N}, s{S_A}
    s_cbranch_scc1 LA_O2
    s_cmp_eq_u32 s{S_N}, s{S_A}
    s_cbranch_scc1 LA_T2
    s_add_u32 s{T}, s{S_N}, 2
    s_cmp_gt_u32 s{T}, s{S_A0}
    s_cbranch_scc1 LA_S2
    s_branch LA_S1
    LA_sel0:
    s_cmp_gt_u32 s{S_N}, s{S_A}
    s_cbranch_scc1 LA_O0
    s_cmp_eq_u32 s{S_N}, s{S_A}
    s_cbranch_scc1 LA_T0
    s_branch LA_S0""")
    return e1.l, e4.l

def finalize(b):
    T = S_T
    b("LA_fin:")
    b("s_waitcnt lgkmcnt(0)")
    b.ext(pv(OB, LB, PX))
    b(f"""s_lshl_b32 s{T}, s{S_H}, 12
    s_add_u32 s{T}, s{T}, {WS_CTX}
    s_lshl_b32 s{T+1}, s{S_A}, 18
    s_add_u32 s{T+2}, s{T}, s{T+1}
    s_sub_u32 s{T+1}, {63 << 18}, s{T+1}
    s_add_u32 s{T+3}, s{T}, s{T+1}""")
    n = 0
    for (O, L, so) in ((OA, LA, T+2), (OB, LB, T+3)):
        if O == OB: b("s_nop 7")
        for qs in range(2): b(f"v_rcp_f32 v{VT+8+2*qs}, v{L+4*qs}")
        for qs in range(2): b(f"v_mov_b32 v{VT+9+2*qs}, v{VT+8+2*qs}")
        for qs in range(2):
            if qs: b(f"s_add_u32 s{so}, s{so}, 131072")
            for s in range(4):
                t = VT + 4*(n % 2); n += 1
                r = O + (qs*8 + 2*s)*4
                for k in range(4): b(f"v_pk_mul_f32 v[{r+2*k}:{r+2*k+1}], v[{r+2*k}:{r+2*k+1}], v[{VT+8+2*qs}:{VT+9+2*qs}]")
                for k in range(4): b(f"v_cvt_pk_bf16_f32 v{t+k}, v{r+2*k}, v{r+2*k+1}")
                b(f"buffer_store_dwordx4 {vr(t)}, v{V_L16}, {sr(SRD_WS)}, s{so} offen offset:{s*1024}")

def build_attn(label, traces, dev=False):
    b = Blk(); b(f"{label}:")
    pro = Blk()
    pro("s_cmp_ge_u32 s2, 256\ns_cbranch_scc1 LA_end")
    stamp(pro, 0, dev)
    pro("s_load_dwordx16 s[4:19], s[0:1], 0\ns_load_dwordx8 s[20:27], s[0:1], 64")
    setup(pro)
    pro("s_waitcnt lgkmcnt(0)")
    vm = VM()
    qproj(pro, vm, dev)
    attn_prologue(pro, dev)
    stamp(pro, 3, dev)
    if dev: pro("s_waitcnt lgkmcnt(0)")
    b.ext(pro)
    hb = Blk(); e1, e4 = handler(hb); b.ext(hb)
    bodies = {}
    ref = body("O", 2)
    for nm in ("S1", "S2", "S0", "T2", "T0", "O2", "O0"):
        raw = body(nm[0], int(nm[1]))
        bodies[nm] = loop_waits(raw)
        b(f".p2align 6\nLA_{nm}:")
        b.ext(bodies[nm])
        b(f"s_cbranch_scc1 LA_{nm}\ns_branch LA_H")
    fin = Blk(); finalize(fin)
    stamp(fin, 4, dev)
    if dev: fin("s_waitcnt vmcnt(0)")
    stamp(fin, 5, dev)
    if dev:
        save = kvgemm.S_T
        kvgemm.stamp_store(fin, 6, dev, "LA", slot=1)
    fin("LA_end:\ns_endpgm")
    b.ext(fin)
    for (i, w) in ((0, 0), (0, 1), (1, 2), (7, 3), (7, 2), (3, 0)):
        a0 = 4*i; a = a0 + w
        tr = list(pro.l)
        for n in range(32):
            if n + 1 == a: tr += e1
            if n == 31: tr += e4
            tr += ["s_nop 0"] * 3
            mode = "S" if n < a else ("T" if n == a else "O")
            nb = 0 if n >= 30 else (2 if n + 2 > a0 else 1)
            tr += bodies[mode + str(nb)]
        tr += fin.l
        traces.append((f"attn{i}_{w}", tr))
    return b
```

```python
from common import *
from sched import *
from kvgemm import setup, stamp, S_W, S_H, S_RT, SRD_A, SRD_B, SRD_WS
import kvgemm
import struct
def f2u(x): return struct.unpack("<I", struct.pack("<f", x))[0]
S_HG, S_R0, S_T = 48, 49, 50
S_MX, S_MW, S_OX, S_OW = 54, 55, 56, 57
SRD_C = 44
STG = 45056
V_XD, V_WD, V_XA, V_WA = 4, 8, 16, 18
ACC = 32
XF, WF = 0, 40
RS = 488
def wtrans(b, pfx):
    T = S_T
    LB = 3 * STG
    srd(b, SRD_C, 14, SZ['A_wo'])
    b(f"""v_lshrrev_b32 v2, 4, v1
    v_lshrrev_b32 v3, 2, v1
    v_and_b32 v3, 3, v3
    v_and_b32 v112, 3, v1
    v_lshlrev_b32 v112, 3, v112
    v_lshl_add_u32 v113, v2, 2, v3
    v_mul_u32_u24 v113, 1280, v113
    v_add_u32 v113, v113, v112
    v_lshl_add_u32 v114, v2, 3, v3
    v_mul_u32_u24 v114, 1280, v114
    v_add_u32 v114, v114, v112
    s_lshl_b32 s{T}, s{S_W}, 12
    s_add_u32 s{T}, s{T}, {LB}
    v_lshlrev_b32 v115, 3, v1
    v_add_u32 v115, s{T}, v115
    v_lshlrev_b32 v116, 4, v1""")
    b(f"""s_and_b32 s{T}, s2, 1
    s_mul_i32 s{T}, s{T}, 20
    s_mul_i32 s{T+1}, s{S_W}, 5
    s_add_u32 s{T}, s{T}, s{T+1}
    s_lshr_b32 s{T+1}, s2, 1
    s_mul_i32 s{T+2}, s{T+1}, {32*1280}
    s_lshl_b32 s{T+3}, s{T}, 5
    s_add_u32 s{T+2}, s{T+2}, s{T+3}""")
    def part(vsrc, ustride, dstbase, nks):
        for f in range(5):
            for u in range(2):
                r = 120 + (f*2 + u)*2
                if u == 0: b(f"buffer_load_dwordx2 v[{r}:{r+1}], v{vsrc}, {sr(SRD_C)}, s{T+2} offen offset:{f*32}")
                else: b(f"buffer_load_dwordx2 v[{r}:{r+1}], v117, {sr(SRD_C)}, s{T+2} offen offset:{f*32}")
        b(f"""s_mul_i32 s{T+3}, s{T}, {nks*1024}
        s_lshl_b32 s{S_OX}, s{T+1}, 10
        s_add_u32 s{T+3}, s{T+3}, s{S_OX}
        s_add_u32 s{T+3}, s{T+3}, {dstbase}
        s_waitcnt vmcnt(0)""")
        for k in range(10): b(f"ds_write_b64 v115, v[{120+2*k}:{121+2*k}] offset:{(k%8)*512}" ) if k < 8 else None
        b("s_waitcnt lgkmcnt(0)")
        for k in range(8): b(f"ds_read_b64_tr_b16 v[{140+2*k}:{141+2*k}], v115 offset:{k*512}")
        b("s_waitcnt lgkmcnt(0)")
        for k in range(8, 10): b(f"ds_write_b64 v115, v[{120+2*k}:{121+2*k}] offset:{(k%8)*512}")
        b("s_waitcnt lgkmcnt(0)")
        for k in range(8, 10): b(f"ds_read_b64_tr_b16 v[{140+2*k}:{141+2*k}], v115 offset:{(k%8)*512}")
        b("s_waitcnt lgkmcnt(0)")
        for f in range(5):
            b(f"buffer_store_dwordx4 v[{140+4*f}:{143+4*f}], v116, {sr(SRD_WS)}, s{T+3} offen")
            if f < 4: b(f"s_add_u32 s{T+3}, s{T+3}, {nks*1024}")
    b(f"v_add_u32 v117, {16*1280}, v113")
    part(113, 16, WS_WOT, 128)
    b(f"s_cmp_ge_u32 s2, 40\ns_cbranch_scc1 {pfx}_nob")
    srd(b, SRD_C, 20, SZ['B_wo'])
    b(f"v_add_u32 v117, {4*1280}, v114")
    part(114, 4, WS_WOBT, 20)
    b(f"{pfx}_nob:")

def bgemm(b, dev):
    T = S_T
    vm = VM()
    srd(b, SRD_A, 16, SZ['B_x']); srd(b, SRD_B, 18, SZ['B_wqkv'])
    b(f"""s_and_b32 s{S_HG}, s2, 7
    s_lshr_b32 s{S_R0}, s2, 3
    s_lshl_b32 s{S_R0}, s{S_R0}, 6
    s_mul_i32 s{S_MX}, s{S_W}, 3072
    s_lshl_b32 s{S_MW}, s{S_W}, 13
    s_add_u32 s{S_MW}, s{S_MW}, 12288""")
    b(f"""s_mul_i32 s{T}, s{S_W}, 24
    s_add_u32 s{T}, s{T}, s{S_R0}
    s_sub_u32 s{T}, s{T}, 16
    s_and_b32 s{T+1}, s{S_W}, 1
    s_lshl_b32 s{T+1}, s{T+1}, 2
    v_lshrrev_b32 v2, 3, v1
    v_add_u32 v2, s{T}, v2
    v_lshrrev_b32 v3, 4, v1
    v_and_b32 v30, 7, v1
    v_xor_b32 v3, v3, v30
    v_xor_b32 v3, s{T+1}, v3""")
    for q in range(3):
        b(f"""v_add_u32 v30, {8*q}, v2
        v_max_i32 v30, 0, v30
        v_mul_u32_u24 v30, 1280, v30
        v_xor_b32 v31, {4*(q&1)}, v3
        v_lshl_add_u32 v30, v31, 4, v30
        v_mov_b32 v{V_XD+q}, v30""")
    b(f"""s_mul_i32 s{T}, s{S_W}, {16*3840}
    s_mul_i32 s{T+1}, s{S_HG}, 160
    s_add_u32 s{T}, s{T}, s{T+1}
    v_lshrrev_b32 v2, 5, v1
    v_mul_u32_u24 v3, 3840, v2
    v_add_u32 v3, s{T}, v3
    v_lshlrev_b32 v2, 2, v2
    v_and_b32 v30, 31, v1
    v_xor_b32 v2, v2, v30""")
    pats = {}
    for q in range(8):
        key = (q & 1, q >> 2)
        if key not in pats:
            r = 24 + len(pats); pats[key] = r
            x = ((q & 1) << 3) | ((q >> 2) << 1)
            b(f"""v_xor_b32 v30, {x}, v2
            v_min_u32 v30, 29, v30
            v_mul_u32_u24 v31, 205, v30
            v_lshrrev_b32 v31, 11, v31
            v_mul_u32_u24 v31, {1280 - 160}, v31
            v_lshl_add_u32 v31, v30, 4, v31
            v_add_u32 v{r}, v31, v3""")
        b(f"v_add_u32 v{V_WD+q}, {q*7680 - (q&3)*1024}, v{pats[key]}")
    def dma_stage(st):
        items = []
        sl = (st % 3) * STG
        for q in range(3):
            pre = [f"s_add_u32 m0, s{S_MX}, {sl + q*1024}"] + ([f"s_mov_b32 s{S_OX}, {st*128}"] if q == 0 else [])
            items.append((pre, f"buffer_load_dwordx4 v{V_XD+q}, {sr(SRD_A)}, s{S_OX} offen lds"))
        for q in range(8):
            pre = []
            if q % 4 == 0: pre.append(f"s_add_u32 m0, s{S_MW}, {sl + (q>>2)*4096}")
            if q == 0: pre.append(f"s_mov_b32 s{S_OW}, {st*64*3840}")
            items.append((pre, f"buffer_load_dwordx4 v{V_WD+q}, {sr(SRD_B)}, s{S_OW} offen offset:{(q&3)*1024} lds"))
        return items
    for st in range(2):
        for pre, d in dma_stage(st):
            b.ext(pre)
            if pre and pre[-1].startswith("s_add_u32 m0"): b("s_nop 0")
            b(d); vm.issue(st)
    return vm, dma_stage

def bgemm2(b, vm, dma_stage, dev):
    T = S_T
    b(f"""v_and_b32 v2, 15, v1
    v_lshrrev_b32 v3, 1, v2
    v_lshlrev_b32 v2, 7, v2
    v_lshrrev_b32 v30, 4, v1
    v_xor_b32 v3, v3, v30
    v_lshl_add_u32 v{V_XA}, v3, 4, v2
    v_xor_b32 v3, 4, v3
    v_lshl_add_u32 v{V_XA+1}, v3, 4, v2""")
    b(f"""s_lshl_b32 s{T}, s{S_W}, 3
    v_lshrrev_b32 v2, 4, v1
    v_lshrrev_b32 v3, 2, v1
    v_and_b32 v3, 3, v3
    v_lshl_add_u32 v30, v2, 3, v3
    v_lshlrev_b32 v30, 9, v30
    v_add_u32 v30, 12288, v30
    v_and_b32 v31, 1, v1
    v_lshl_add_u32 v30, v31, 3, v30
    v_and_b32 v2, 1, v2
    v_lshlrev_b32 v2, 1, v2
    v_lshl_or_b32 v2, v3, 2, v2
    v_lshrrev_b32 v3, 1, v1
    v_and_b32 v3, 1, v3
    v_xor_b32 v2, v2, v3
    v_xor_b32 v2, s{T}, v2""")
    for j in range(4): b(f"v_xor_b32 v3, {2*j}, v2\nv_lshl_add_u32 v{V_WA+j}, v3, 4, v30")
    for k in range(6): b(f"v_add_u32 v{V_XA+6+k}, {2*STG}, v{V_XA+k}")
    def base(st): return (0, (st % 3) * STG) if st % 3 < 2 else (6, 0)
    def rdX(kk, rs):
        o, off = base(kk // 2)
        return f"ds_read_b128 {ar(XF + (kk&1)*20 + 4*rs)}, v{V_XA + (kk&1) + o} offset:{off + rs*2048}"
    def rdW(kk, j, u):
        o, off = base(kk // 2)
        return f"ds_read_b64_tr_b16 {ar(WF + (kk&1)*16 + 4*j + 2*u, 2)}, v{V_WA + j + o} offset:{off + (32*(kk&1) + 4*u)*512}"
    def reads(kk):
        r = [rdW(kk, 0, 0), rdW(kk, 0, 1)] + [rdX(kk, rs) for rs in range(5)]
        for j in range(1, 4): r += [rdW(kk, j, 0), rdW(kk, j, 1)]
        return r
    b(f"s_waitcnt vmcnt({vm.need(0)})\ns_barrier")
    first = reads(0); b.ext(first)
    code = []
    for kk in range(20):
        st = kk // 2; ks = kk & 1
        mf = []
        for j in range(4):
            for rs in range(5):
                d = vr(ACC + (j*5 + rs)*4)
                mf.append(mfma16(d, ar(WF + ks*16 + 4*j), ar(XF + ks*20 + 4*rs), d if kk else "0"))
        fill = {}
        put = lambda g, x: fill.setdefault(g, []).extend([x] if isinstance(x, str) else x)
        if ks == 1 and kk + 1 < 20:
            put(1, [f"s_waitcnt vmcnt({vm.need(st+1)}) lgkmcnt(0)", "s_barrier"])
        if kk + 1 < 20:
            for k, r in enumerate(reads(kk+1)): put(2 + k, r)
        if st + 2 < 10:
            it = dma_stage(st + 2)
            sel = it[:6] if ks == 0 else it[6:]
            if ks == 1: sel = [([f"s_add_u32 m0, s{S_MW}, {((st+2)%3)*STG}"], it[6][1])] + it[7:]
            for k, (pre, d) in enumerate(sel):
                g = 2 + 3*k
                if pre: put(g - 1, pre)
                put(g, d); vm.issue(st + 2)
        code += interleave(mf, fill)
    b.ext(add_lgkm_waits(code, first))

def blocal(b):
    T = S_T
    b("s_barrier")
    b(f"""v_and_b32 v2, 15, v1
    v_mul_u32_u24 v2, {RS}, v2
    v_lshrrev_b32 v3, 4, v1
    v_lshl_add_u32 v2, v3, 3, v2
    s_lshl_b32 s{T}, s{S_W}, 7
    v_add_u32 v2, s{T}, v2
    s_cmp_eq_u32 s{S_W}, 3
    s_cselect_b32 s{T}, 65536, 0
    v_add_u32 v3, s{T}, v2""")
    for j in range(4):
        for rs in range(5):
            r = ACC + (j*5 + rs)*4
            b(f"v_cvt_pk_bf16_f32 v{r}, v{r}, v{r+1}\nv_cvt_pk_bf16_f32 v{r+1}, v{r+2}, v{r+3}")
            b(f"ds_write_b64 v{3 if j == 3 else 2}, v[{r}:{r+1}] offset:{rs*16*RS + j*32}")
    b(f"""v_add_u32 v4, 2, v1
    v_mul_u32_u24 v4, {RS}, v4
    s_mul_i32 s{T}, s{S_W}, 40
    v_add_u32 v4, s{T}, v4
    v_add_u32 v5, s{S_R0}, v1
    s_waitcnt lgkmcnt(0)
    s_barrier""")
    Q, K, V, LG, O = 8, 20, 100, 180, 190
    for m in range(5): b(f"ds_read_b64 v[{Q+2*m}:{Q+2*m+1}], v4 offset:{14*RS + 8*m}")
    for w8 in range(8):
        for m in range(5): b(f"ds_read_b64 v[{K+10*w8+2*m}:{K+10*w8+2*m+1}], v4 offset:{(14-2*w8)*RS + 160 + 8*m}")
    code = []
    for w8 in range(8):
        for m in range(10):
            code.append(f"v_dot2_f32_bf16 v{LG+w8}, v{Q+m}, v{K+10*w8+m}, {'0' if m == 0 else 'v%d' % (LG+w8)}")
        for m in range(5): code.append(f"ds_read_b64 v[{V+10*w8+2*m}:{V+10*w8+2*m+1}], v4 offset:{(14-2*w8)*RS + 320 + 8*m}")
    sc = (20 ** -0.5) * 1.4426950408889634
    code.append(f"s_mov_b32 s{T}, {f2u(sc)}")
    code.append(f"v_mov_b32 v6, 0xf149f2ca")
    code.append("s_nop 2")
    for w8 in range(8): code.append(f"v_mul_f32 v{LG+w8}, s{T}, v{LG+w8}")
    for w8 in range(1, 8):
        code.append(f"v_cmp_gt_u32 vcc, {2*w8}, v5"); code.append("s_nop 1")
        code.append(f"v_cndmask_b32 v{LG+w8}, v{LG+w8}, v6, vcc")
    code += [f"v_max3_f32 v7, v{LG}, v{LG+1}, v{LG+2}", f"v_max3_f32 v7, v7, v{LG+3}, v{LG+4}", f"v_max3_f32 v7, v7, v{LG+5}, v{LG+6}", f"v_max_f32 v7, v7, v{LG+7}"]
    for w8 in range(8): code.append(f"v_sub_f32 v{LG+w8}, v{LG+w8}, v7")
    for w8 in range(8): code.append(f"v_exp_f32 v{LG+w8}, v{LG+w8}")
    code += ["s_nop 0", f"v_add_f32 v7, v{LG}, v{LG+1}"] + [f"v_add_f32 v7, v7, v{LG+k}" for k in range(2, 8)]
    code += ["v_rcp_f32 v7, v7", "s_nop 0"]
    for w8 in range(8): code.append(f"v_mul_f32 v{LG+w8}, v{LG+w8}, v7")
    PL, PH = 8, 20
    for w8 in range(8):
        code.append(f"v_cvt_pk_bf16_f32 v{PL+w8}, v{LG+w8}, 0")
        code.append(f"v_lshlrev_b32 v{PH+w8}, 16, v{PL+w8}")
    for w8 in range(8):
        for m in range(10):
            c0 = '0' if w8 == 0 else f"v{O+2*m}"; c1 = '0' if w8 == 0 else f"v{O+2*m+1}"
            code.append(f"v_dot2_f32_bf16 v{O+2*m}, v{V+10*w8+m}, v{PL+w8}, {c0}")
            code.append(f"v_dot2_f32_bf16 v{O+2*m+1}, v{V+10*w8+m}, v{PH+w8}, {c1}")
    code.append("s_nop 2")
    for m in range(10): code.append(f"v_cvt_pk_bf16_f32 v{O+20+m}, v{O+2*m}, v{O+2*m+1}")
    prev = [l for l in b.l if l.startswith("ds_read_b64 ")]
    b.ext(add_lgkm_waits(code, prev))
    b(f"""v_lshrrev_b32 v2, 4, v5
    v_mul_u32_u24 v2, 20480, v2
    v_and_b32 v3, 15, v1
    v_lshl_add_u32 v2, v3, 4, v2
    s_mul_i32 s{T}, s{S_HG}, 80
    s_mul_i32 s{T+1}, s{S_W}, 20
    s_add_u32 s{T}, s{T}, s{T+1}""")
    for m in range(5):
        b(f"""s_lshr_b32 s{T+1}, s{T}, 3
        s_lshl_b32 s{T+1}, s{T+1}, 8
        s_and_b32 s{T+2}, s{T}, 4
        s_lshl_b32 s{T+2}, s{T+2}, 1
        s_add_u32 s{T+1}, s{T+1}, s{T+2}
        s_add_u32 s{T+1}, s{T+1}, {WS_OB}
        buffer_store_dwordx2 v[{O+20+2*m}:{O+21+2*m}], v2, {sr(SRD_WS)}, s{T+1} offen
        s_add_u32 s{T}, s{T}, 4""")

def build_b(label, traces, dev=False):
    b = Blk(); b(f"{label}:")
    b("s_cmp_ge_u32 s2, 256\ns_cbranch_scc1 LB_end")
    stamp(b, 0, dev)
    b("s_load_dwordx16 s[4:19], s[0:1], 0\ns_load_dwordx8 s[20:27], s[0:1], 64")
    setup(b)
    b("s_waitcnt lgkmcnt(0)")
    srd(b, SRD_WS, 26, WS_END)
    vm, ds = bgemm(b, dev)
    stamp(b, 1, dev)
    if dev: b("s_waitcnt lgkmcnt(0)")
    bgemm2(b, vm, ds, dev)
    stamp(b, 2, dev)
    if dev: b("s_waitcnt lgkmcnt(0)")
    blocal(b)
    stamp(b, 3, dev)
    wtrans(b, "LB")
    stamp(b, 4, dev)
    kvgemm.stamp_store(b, 5, dev, "LB", slot=2)
    b("LB_end:\ns_endpgm")
    traces.append(("bpart", b.l))
    return b
```

```python
import math
NAME = "concat_heads__compressed_kv_cla__sliding_local_dilated__prompt"
KA = dict(A_x=0, A_c=8, A_wq=16, A_wuk=24, A_wuv=32, A_wo=40, B_x=48, B_wqkv=56, B_wo=64, out=72, dbg=80, ws=88)
SZ = dict(A_x=2048*640*2, A_c=2048*512*2, A_wq=640*4096*2, A_wuk=512*4096*2, A_wuv=512*4096*2, A_wo=4096*640*2,
          B_x=2048*640*2, B_wqkv=640*1920*2, B_wo=640*640*2, out=2048*1280*2, dbg=256, ws=268435456)
WS_KV = 0
KV_HS = 72 * 16384
WS_CTX = 40 << 20
WS_WOT = 56 << 20
WS_OB = 62 << 20
WS_WOBT = 65 << 20
WS_END = 66 << 20

class Blk:
    def __init__(self, name=""):
        self.l = []; self.name = name
    def __call__(self, s):
        for x in s.split("\n"):
            x = x.strip()
            if x: self.l.append(x)
        return self
    def ext(self, o):
        self.l += (o.l if isinstance(o, Blk) else o); return self
    def text(self):
        return "\n".join((x if x.endswith(":") or x.startswith(".") else "  " + x) for x in self.l)

def vr(b, n=4): return f"v[{b}:{b+n-1}]" if n > 1 else f"v{b}"
def ar(b, n=4): return f"a[{b}:{b+n-1}]" if n > 1 else f"a{b}"
def sr(b, n=4): return f"s[{b}:{b+n-1}]" if n > 1 else f"s{b}"

def mfma16(d, a, b, c=None):
    return f"v_mfma_f32_16x16x32_bf16 {d}, {a}, {b}, {d if c is None else c}"

def interleave(mf, fill):
    out = []
    for i, m in enumerate(mf):
        out.append(m)
        out += fill.get(i, [])
    return out

def spread(fill, items, lo, hi, front=False):
    n = len(items)
    for k, it in enumerate(items):
        g = lo + (k * (hi - lo)) // n
        it = [it] if isinstance(it, str) else list(it)
        if front: fill[g] = it + fill.get(g, [])
        else: fill.setdefault(g, []).extend(it)

def srd(b, s_base, ptr_s, size):
    b(f"s_mov_b32 s{s_base}, s{ptr_s}")
    b(f"s_mov_b32 s{s_base+1}, s{ptr_s+1}")
    b(f"s_mov_b32 s{s_base+2}, {size}")
    b(f"s_mov_b32 s{s_base+3}, 0x20000")

def kdesc(label, vgpr, accum, sgpr=102):
    return f""".amdhsa_kernel {label}
  .amdhsa_next_free_vgpr {vgpr}
  .amdhsa_next_free_sgpr {sgpr}
  .amdhsa_accum_offset {accum}
  .amdhsa_group_segment_fixed_size 0
  .amdhsa_kernarg_size 96
  .amdhsa_user_sgpr_count 2
  .amdhsa_user_sgpr_kernarg_segment_ptr 1
  .amdhsa_system_sgpr_workgroup_id_x 1
.end_amdhsa_kernel"""

class VM:
    def __init__(self): self.ops = []
    def issue(self, tag): self.ops.append(tag)
    def need(self, *tags):
        last = -1
        for k, t in enumerate(self.ops):
            if t in tags: last = k
        n = len(self.ops) - 1 - last
        assert n <= 63 or last < 0, n
        return min(n, 63)
```

```python
from common import *
from sched import *
S_W, S_H, S_RT = 28, 29, 30
SRD_A, SRD_B, SRD_WS = 32, 36, 40
S_OFFA, S_OFFB, S_CNT, S_M0A, S_M0B, S_T = 48, 49, 50, 51, 52, 53
V_C, V_W, V_RA, V_WA = 4, 12, 20, 22
A_WF = [32, 96]; A_RF = 160
LW = [0, 32768]; LC = [65536, 98304]
def acc(r, c):
    t = r * 8 + c
    return vr(32 + 4 * t) if t < 56 else ar(4 * (t - 56))
def wf(s, ct, ks): return A_WF[s] + (ct * 2 + ks) * 4
def rf(r, ks): return A_RF + (r * 2 + ks) * 4
def rd_R(r, ks, par): return f"ds_read_b128 {ar(rf(r, ks))}, v{V_RA+ks} offset:{par*32768 + r*2048}"
def rd_W(s, ct, ks, u, par): return f"ds_read_b64_tr_b16 {ar(wf(s, ct, ks) + 2*u, 2)}, v{V_WA+ct} offset:{par*32768 + (32*ks + 4*u)*256}"
def dma_group(par):
    g = []
    for half in range(2):
        for p4 in range(4):
            p = half * 4 + p4
            it = []
            if p4 == 0: it.append(f"s_add_u32 m0, s{S_M0A}, {LC[par] + half*4096}")
            it2 = f"buffer_load_dwordx4 v{V_C+p}, {sr(SRD_A)}, s{S_OFFA} offen offset:{p4*1024} lds"
            g.append((it, it2))
    for half in range(2):
        for p4 in range(4):
            p = half * 4 + p4
            it = []
            if p4 == 0: it.append(f"s_add_u32 m0, s{S_M0A}, {LW[par] + half*4096}")
            it2 = f"buffer_load_dwordx4 v{V_W+p}, {sr(SRD_B)}, s{S_OFFB} offen offset:{p4*1024} lds"
            g.append((it, it2))
    return g
def dma_flat(par):
    out = []
    for pre, d in dma_group(par):
        out += pre
        if pre: out.append("s_nop 0")
        out.append(d)
    out += [f"s_add_u32 s{S_OFFA}, s{S_OFFA}, 128", f"s_add_u32 s{S_OFFB}, s{S_OFFB}, {64*8192}"]
    return out

def stage(isV, par, do_dma=True, do_next=True):
    mf = []
    for r in range(8):
        for c in range(8):
            for ks in range(2):
                A, B = ar(rf(r, ks)), ar(wf(par, c, ks))
                mf.append(mfma16(acc(r, c), A, B) if isV else mfma16(acc(r, c), B, A))
    fill = {}
    for r in range(4):
        fill.setdefault(r*16 + 2, []).append(rd_R(r+4, 0, par))
        fill.setdefault(r*16 + 8, []).append(rd_R(r+4, 1, par))
    if do_next:
        fill.setdefault(63, []).extend(["s_waitcnt vmcnt(0) lgkmcnt(0)", "s_barrier"])
        dg = dma_group(par) if do_dma else []
        for r in range(4, 8):
            base = r * 16
            reads = []
            for ct in (2*(r-4), 2*(r-4)+1):
                for ks in range(2):
                    for u in range(2): reads.append(rd_W(1-par, ct, ks, u, 1-par))
            reads.insert(4, rd_R(r-4, 0, 1-par)); reads.append(rd_R(r-4, 1, 1-par))
            other = [g for g in range(16) if g % 4 != 1]
            if do_dma:
                for k in range(4):
                    pre, d = dg[(r-4)*4 + k]
                    if pre: fill.setdefault(base + 4*k, []).extend(pre)
                    fill.setdefault(base + 4*k + 1, []).append(d)
            slots = [2, 3, 4, 6, 7, 8, 10, 11, 12, 14]
            for k, rd in enumerate(reads): fill.setdefault(base + slots[k], []).append(rd)
        if do_dma:
            fill.setdefault(126, []).append(f"s_add_u32 s{S_OFFA}, s{S_OFFA}, 128")
            fill.setdefault(127, []).append(f"s_add_u32 s{S_OFFB}, s{S_OFFB}, {64*8192}")
    return interleave(mf, fill)

def setup(b):
    b(f"""v_and_b32 v1, 63, v0
    v_lshrrev_b32 v2, 6, v0
    s_and_b32 s{S_T}, s2, 7
    v_readfirstlane_b32 s{S_W}, v2
    s_lshl_b32 s{S_H}, s{S_T}, 2
    s_lshr_b32 s{S_T}, s2, 3
    s_and_b32 s{S_T}, s{S_T}, 3
    s_add_u32 s{S_H}, s{S_H}, s{S_T}
    s_lshr_b32 s{S_RT}, s2, 5""")

def kv_setup(b):
    srd(b, SRD_A, 6, SZ['A_c'])
    b(f"""s_cmp_lt_u32 s{S_W}, 2
    s_cselect_b32 s{SRD_B}, s10, s12
    s_cselect_b32 s{SRD_B+1}, s11, s13
    s_mov_b32 s{SRD_B+2}, {SZ['A_wuk']}
    s_mov_b32 s{SRD_B+3}, 0x20000""")
    srd(b, SRD_WS, 26, WS_END)
    b(f"s_lshl_b32 s{S_M0A}, s{S_W}, 13")
    b(f"s_mov_b32 s{S_OFFA}, 0\ns_mov_b32 s{S_OFFB}, 0")
    b(f"""s_lshl_b32 s{S_T}, s{S_RT}, 8
    s_lshl_b32 s{S_T+1}, s{S_W}, 6
    s_add_u32 s{S_T}, s{S_T}, s{S_T+1}
    v_lshrrev_b32 v2, 3, v1
    v_add_u32 v2, s{S_T}, v2
    v_lshlrev_b32 v2, 10, v2
    v_lshrrev_b32 v3, 4, v1
    v_and_b32 v30, 7, v1
    v_xor_b32 v3, v3, v30
    v_lshlrev_b32 v30, 4, v3
    v_add_u32 v30, v30, v2
    v_xor_b32 v3, 4, v3
    v_lshlrev_b32 v31, 4, v3
    v_add_u32 v31, v31, v2""")
    for p in range(8):
        b(f"v_add_u32 v{V_C+p}, {p*8192 - (p&3)*1024}, v{30 + (p&1)}")
    b(f"""s_and_b32 s{S_T}, s{S_W}, 1
    s_lshl_b32 s{S_T}, s{S_T}, 18
    s_lshl_b32 s{S_T+1}, s{S_H}, 8
    s_add_u32 s{S_T}, s{S_T}, s{S_T+1}
    v_lshrrev_b32 v2, 4, v1
    v_lshlrev_b32 v3, 2, v2
    v_lshlrev_b32 v2, 13, v2
    v_add_u32 v2, s{S_T}, v2
    v_and_b32 v30, 15, v1
    v_xor_b32 v3, v3, v30
    v_lshlrev_b32 v30, 4, v3
    v_add_u32 v30, v30, v2
    v_xor_b32 v3, 2, v3
    v_lshlrev_b32 v31, 4, v3
    v_add_u32 v31, v31, v2""")
    for p in range(8):
        b(f"v_add_u32 v{V_W+p}, {p*4*8192 - (p&3)*1024}, v{30 + ((p>>1)&1)}")

def kv_setup2(b):
    b(f"""s_lshr_b32 s{S_T}, s{S_W}, 1
    s_lshl_b32 s{S_T}, s{S_T}, 14
    s_add_u32 s{S_T}, s{S_T}, {LC[0]}
    v_and_b32 v2, 15, v1
    v_lshrrev_b32 v3, 1, v2
    v_lshlrev_b32 v2, 7, v2
    v_add_u32 v2, s{S_T}, v2
    v_lshrrev_b32 v30, 4, v1
    v_xor_b32 v3, v3, v30
    v_lshlrev_b32 v30, 4, v3
    v_add_u32 v{V_RA}, v30, v2
    v_xor_b32 v3, 4, v3
    v_lshlrev_b32 v30, 4, v3
    v_add_u32 v{V_RA+1}, v30, v2""")
    b(f"""s_and_b32 s{S_T}, s{S_W}, 1
    s_lshl_b32 s{S_T}, s{S_T}, 14
    v_lshrrev_b32 v2, 4, v1
    v_lshrrev_b32 v3, 2, v1
    v_and_b32 v3, 3, v3
    v_lshl_add_u32 v30, v2, 3, v3
    v_lshlrev_b32 v30, 8, v30
    v_add_u32 v30, s{S_T}, v30
    v_and_b32 v31, 1, v1
    v_lshl_add_u32 v30, v31, 3, v30
    v_and_b32 v2, 1, v2
    v_lshlrev_b32 v2, 1, v2
    v_lshl_or_b32 v2, v3, 2, v2
    v_lshrrev_b32 v3, 1, v1
    v_and_b32 v3, 1, v3
    v_xor_b32 v2, v2, v3""")
    for ct in range(8):
        b(f"v_xor_b32 v3, {2*ct}, v2\nv_lshl_add_u32 v{V_WA+ct}, v3, 4, v30")

def kv_epilogue(isV):
    b = Blk()
    b(f"""s_mul_i32 s{S_T}, s{S_H}, {KV_HS}
    s_lshl_b32 s{S_T+1}, s{S_RT}, 17
    s_add_u32 s{S_T}, s{S_T}, s{S_T+1}
    s_lshr_b32 s{S_T+1}, s{S_W}, 1
    s_lshl_b32 s{S_T+1}, s{S_T+1}, 16
    s_add_u32 s{S_T}, s{S_T}, s{S_T+1}
    v_lshlrev_b32 v30, 4, v1""")
    if isV: b(f"s_add_u32 s{S_T}, s{S_T}, {32768 + 2048}")
    tmp = [4, 8, 12, 16]
    n = 0
    for jj in range(4):
        for f in range(8):
            if isV: t0, t1 = (2*jj, f), (2*jj+1, f)
            else:
                r = 2*jj + (f >> 2); s = f & 3
                t0, t1 = (r, 2*s), (r, 2*s+1)
            d = tmp[n % 4]; n += 1
            for k, (r, c) in enumerate((t0, t1)):
                t = r*8 + c
                if t < 56:
                    s0 = 32 + 4*t
                else:
                    s0 = 20 + 4*k
                    for q in range(4): b(f"v_accvgpr_read_b32 v{s0+q}, a{4*(t-56)+q}")
                b(f"v_cvt_pk_bf16_f32 v{d+2*k}, v{s0}, v{s0+1}")
                b(f"v_cvt_pk_bf16_f32 v{d+2*k+1}, v{s0+2}, v{s0+3}")
            if f % 2 == 0: b(f"s_add_u32 s{S_T+1}, s{S_T}, {jj*16384 + (f>>1)*4096}")
            b(f"buffer_store_dwordx4 {vr(d)}, v30, {sr(SRD_WS)}, s{S_T+1} offen offset:{(f&1)*1024}")
    return b.l

def prefetch_l2(b):
    b(f"""s_lshr_b32 s{S_T}, s2, 3
    s_lshl_b32 s{S_T}, s{S_T}, 16
    v_lshlrev_b32 v2, 7, v0
    buffer_load_dword a250, v2, {sr(SRD_A)}, s{S_T} offen
    s_add_u32 s{S_T}, s{S_T}, 32768
    buffer_load_dword a251, v2, {sr(SRD_A)}, s{S_T} offen""")
    b(f"""s_lshr_b32 s{S_T}, s2, 3
    s_lshl_b32 s{S_T}, s{S_T}, 17
    s_and_b32 s{S_T+1}, s{S_W}, 1
    s_lshl_b32 s{S_T+1}, s{S_T+1}, 16
    s_add_u32 s{S_T}, s{S_T}, s{S_T+1}
    s_and_b32 s{S_T+1}, s2, 7
    s_lshl_b32 s{S_T+1}, s{S_T+1}, 10
    s_add_u32 s{S_T}, s{S_T}, s{S_T+1}
    v_lshrrev_b32 v2, 3, v1
    v_lshlrev_b32 v2, 13, v2
    v_and_b32 v3, 7, v1
    v_lshl_add_u32 v2, v3, 7, v2
    buffer_load_dword a252, v2, {sr(SRD_B)}, s{S_T} offen""")


WS_STAMP = 200 << 20
def stamp(b, k, dev):
    if dev: b(f"s_memrealtime s[{60+2*k}:{61+2*k}]\ns_memtime s[{76+2*k}:{77+2*k}]")
def stamp_store(b, n, dev, pfx, slot=0):
    if not dev: return
    b(f"""s_waitcnt lgkmcnt(0)
    s_cmp_lg_u32 s{S_W}, 0
    s_cbranch_scc1 {pfx}_nost
    s_mov_b32 s{SRD_WS+2}, {SZ['ws']}
    s_lshl_b32 s{S_T}, s2, 6
    s_add_u32 s{S_T}, s{S_T}, {WS_STAMP + slot*16384}
    v_mov_b32 v2, 0""")
    for k in range(n):
        b(f"v_mov_b32 v3, s{60+2*k}\nbuffer_store_dword v3, v2, {sr(SRD_WS)}, s{S_T} offen offset:{4*k}")
        b(f"v_mov_b32 v3, s{76+2*k}\nbuffer_store_dword v3, v2, {sr(SRD_WS)}, s{S_T} offen offset:{32+4*k}")
    b(f"{pfx}_nost:")

def build_kv(label, traces, prefetch=True, dev=False, nodma=False, nowait=False):
    b = Blk()
    b(f"{label}:")
    pro = Blk()
    pro(f"""s_cmp_ge_u32 s2, 256
    s_cbranch_scc1 LKV_end""")
    stamp(pro, 0, dev)
    pro("""s_load_dwordx16 s[4:19], s[0:1], 0
    s_load_dwordx8 s[20:27], s[0:1], 64""")
    setup(pro)
    pro("s_waitcnt lgkmcnt(0)")
    stamp(pro, 5, dev)
    kv_setup(pro)
    stamp(pro, 6, dev)
    pro.ext(dma_flat(0)); pro.ext(dma_flat(1))
    stamp(pro, 7, dev)
    npf = 0
    if prefetch:
        prefetch_l2(pro); npf = 3
    kv_setup2(pro)
    for t in range(56):
        for q in range(4): pro(f"v_mov_b32 v{32+4*t+q}, 0")
    for q in range(32): pro(f"v_accvgpr_write_b32 a{q}, 0")
    pro(f"s_waitcnt vmcnt({16+npf})")
    pro("s_barrier")
    for ct in range(8):
        for ks in range(2):
            for u in range(2): pro(rd_W(0, ct, ks, u, 0))
    for r in range(4):
        for ks in range(2): pro(rd_R(r, ks, 0))
    pro(f"s_mov_b32 s{S_CNT}, 3")
    stamp(pro, 1, dev)
    pro(f"""s_waitcnt lgkmcnt(0)
    s_bitcmp1_b32 s{S_W}, 0
    s_cbranch_scc1 LKV_V""")
    b.ext(pro)
    for isV in (False, True):
        nm = "V" if isV else "K"
        body = loop_waits(stage(isV, 0, do_dma=not nodma) + stage(isV, 1, do_dma=not nodma) + [f"s_sub_u32 s{S_CNT}, s{S_CNT}, 1", f"s_cmp_lg_u32 s{S_CNT}, 0", f"s_cbranch_scc1 LKV_{nm}"])
        if nowait: body = [x.replace("vmcnt(0) lgkmcnt(0)", "vmcnt(16) lgkmcnt(0)") for x in body]
        tail = add_lgkm_waits(stage(isV, 0, do_dma=False) + stage(isV, 1, do_dma=False, do_next=False), body)
        ep = Blk(); stamp(ep, 2, dev); ep("s_nop 7"); ep.ext(kv_epilogue(isV))
        stamp(ep, 3, dev)
        if dev: ep("s_waitcnt vmcnt(0)")
        stamp(ep, 4, dev)
        stamp_store(ep, 8, dev, f"LKV_{nm}")
        ep("s_endpgm")
        b(f".p2align 6\nLKV_{nm}:")
        b.ext(body); b.ext(tail); b.ext(ep)
        traces.append((f"kv{nm}", pro.l + body + body + body + tail + ep.l))
    b("LKV_end:\ns_endpgm")
    return b
```

```python
import re
REG = re.compile(r'^(-?)(?:abs\()?([vas])(\d+)\)?$')
RNG = re.compile(r'^(-?)([vas])\[(\d+):(\d+)\]$')
def regs(op):
    op = op.strip()
    m = REG.match(op)
    if m: return [(m.group(2), int(m.group(3)))]
    m = RNG.match(op)
    if m: return [(m.group(2), i) for i in range(int(m.group(3)), int(m.group(4)) + 1)]
    if op == 'vcc': return [('s', 'vcc')]
    if op == 'exec': return [('s', 'exec')]
    if op == 'm0': return [('s', 'm0')]
    if op == 'scc': return [('s', 'scc')]
    return []
TRANS = ('v_exp_f32', 'v_log_f32', 'v_rcp_f32', 'v_rsq_f32', 'v_sqrt_f32', 'v_sin_f32', 'v_cos_f32')
class I:
    pass
def parse(line):
    s = line.split(';')[0].split('//')[0].strip()
    if not s or s.endswith(':') or s.startswith('.'): return None
    parts = s.split(None, 1)
    mn = parts[0]
    rest = parts[1] if len(parts) > 1 else ''
    ops = [o.strip() for o in rest.split(',')] if rest else []
    mods = ''
    if ops:
        lp = ops[-1].split(None, 1)
        ops[-1] = lp[0]
        mods = lp[1] if len(lp) > 1 else ''
    i = I(); i.text = s; i.mn = mn; i.ops = ops; i.mods = mods
    i.w = []; i.r = []; i.kind = 'other'; i.ws = 1
    R = lambda k: regs(ops[k]) if k < len(ops) else []
    base = mn.replace('_e32', '').replace('_e64', '')
    if mn.startswith('v_mfma'):
        i.kind = 'mfma'; i.w = R(0); i.a = R(1); i.b = R(2); i.c = R(3); i.r = i.a + i.b + i.c
        i.passes = 8 if '32x32' in mn else 4
    elif mn.startswith('ds_read') or mn.startswith('ds_bpermute') or mn.startswith('ds_swizzle'):
        i.kind = 'ds'; i.w = R(0); i.r = sum((R(k) for k in range(1, len(ops))), []); i.load = True
    elif mn.startswith('ds_'):
        i.kind = 'ds'; i.r = sum((R(k) for k in range(len(ops))), []); i.load = False
        if 'rtn' in mn: i.w = R(0); i.r = sum((R(k) for k in range(1, len(ops))), []); i.load = True
    elif mn.startswith('buffer_load') or mn.startswith('global_load'):
        i.kind = 'vmem'
        if ' lds' in (' ' + mods) or 'lds' in mn:
            i.r = sum((R(k) for k in range(len(ops))), []) + [('s', 'm0')]; i.dma = True; i.load = False
        else:
            i.w = R(0); i.r = sum((R(k) for k in range(1, len(ops))), []); i.dma = False; i.load = True
    elif mn.startswith('buffer_store') or mn.startswith('global_store') or mn.startswith('buffer_atomic') or mn.startswith('global_atomic'):
        i.kind = 'vmem'; i.r = sum((R(k) for k in range(len(ops))), []); i.dma = False; i.load = False
        i.wide = ('x4' in mn or 'x3' in mn)
        i.data = R(0) if mn.startswith('buffer') else R(1)
        if 'atomic' in mn and 'sc0' in mods: i.w = R(0); i.load = True
    elif mn.startswith('buffer_inv') or mn.startswith('buffer_wbl2'):
        i.kind = 'vmem'; i.dma = False; i.load = False
    elif mn.startswith('s_load') or mn.startswith('s_memtime') or mn.startswith('s_memrealtime'):
        i.kind = 'smem'; i.w = R(0); i.r = R(1)
    elif mn == 's_waitcnt':
        i.kind = 'wait'
        m = re.search(r'vmcnt\((\d+)\)', s); i.vm = int(m.group(1)) if m else None
        m = re.search(r'lgkmcnt\((\d+)\)', s); i.lg = int(m.group(1)) if m else None
        if i.vm is not None: assert i.vm <= 63, s
        if i.lg is not None: assert i.lg <= 15, s
    elif mn == 's_nop':
        i.kind = 'nop'; i.ws = int(ops[0], 0) + 1
    elif mn in ('s_barrier', 's_endpgm', 's_setprio', 's_sleep') or mn.startswith('s_branch') or mn.startswith('s_cbranch'):
        i.kind = 'ctl'
        if 'vcc' in mn: i.r = [('s', 'vcc')]
    elif mn.startswith('s_cmp'):
        i.kind = 'salu'; i.r = R(0) + R(1)
    elif mn.startswith('s_'):
        i.kind = 'salu'; i.w = R(0); i.r = sum((R(k) for k in range(1, len(ops))), [])
        if 'saveexec' in mn: i.w += [('s', 'exec')]
    elif mn.startswith('v_'):
        i.kind = 'valu'
        if base.startswith('v_cmp'):
            i.w = R(0); i.r = R(1) + R(2)
        elif base.startswith('v_permlane') and 'swap' in base:
            i.w = R(0) + R(1); i.r = R(0) + R(1)
        elif base in ('v_fmac_f32',) or base.startswith('v_dot2c') :
            i.w = R(0); i.r = R(0) + R(1) + R(2)
        elif base.startswith('v_add_co') or base.startswith('v_sub_co') or base.startswith('v_addc_co'):
            i.w = R(0) + R(1); i.r = sum((R(k) for k in range(2, len(ops))), [])
        elif base == 'v_writelane_b32':
            i.w = R(0); i.r = R(0) + R(1) + R(2)
        else:
            i.w = R(0); i.r = sum((R(k) for k in range(1, len(ops))), [])
        i.trans = base in TRANS
        i.dpp = ('row_' in mods or 'quad_perm' in mods or 'wave_' in mods)
    else:
        raise ValueError('unknown instr: ' + s)
    return i

def lint(trace, name=''):
    ins = [x for x in (parse(l) for l in trace) if x is not None]
    errs = []
    pos = 0
    positions = []
    for x in ins:
        positions.append(pos); pos += x.ws
    def dist(j, k):
        return positions[k] - positions[j] - ins[j].ws
    W = 24
    lg = []
    vm = []
    smem_out = []
    for k, x in enumerate(ins):
        rs, wsx = set(x.r), set(x.w)
        if x.kind == 'wait':
            if x.lg is not None:
                if smem_out and x.lg != 0 : errs.append(f'{name}: counted lgkmcnt with smem outstanding: {x.text}')
                if x.lg == 0: smem_out = []
                while len(lg) > x.lg: lg.pop(0)
            if x.vm is not None:
                while len(vm) > x.vm: vm.pop(0)
        else:
            for lst, nm in ((lg, 'lgkm'), (vm, 'vm'), (smem_out, 'smem')):
                for (j, d) in lst:
                    if d and (rs & d or wsx & d):
                        errs.append(f'{name}: [{k}] {x.text}  touches regs of outstanding {nm} op [{j}] {ins[j].text}')
        if x.kind == 'ds': lg.append((k, set(x.w)))
        if x.kind == 'vmem': vm.append((k, set(x.w)))
        if x.kind == 'smem': smem_out.append((k, set(x.w)))
        if len(vm) > 63: errs.append(f'{name}: [{k}] vmcnt overflow >63 outstanding'); vm.pop(0)
        if len(lg) > 15 and False: errs.append(f'{name}: [{k}] lgkm >15')
        j = k - 1
        while j >= 0 and positions[k] - positions[j] <= W + 16:
            p = ins[j]; d = dist(j, k)
            pw = set(p.w)
            def need(n, why):
                if d < n: errs.append(f'{name}: [{k}] {x.text}  needs {n} ws after [{j}] {p.text} (has {d}): {why}')
            if p.kind == 'valu':
                vw = {r for r in pw if r[0] in 'va'}
                sw = {r for r in pw if r[0] == 's'}
                if x.kind == 'mfma' and vw & rs: need(2, 'valu->mfma')
                if x.kind == 'valu':
                    if p.trans and not x.trans and vw & rs: need(1, 'trans->valu')
                    if x.mn.startswith('v_readfirstlane') or x.mn.startswith('v_readlane'):
                        if vw & rs: need(1, 'valu->readlane')
                    if x.mn.startswith('v_permlane') and vw & rs: need(2, 'valu->permlane')
                    if x.dpp and vw & rs: need(2, 'valu->dpp')
                    if sw & rs: need(2, 'valu sgpr->valu')
                    if ('s','exec') in sw and x.dpp: need(5, 'exec->dpp')
                if x.kind == 'vmem' and sw & rs: need(5, 'valu sgpr->vmem')
                if x.kind in ('salu','ctl') and sw & rs: need(1, 'valu sgpr->salu (conservative)')
                if x.kind == 'mfma' and ('s','exec') in sw: need(4, 'exec->mfma')
                if p.trans and x.kind in ('ds','vmem') and vw & rs: need(1, 'trans->mem (conservative)')
            if p.kind == 'salu':
                if ('s', 'm0') in pw and x.kind == 'vmem' and getattr(x, 'dma', False): need(1, 'm0->dma')
            if p.kind == 'mfma':
                n_ab = 12 if p.passes == 8 else 8
                n_c = 10 if p.passes == 8 else 6
                n_war = 7 if p.passes == 8 else 3
                if x.kind == 'mfma':
                    if pw & (set(x.a) | set(x.b)): need(n_ab, 'mfma D->A/B')
                    if pw & set(x.c):
                        if not (p.w == x.c and p.passes == x.passes): need(n_c, 'mfma D->C overlap')
                    if pw & wsx and not (p.w == x.w and p.w == x.c):
                        if not (pw & set(x.c)): need(n_c, 'mfma WAW (conservative)')
                elif x.kind in ('valu', 'ds', 'vmem'):
                    if pw & rs or pw & wsx: need(n_ab, 'mfma D->valu/mem')
                    if x.kind == 'valu' and set(p.c) & wsx: need(n_war, 'mfma C WAR')
                    if x.kind in ('ds','vmem') and set(p.c) & wsx: need(n_war, 'mfma C WAR by load (conservative)')
            if p.kind == 'vmem' and getattr(p, 'wide', False) and x.kind == 'valu' and set(p.data) & wsx: need(2, 'store data WAR')
            if p.kind == 'ds' and not p.load and x.kind == 'valu' and False: pass
            j -= 1
    return errs
```

```python
from common import *
from sched import *
from kvgemm import setup, stamp, S_W, SRD_A, SRD_WS
import kvgemm
S_T = 48
S_OA, S_OB_ = 54, 55
SRD_O = 44
RING = 6
ACC_A, ACC_B = 32, 112
def build_out(label, traces, dev=False):
    T = S_T
    b = Blk(); b(f"{label}:")
    b("s_cmp_ge_u32 s2, 256\ns_cbranch_scc1 LO_end")
    stamp(b, 0, dev)
    b("s_load_dwordx4 s[20:23], s[0:1], 64\ns_load_dwordx4 s[24:27], s[0:1], 80")
    b(f"""v_and_b32 v1, 63, v0
    v_lshrrev_b32 v2, 6, v0
    s_and_b32 s{T}, s2, 7
    v_readfirstlane_b32 s{S_W}, v2
    s_lshl_b32 s{T}, s{T}, 2
    s_lshr_b32 s{T+1}, s2, 3
    s_and_b32 s{T+1}, s{T+1}, 3
    s_add_u32 s{T}, s{T}, s{T+1}
    s_lshr_b32 s{T+1}, s2, 5
    v_lshlrev_b32 v3, 4, v1""")
    b(f"""s_mul_i32 s{T+2}, s{T}, {4*20480}
    s_add_u32 s{T+2}, s{T+2}, {WS_OB}
    s_mul_i32 s{T+3}, s{T+1}, {5*20480}
    s_add_u32 s{T+3}, s{T+3}, {WS_WOBT}
    v_add_u32 v13, s{T+2}, v3
    v_add_u32 v17, s{T+3}, v3""")
    for i in range(1, 4): b(f"v_add_u32 v{13+i}, {i*20480}, v13")
    for j in range(1, 5): b(f"v_add_u32 v{17+j}, {j*20480}, v17")
    b(f"""s_lshl_b32 s{T+2}, s{T}, 19
    s_add_u32 s{T+2}, s{T+2}, {WS_CTX}
    s_mul_i32 s{T+3}, s{T+1}, {5*131072}
    s_add_u32 s{T+3}, s{T+3}, {WS_WOT}
    v_add_u32 v4, s{T+2}, v3
    v_add_u32 v8, s{T+3}, v3""")
    for i in range(1, 4): b(f"v_add_u32 v{4+i}, {i*131072}, v4")
    for j in range(1, 5): b(f"v_add_u32 v{8+j}, {j*131072}, v8")
    b(f"""s_lshl_b32 s{S_OA}, s{S_W}, 15
    s_mul_i32 s{S_OB_}, s{S_W}, 5120
    s_waitcnt lgkmcnt(0)""")
    srd(b, SRD_WS, 26, WS_END); srd(b, SRD_O, 22, SZ['out'])
    vm = VM()
    steps = [("B", k) for k in range(5)] + [("A", k) for k in range(32)]
    def loads(n):
        kind, k = steps[n]
        r = (n % RING) * 36
        out = []
        if kind == "B":
            if k == 4: out.append(f"s_add_u32 s{S_OB_}, s{S_OB_}, 4096")
            vb, so = 13, S_OB_
        else:
            if k % 4 == 0 and k: out.append(f"s_add_u32 s{S_OA}, s{S_OA}, 4096")
            vb, so = 4, S_OA
        order = [4, 0, 1, 2, 3, 5, 6, 7, 8]
        for q in order:
            out.append(f"buffer_load_dwordx4 {ar(r + 4*q)}, v{vb+q}, {sr(SRD_WS)}, s{so} offen offset:{(k%4)*1024}")
        return out
    for n in range(RING - 1):
        for l in loads(n):
            b(l)
            if l.startswith("buffer"): vm.issue(n)
    stamp(b, 1, dev)
    for n in range(len(steps)):
        kind, k = steps[n]
        r = (n % RING) * 36
        acc = ACC_B if kind == "B" else ACC_A
        mf = []
        for j in range(5):
            for i in range(4):
                d = vr(acc + (i*5 + j)*4)
                mf.append(mfma16(d, ar(r + 16 + 4*j), ar(r + 4*i), d if k else "0"))
        fill = {}
        b(f"s_waitcnt vmcnt({vm.need(n)})")
        if n + RING - 1 < len(steps):
            g = 0
            for l in loads(n + RING - 1):
                fill.setdefault(g, []).append(l)
                if l.startswith("buffer"): vm.issue(n + RING - 1); g += 2
        b.ext(interleave(mf, fill))
    stamp(b, 2, dev)
    b(f"""s_mul_i32 s{T+2}, s{S_W}, 40960
    v_add_u32 v4, s{T+2}, v3
    s_mul_i32 s{T+2}, s{S_W}, 5120
    v_add_u32 v9, s{T+2}, v3
    v_add_u32 v10, {40960}, v9
    v_add_u32 v11, {2*40960}, v9
    v_add_u32 v12, {3*40960}, v9""")
    for t in range(20): b(f"ds_write_b128 v4, {vr(ACC_B + 4*t)} offset:{(20+t)*1024}")
    for t in range(20): b(f"ds_write_b128 v4, {vr(ACC_A + 4*t)} offset:{t*1024}")
    b(f"""s_lshl_b32 s{T+2}, s{T}, 6
    s_lshl_b32 s{T+3}, s{S_W}, 4
    s_add_u32 s{T+2}, s{T+2}, s{T+3}
    v_and_b32 v7, 15, v1
    v_add_u32 v7, s{T+2}, v7
    v_mul_u32_u24 v7, 2560, v7
    v_lshrrev_b32 v8, 4, v1
    v_lshl_add_u32 v7, v8, 3, v7
    s_mul_i32 s{T+2}, s{T+1}, 160
    s_waitcnt lgkmcnt(0)
    s_barrier""")
    code = []
    for part in range(2):
        for j in range(5):
            for c in range(4):
                r = 32 + ((part*5 + j)*4 + c)*4
                code.append(f"ds_read_b128 {vr(r)}, v{9 + c} offset:{part*20480 + j*1024}")
    for part in range(2):
        for j in range(5):
            r = 32 + (part*5 + j)*16
            for q in range(0, 4, 2):
                code.append(f"v_pk_add_f32 v[{r+q}:{r+q+1}], v[{r+q}:{r+q+1}], v[{r+4+q}:{r+5+q}]")
                code.append(f"v_pk_add_f32 v[{r+8+q}:{r+9+q}], v[{r+8+q}:{r+9+q}], v[{r+12+q}:{r+13+q}]")
            for q in range(0, 4, 2):
                code.append(f"v_pk_add_f32 v[{r+q}:{r+q+1}], v[{r+q}:{r+q+1}], v[{r+8+q}:{r+9+q}]")
            code.append(f"v_cvt_pk_bf16_f32 v{r}, v{r}, v{r+1}")
            code.append(f"v_cvt_pk_bf16_f32 v{r+1}, v{r+2}, v{r+3}")
            code.append(f"buffer_store_dwordx2 v[{r}:{r+1}], v7, {sr(SRD_O)}, s{T+2} offen offset:{part*1280 + j*32}")
    b.ext(add_lgkm_waits(code))
    stamp(b, 3, dev)
    if dev: b("s_waitcnt vmcnt(0)")
    stamp(b, 4, dev)
    kvgemm.stamp_store(b, 5, dev, "LO", slot=3)
    b("LO_end:\ns_endpgm")
    traces.append(("out", b.l))
    return b
```

```python
from lint import parse
GREEDY = 14
def add_lgkm_waits(body, prev=None, slack=0):
    q = []
    age = {}
    pos = [0]
    def step(x, out):
        nonlocal q
        if x is None: return
        pos[0] += 1
        if x.kind == 'wait':
            if x.lg is not None:
                while len(q) > x.lg: q.pop(0)
            return
        touch = set(x.r) | set(x.w)
        idx = -1
        for k, d in enumerate(q):
            if d & touch: idx = k
        if idx >= 0:
            n = len(q) - 1 - idx
            young = sum(1 for d in q if pos[0] - age[id(d)] < GREEDY)
            n = max(0, min(15, n, young))
            if out is not None: out.append(f"s_waitcnt lgkmcnt({n})")
            while len(q) > n: q.pop(0)
        if x.kind == 'ds':
            d = set(x.w); age[id(d)] = pos[0]; q.append(d)
    if prev:
        for l in prev: step(parse(l), None if True else [])
    out = []
    for l in body:
        step(parse(l), out)
        out.append(l)
    return out
def loop_waits(body, slack=0):
    a = add_lgkm_waits(body, None, slack)
    for _ in range(4):
        b = add_lgkm_waits(body, a, slack)
        if b == a: break
        a = b
    return a
```

```python
import sys
from common import *
import kvgemm, attn, bpart, outproj
from lint import lint
def build(dev=False, opts=None):
    opts = opts or {}
    traces = []
    hdr = []
    ks = []
    kv = kvgemm.build_kv("kv_kernel", traces, prefetch=opts.get("prefetch", True), dev=dev, nodma=opts.get("nodma", False), nowait=opts.get("nowait", False))
    ks.append(("kv_kernel", kv, "(256,1,1)", "(256,1,1)", 131072, 512, 256))
    kb = bpart.build_b("bp_kernel", traces, dev=dev)
    ks.append(("bp_kernel", kb, "(256,1,1)", "(256,1,1)", 163840, 512, 256))
    at = attn.build_attn("attn_kernel", traces, dev=dev)
    ks.append(("attn_kernel", at, "(256,1,1)", "(256,1,1)", 163840, 512, 256))
    ko = outproj.build_out("out_kernel", traces, dev=dev)
    ks.append(("out_kernel", ko, "(256,1,1)", "(256,1,1)", 163840, 512, 256))
    out = ["; generated"]
    for (lab, blk, g, bl, lds, vg, ac) in ks:
        out.append(f"; @launch kernel={lab} grid={g} block={bl} lds={lds}")
    out.append('.amdgcn_target "amdgcn-amd-amdhsa--gfx950"\n.text')
    for (lab, blk, g, bl, lds, vg, ac) in ks:
        out.append(f".globl {lab}\n.p2align 8\n.type {lab},@function")
        out.append(blk.text())
    out.append('.section .rodata,"a"')
    for (lab, blk, g, bl, lds, vg, ac) in ks:
        out.append(".p2align 6\n" + kdesc(lab, vg, ac))
    nerr = 0
    for nm, tr in traces:
        e = lint(tr, nm)
        for x in e[:20]: print("LINT", x, file=sys.stderr)
        nerr += len(e)
    return "\n".join(out) + "\n", nerr
if __name__ == "__main__":
    dev = "dev" in sys.argv
    opts = {}
    if "nopf" in sys.argv: opts["prefetch"] = False
    for a in sys.argv[2:]: opts[a] = True
    txt, nerr = build(dev, opts)
    open(sys.argv[1], "w").write(txt)
    print("lint errors:", nerr, "lines", txt.count("\n"))
```

```python
from fz_common import *
import fz_b as B
S_N, S_EV, S_A, S_A0, S_SRC, S_T, S_C = 48, 49, 50, 51, 53, 54, 58
S_MASK = 92
S_NEG = 57
V_L16, V_P = 4, 5
OA, OB, LA, LB, SX, SY, PX, PY, CA, CB = 16, 80, 144, 152, 160, 176, 192, 200, 208, 224
VT = 240
QA, QB, KF, VF, ONES = 0, 32, 64, 96, 128
XR = 132
LQ = 98304
V_WA, V_WQ = 144, 244
CSCALE = (128 ** -0.5) * 1.4426950408889634
import struct
def f2u(x): return struct.unpack("<I", struct.pack("<f", x))[0]

def koff(f): return (f >> 1) * 4096 + (f & 1) * 1024
def rdK(f): return f"ds_read_b128 {ar(KF + 4*f)}, v{V_P} offset:{koff(f)}"
def rdV(f): return f"ds_read_b128 {ar(VF + 4*f)}, v{V_P} offset:{koff(f) + 2048}"
def dma_blk():
    return ([f"s_and_b32 m0, s{S_SRC}, 0x1ffff"],
            [f"buffer_load_dwordx4 v{V_L16}, {sr(SRD_WS)}, s{S_SRC} offen offset:{p*1024} sc1 lds" for p in range(4)],
            [f"s_add_u32 s{S_SRC}, s{S_SRC}, 16384"])
ADV = [f"v_add_u32 v{V_P}, 0x4000, v{V_P}", f"v_and_b32 v{V_P}, 0x1ffff, v{V_P}"]

def qk(S, Q, C, czero=False):
    m = []
    for ks in range(2):
        for qs in range(2):
            d = vr(S + (qs*2 + ks)*4)
            for s in range(4):
                c = d if s else ("0" if czero else vr(C + (qs*2 + ks)*4))
                m.append(mfma16(d, ar(KF + (ks*4 + s)*4), ar(Q + (qs*4 + s)*4), c))
    return m
def pv(O, L, P):
    m = []
    for dt in range(8):
        for qs in range(2):
            m.append(mfma16(vr(O + (qs*8 + dt)*4), ar(VF + 4*dt), vr(P + 4*qs)))
    for qs in range(2):
        m.append(mfma16(vr(L + 4*qs), ar(ONES), vr(P + 4*qs)))
    return m
def softmax_ops(S, P):
    order = []
    for ks in range(2):
        for qs in range(2):
            for j in range(4): order.append((qs, ks, j))
    exps = [f"v_exp_f32 v{S+(qs*2+ks)*4+j}, v{S+(qs*2+ks)*4+j}" for qs, ks, j in order]
    cvts = []
    for k in range(8):
        qs, ks, j = order[2*k]
        r = S + (qs*2 + ks)*4 + j
        cvts.append(f"v_cvt_pk_bf16_f32 v{P + 4*qs + 2*ks + j//2}, v{r}, v{r+1}")
    return exps, cvts

def half(fill, base, S, P, reads1, reads2, bar, dma, adv_first, adv_mid):
    e, c = softmax_ops(S, P)
    for k in range(16): fill.setdefault(base + 2*k, []).append(e[k])
    put = lambda g, x: fill.setdefault(base + g, []).append(x)
    if adv_first:
        put(1, ADV[0]); put(3, ADV[1])
    if bar:
        put(5, bar); put(5, "s_barrier")
    kg = [7, 9, 11, 13, 15, 17, 19, 21]
    for k, r in enumerate(reads1): put(kg[k], r)
    if adv_mid:
        put(21, ADV[0]); put(21, ADV[1])
    vg = [23, 23, 25, 27, 29, 31, 32, 32] if adv_mid else [19, 21, 23, 25, 27, 29, 31, 32]
    for k, r in enumerate(reads2): put(vg[k], r)
    cg = [3, 7, 11, 15, 19, 23, 27, 31]
    for k in range(8): put(cg[k], c[k])
    if dma:
        pre, d, post = dma_blk()
        put(7, pre[0])
        for g, x in zip([9, 13, 17, 25], d): put(g, x)
        put(29, post[0])

def body(mode, nb):
    QX = QA if mode == "S" else QB
    CX = CA if mode == "S" else CB
    OX, LX = (OA, LA) if mode in "ST" else (OB, LB)
    mf = qk(SX, QX, CX) + pv(OX, LX, PX) + qk(SY, QB, CB) + pv(OB, LB, PY)
    fill = {}
    K = [rdK(f) for f in range(8)]; V = [rdV(f) for f in range(8)]
    if nb == 1: w0, w1 = None, 8
    elif nb == 2: w0, w1 = 12, (8 if mode == "S" else 12)
    else: w0, w1 = 4, 0
    b0 = None if w0 is None else f"s_waitcnt vmcnt({w0}) lgkmcnt(0)"
    b1 = f"s_waitcnt vmcnt({w1}) lgkmcnt(0)"
    if mode == "S":
        half(fill, 0, SY, PY, [], [], b0, nb >= 1, False, False)
        half(fill, 34, SX, PX, K, V, b1, nb == 2, False, True)
    else:
        half(fill, 0, SY, PY, K, V, b0, nb >= 1, False, False)
        half(fill, 34, SX, PX, K, V, b1, nb == 2, True, False)
        fill.setdefault(67, []).extend(ADV)
    fill.setdefault(33, []).append(f"s_add_u32 s{S_N}, s{S_N}, 1")
    fill.setdefault(67, []).append(f"s_cmp_lg_u32 s{S_N}, s{S_EV}")
    return interleave(mf, fill)

def mask_c(b, C, src):
    for j in range(4):
        b(f"v_cndmask_b32 v{C+j}, v{src[0]}, v{VT+15}, {sr(S_MASK+2*j, 2)}")
        b(f"v_cndmask_b32 v{C+12+j}, v{src[1]}, v{VT+15}, {sr(S_MASK+2*j, 2)}")
        b(f"v_mov_b32 v{C+4+j}, v{VT+15}")

XSLOT = [65536, 0, 32768]
V_XD, V_XA = 248, 152
XF = 132
S_MW, S_MX, S_OW, S_OX = 49, 50, 51, 52
def dmaW(vm, st, p):
    vm.issue(("W", st))
    return f"buffer_load_dwordx4 v{V_WQ+p}, {sr(SRD_B)}, s{S_OW} offen offset:{p*1024} lds"
def preW(st): return [f"s_add_u32 m0, s{S_MW}, {(st%4)*16384}", f"s_mov_b32 s{S_OW}, {st*64*8192}"]
def dmaX(vm, st, p):
    vm.issue(("x", st))
    return f"buffer_load_dwordx4 v{V_XD+p}, {sr(SRD_A)}, s{S_OX} offen offset:{(p&3)*1024} lds"
def preX(st, half): return [f"s_add_u32 m0, s{S_MX}, {XSLOT[st%3] + half*4096}", f"s_mov_b32 s{S_OX}, {st*128}"]
def allX(b, vm, st):
    for half in range(2):
        b.ext(preX(st, half))
        for p in range(4): b(dmaX(vm, st, half*4 + p))
def allW(b, vm, st):
    b.ext(preW(st))
    for p in range(4): b(dmaW(vm, st, p))
def q_setup():
    b = Blk()
    T = 54
    srd(b, SRD_A, 4, SZ['A_x']); srd(b, SRD_B, 8, SZ['A_wq'])
    b(f"""s_lshl_b32 s{T}, s{S_W}, 17
    s_lshl_b32 s{T+1}, s{S_H}, 8
    s_add_u32 s{T}, s{T}, s{T+1}
    v_lshrrev_b32 v2, 4, v1
    v_lshlrev_b32 v3, 2, v2
    v_lshlrev_b32 v2, 13, v2
    v_add_u32 v2, s{T}, v2
    v_and_b32 v0, 15, v1
    v_xor_b32 v3, v3, v0
    v_lshl_add_u32 v0, v3, 4, v2
    v_xor_b32 v3, 2, v3
    v_lshl_add_u32 v3, v3, 4, v2""")
    for p in range(4): b(f"v_add_u32 v{V_WQ+p}, {p*4*8192 - p*1024}, v{3 if (p>>1)&1 else 0}")
    b(f"""s_lshl_b32 s{S_MW}, s{S_W}, 12
    s_add_u32 s{S_MW}, s{S_MW}, {LQ}
    s_lshl_b32 s{S_MX}, s{S_W}, 13
    s_lshl_b32 s{T}, s{S_RT}, 2
    s_add_u32 s{T}, s{T}, s{S_W}
    s_mul_i32 s{T}, s{T}, {32*1280}
    s_sub_u32 s{T+1}, {63*32*1280}, s{T}
    v_lshrrev_b32 v2, 3, v1
    v_mul_u32_u24 v2, 1280, v2
    v_lshrrev_b32 v3, 4, v1
    v_and_b32 v0, 7, v1
    v_xor_b32 v3, v3, v0
    v_lshl_add_u32 v0, v3, 4, v2
    v_xor_b32 v3, 4, v3
    v_lshl_add_u32 v3, v3, 4, v2""")
    for p in range(8):
        b(f"v_add_u32 v{V_XD+p}, {(p&3)*(8*1280 - 1024)}, v{3 if p&1 else 0}")
        b(f"v_add_u32 v{V_XD+p}, s{T if p < 4 else T+1}, v{V_XD+p}")
    return b.l
def touch3():
    b = Blk()
    srd(b, SRD_X, 4, SZ['A_x']); srd(b, 96, 8, SZ['A_wq'])
    b(f"""s_lshl_b32 s92, s{S_Q}, 2
    s_add_u32 s92, s92, s{S_W}
    s_lshl_b32 s95, s92, 16
    s_and_b32 s93, s2, 7
    s_lshl_b32 s93, s93, 10
    s_add_u32 s95, s95, s93
    s_mul_i32 s92, s92, {3*8192}
    s_add_u32 s93, s92, 8192
    s_add_u32 s94, s92, 16384
    v_lshlrev_b32 v240, 7, v1
    v_lshrrev_b32 v241, 3, v1
    v_lshlrev_b32 v241, 13, v241
    v_and_b32 v242, 7, v1
    v_lshl_add_u32 v241, v242, 7, v241""")
    ld = [f"buffer_load_dword a248, v241, s[96:99], s95 offen"] + [f"buffer_load_dword a{249+k}, v240, {sr(SRD_X)}, s{92+k} offen" for k in range(3)]
    return b.l, ld
def q_pre(b, vm):
    allW(b, vm, 0); allX(b, vm, 0); allW(b, vm, 1); allX(b, vm, 1); allW(b, vm, 2)

def spin(lab, voff, vdat, expect, st):
    b = Blk()
    b(f"""{lab}:
    s_mov_b32 s{st+1}, 0x100000
    {lab}_l:
    s_sleep 2
    global_load_dword v{vdat}, v{voff}, s[24:25] sc1
    s_waitcnt vmcnt(0)
    v_readfirstlane_b32 s{st}, v{vdat}
    s_sub_u32 s{st+1}, s{st+1}, 1
    s_cmp_eq_u32 s{st+1}, 0
    s_cbranch_scc1 {lab}_ret
    s_cmp_lg_u32 s{st}, {expect}
    s_cbranch_scc1 {lab}_l
    s_branch {lab}_ret""")
    return b

def qproj(cx, b, vm, ool):
    T = 54
    b(f"""v_lshlrev_b32 v{V_L16}, 4, v1
    v_lshrrev_b32 v2, 4, v1
    v_lshrrev_b32 v3, 2, v1
    v_and_b32 v3, 3, v3
    v_lshl_add_u32 v6, v2, 3, v3
    v_lshlrev_b32 v6, 8, v6
    v_add_u32 v6, {LQ}, v6
    v_and_b32 v7, 1, v1
    v_lshl_add_u32 v6, v7, 3, v6
    v_and_b32 v2, 1, v2
    v_lshlrev_b32 v2, 1, v2
    v_lshl_or_b32 v2, v3, 2, v2
    v_lshrrev_b32 v3, 1, v1
    v_and_b32 v3, 1, v3
    v_xor_b32 v2, v2, v3""")
    for ct in range(8): b(f"v_xor_b32 v3, {2*ct}, v2\nv_lshl_add_u32 v{V_WA+ct}, v3, 4, v6")
    b(f"""v_and_b32 v2, 15, v1
    v_lshrrev_b32 v3, 1, v2
    v_lshlrev_b32 v2, 7, v2
    v_add_u32 v2, s{S_MX}, v2
    v_lshrrev_b32 v6, 4, v1
    v_xor_b32 v3, v3, v6
    v_lshl_add_u32 v{V_XA}, v3, 4, v2
    v_xor_b32 v3, 4, v3
    v_lshl_add_u32 v{V_XA+1}, v3, 4, v2
    v_add_u32 v{V_XA+2}, 0x10000, v{V_XA}
    v_add_u32 v{V_XA+3}, 0x10000, v{V_XA+1}
    s_mul_i32 s{S_SRC}, s{S_H}, {KV_HS}
    s_lshl_b32 s{T}, s{S_W}, 12
    s_add_u32 s{S_SRC}, s{S_SRC}, s{T}
    s_mov_b32 s{S_C}, {f2u(CSCALE)}
    s_mov_b32 s{S_C+1}, {f2u(CSCALE)}
    s_lshl_b32 s{T}, s{S_H}, 2
    v_mov_b32 v6, s{T}
    s_mov_b32 s48, 128""")
    def wf(kk, dt): return KF + (kk & 1) * 32 + 4*dt
    def rdW(kk, dt, u):
        return f"ds_read_b64_tr_b16 {ar(wf(kk, dt) + 2*u, 2)}, v{V_WA+dt} offset:{((kk>>1)%4)*16384 + (32*(kk&1) + 4*u)*256}"
    def xf(st, ks, qs): return XF + (st & 1) * 32 + (ks*4 + qs)*4
    def rdX(st, ks, qs):
        sl = XSLOT[st % 3]
        hi = sl >= 65536
        return f"ds_read_b128 {ar(xf(st, ks, qs))}, v{V_XA + ks + 2*hi} offset:{sl - 65536*hi + qs*2048}"
    b(f"s_waitcnt vmcnt({vm.need(('W', 0), ('x', 0))}) lgkmcnt(0)\ns_barrier")
    first = [rdW(0, dt, u) for dt in range(8) for u in range(2)] + [rdX(0, ks, qs) for ks in range(2) for qs in range(4)]
    b.ext(first)
    allX(b, vm, 2)
    cx.stamp(b)
    code = []
    nkv = 0
    for kk in range(20):
        st = kk // 2; ks = kk % 2
        mf = []
        for dt in range(8):
            for qs in range(4):
                d = vr(16 + (dt*4 + qs)*4)
                mf.append(mfma16(d, ar(wf(kk, dt)), ar(xf(st, ks, qs)), d if kk else "0"))
        f = Fill(); put = f.put
        if ks == 1 and kk + 1 < 20:
            need = [('W', st+1)] + {3: ['ob', 'wt'], 11: ['poll']}.get(kk, [])
            put(1, [f"s_waitcnt vmcnt({vm.need(*need)}) lgkmcnt(0)", "s_barrier"])
            if kk == 3:
                sg = Blk(); B.signal(sg, 48, "LQ_sig"); put(1, sg.l)
            if kk == 11:
                put(1, [f"v_readfirstlane_b32 s{T}, v8", "s_nop 0", f"s_cmp_lg_u32 s{T}, 8", "s_cbranch_scc1 LQ_spin", "LQ_spin_ret:"])
        if kk == 19: put(1, ["s_waitcnt lgkmcnt(0)", "s_barrier"])
        if ks == 0 and st + 1 < 10:
            put(1, f"s_waitcnt vmcnt({vm.need(('x', st+1))}) lgkmcnt(0)")
        if kk == 8:
            put(2, "global_load_dword v8, v6, s[24:25] sc1"); vm.issue('poll')
        if kk + 1 < 20:
            rs = [rdW(kk+1, dt, u) for dt in range(8) for u in range(2)]
            gs = [2, 3, 5, 6, 8, 9, 11, 12, 14, 15, 17, 18, 20, 21, 23, 24]
            for g, r in zip(gs, rs): put(g, r)
        if st + 1 < 10:
            for g, qs in zip([22, 25, 26, 27], range(4)): put(g, rdX(st+1, ks, qs))
        if st + 3 < 10:
            put(3, preX(st+3, ks))
            for g, p in zip([4, 7, 10, 13], range(4)): put(g, dmaX(vm, st+3, ks*4 + p))
            put(15, preW(st+3))
            for g, p in zip([16, 19], range(2)): put(g, dmaW(vm, st+3, ks*2 + p))
        elif kk >= 15 and nkv < 5:
            pr, d, post = dma_blk()
            put(3, pr)
            for g, x in zip([4, 10, 16, 22], d): put(g, x); vm.issue(("KV", nkv))
            put(25, post)
            nkv += 1
        code += interleave(mf, f)
    b.ext(add_lgkm_waits(code, first))
    ool.ext(spin("LQ_spin", 6, 8, 8, T))
    cx.stamp(b)
    b(f"s_lshl_b32 s{S_A0}, s{S_RT}, 2\ns_add_u32 s{S_A}, s{S_A0}, s{S_W}")
    pre, d, post = dma_blk()
    b(f"s_cmp_lg_u32 s{S_A0}, 0\ns_cbranch_scc1 LA_nob5")
    x5 = Blk(); x5.ext(pre); x5("s_nop 0"); x5.ext(d); x5.ext(post)
    b.ext(x5); b("LA_nob5:")
    b("s_nop 4")
    for qs in range(4):
        for s in range(4):
            t = VT + 4*((qs*4+s) % 2)
            for k in range(2):
                r = 16 + ((2*s + k)*4 + qs)*4
                b(f"v_pk_mul_f32 v[{r}:{r+1}], v[{r}:{r+1}], s[{S_C}:{S_C+1}]")
                b(f"v_pk_mul_f32 v[{r+2}:{r+3}], v[{r+2}:{r+3}], s[{S_C}:{S_C+1}]")
            for k in range(2):
                r = 16 + ((2*s + k)*4 + qs)*4
                b(f"v_cvt_pk_bf16_f32 v{t+2*k}, v{r}, v{r+1}")
                b(f"v_cvt_pk_bf16_f32 v{t+2*k+1}, v{r+2}, v{r+3}")
            for k in range(4): b(f"v_accvgpr_write_b32 a{(qs*4+s)*4 + k}, v{t+k}")

def attn_prologue(b):
    T = S_T
    b(f"""v_lshrrev_b32 v2, 4, v1
    v_lshlrev_b32 v2, 2, v2
    v_and_b32 v3, 15, v1
    v_mov_b32 v{VT+15}, 0xf149f2ca
    v_mov_b32 v{V_P}, v{V_L16}
    v_mov_b32 v6, 0x3f803f80""")
    for j in range(4):
        b(f"v_add_u32 v7, {j}, v2\nv_cmp_gt_u32 {sr(S_MASK+2*j, 2)}, v7, v3\nv_accvgpr_write_b32 a{ONES+j}, v6")
    b("s_waitcnt vmcnt(8)\ns_barrier")
    for f in range(8): b(rdK(f))
    for r in range(CA, CA+16): b(f"v_mov_b32 v{r}, 0")
    b(f"v_mov_b32 v6, 0\ns_cmp_lg_u32 s{S_A}, 0\ns_cbranch_scc1 LA_nomask0")
    mask_c(b, CA, [6, 6])
    b("LA_nomask0:")
    b("s_waitcnt lgkmcnt(0)")
    b.ext(qk(SX, QA, CA)); b.ext(qk(SY, QB, 0, czero=True))
    b.ext(ADV)
    for f in range(8): b(rdK(f))
    b.ext(ADV)
    for f in range(8): b(rdV(f))
    for r in range(OA, LB+8): b(f"v_mov_b32 v{r}, 0")
    for (S, C, tb) in ((SX, CA, VT), (SY, CB, VT+4)):
        for qs in range(2):
            r = S + qs*8; m = tb + 2*qs
            b(f"""v_max3_f32 v{m}, v{r}, v{r+1}, v{r+2}
            v_max3_f32 v{m+1}, v{r+3}, v{r+4}, v{r+5}
            v_max3_f32 v{m}, v{m}, v{r+6}, v{r+7}
            v_max_f32 v{m}, v{m}, v{m+1}
            v_mov_b32 v{m+1}, v{m}""")
    b("s_nop 1")
    for m in (VT, VT+2, VT+4, VT+6): b(f"v_permlane32_swap_b32 v{m}, v{m+1}")
    for m in (VT, VT+2, VT+4, VT+6): b(f"v_max_f32 v{m}, v{m}, v{m+1}\nv_mov_b32 v{m+1}, v{m}")
    b("s_nop 1")
    for m in (VT, VT+2, VT+4, VT+6): b(f"v_permlane16_swap_b32 v{m}, v{m+1}")
    for m in (VT, VT+2, VT+4, VT+6): b(f"v_max_f32 v{m}, v{m}, v{m+1}\nv_sub_f32 v{m}, 0, v{m}")
    for (S, C, tb) in ((SX, CA, VT), (SY, CB, VT+4)):
        for qs in range(2):
            for k in range(8):
                b(f"v_add_f32 v{S+qs*8+k}, v{S+qs*8+k}, v{tb+2*qs}")
                b(f"v_mov_b32 v{C+qs*8+k}, v{tb+2*qs}")
    e, c = softmax_ops(SX, PX)
    b.ext(e); b.ext(c)
    b(f"s_mov_b32 s{S_N}, 0\ns_waitcnt lgkmcnt(0)")

def handler(b):
    T = S_T
    b("LA_H:")
    b(f"s_cmp_eq_u32 s{S_N}, 32\ns_cbranch_scc1 LA_fin")
    b(f"s_add_u32 s{T}, s{S_N}, 1\ns_cmp_lg_u32 s{T}, s{S_A}\ns_cbranch_scc1 LA_h1")
    e1 = Blk(); e1(f"v_mov_b32 v{VT}, v{CA}"); mask_c(e1, CA, [VT, CA+8]); b.ext(e1)
    b("LA_h1:")
    b(f"s_cmp_lg_u32 s{S_N}, 31\ns_cbranch_scc1 LA_h2")
    e4 = Blk(); e4(f"v_mov_b32 v{VT}, v{CB}"); mask_c(e4, CB, [VT, CB+8]); b.ext(e4)
    b("LA_h2:")
    b(f"s_mov_b32 s{S_EV}, 32")
    for expr in (("s_sub_u32", S_A0, 1), ("s_sub_u32", S_A, 1), ("s_add_u32", S_A, 0), ("s_add_u32", S_A, 1)):
        b(f"{expr[0]} s{T}, s{expr[1]}, {expr[2]}\ns_cmp_gt_i32 s{T}, s{S_N}\ns_cselect_b32 s{T}, s{T}, 32\ns_min_u32 s{S_EV}, s{S_EV}, s{T}")
    for cst in (30, 31):
        b(f"s_cmp_lt_u32 s{S_N}, {cst}\ns_cselect_b32 s{T}, {cst}, 32\ns_min_u32 s{S_EV}, s{S_EV}, s{T}")
    b(f"""s_cmp_ge_u32 s{S_N}, 30
    s_cbranch_scc1 LA_sel0
    s_cmp_gt_u32 s{S_N}, s{S_A}
    s_cbranch_scc1 LA_O2
    s_cmp_eq_u32 s{S_N}, s{S_A}
    s_cbranch_scc1 LA_T2
    s_add_u32 s{T}, s{S_N}, 2
    s_cmp_gt_u32 s{T}, s{S_A0}
    s_cbranch_scc1 LA_S2
    s_branch LA_S1
    LA_sel0:
    s_cmp_gt_u32 s{S_N}, s{S_A}
    s_cbranch_scc1 LA_O0
    s_cmp_eq_u32 s{S_N}, s{S_A}
    s_cbranch_scc1 LA_T0
    s_branch LA_S0""")
    return e1.l, e4.l

def finalize(b):
    T = S_T
    b("LA_fin:")
    b("s_waitcnt lgkmcnt(0)")
    b.ext(pv(OB, LB, PX))
    b(f"""s_lshl_b32 s{T}, s{S_H}, 12
    s_add_u32 s{T}, s{T}, {WS_CTX}
    s_lshl_b32 s{T+1}, s{S_A}, 18
    s_add_u32 s{T+2}, s{T}, s{T+1}
    s_sub_u32 s{T+1}, {63 << 18}, s{T+1}
    s_add_u32 s{T+3}, s{T}, s{T+1}""")
    n = 0
    for (O, L, so) in ((OA, LA, T+2), (OB, LB, T+3)):
        if O == OB: b("s_nop 7")
        for qs in range(2): b(f"v_rcp_f32 v{VT+8+2*qs}, v{L+4*qs}")
        for qs in range(2): b(f"v_mov_b32 v{VT+9+2*qs}, v{VT+8+2*qs}")
        for qs in range(2):
            if qs: b(f"s_add_u32 s{so}, s{so}, 131072")
            for s in range(4):
                t = VT + 4*(n % 2); n += 1
                r = O + (qs*8 + 2*s)*4
                for k in range(4): b(f"v_pk_mul_f32 v[{r+2*k}:{r+2*k+1}], v[{r+2*k}:{r+2*k+1}], v[{VT+8+2*qs}:{VT+9+2*qs}]")
                for k in range(4): b(f"v_cvt_pk_bf16_f32 v{t+k}, v{r+2*k}, v{r+2*k+1}")
                b(f"buffer_store_dwordx4 {vr(t)}, v{V_L16}, {sr(SRD_WS)}, s{so} offen offset:{s*1024}{SC}")

def build_attn(cx, b):
    hb = Blk(); e1, e4 = handler(hb); b.ext(hb)
    bodies = {}
    for nm in ("S1", "S2", "S0", "T2", "T0", "O2", "O0"):
        bodies[nm] = loop_waits(body(nm[0], int(nm[1])))
        b(f".p2align 6\nLA_{nm}:")
        b.ext(bodies[nm])
        b(f"s_cbranch_scc1 LA_{nm}\ns_branch LA_H")
    def trace(i, w):
        a0 = 4*i; a = a0 + w
        tr = []
        for n in range(32):
            if n + 1 == a: tr += e1
            if n == 31: tr += e4
            tr += ["s_nop 0"] * 3
            mode = "S" if n < a else ("T" if n == a else "O")
            nb = 0 if n >= 30 else (2 if n + 2 > a0 else 1)
            tr += bodies[mode + str(nb)]
        return tr
    return trace
```

```python
from fz_common import *
S_R0, S_MX, S_MW, S_OX, S_OW, T = 48, 49, 50, 51, 57, 54
S_KVST, S_ST = 58, 53
STG = 45056
V_XD, V_L16, V_WD, V_XA, V_WA = 4, 7, 8, 16, 18
ACC = 160
XF, WF = [32, 68], [52, 88]
LSCR = 135168
RKV, RSKV = 32768, 328
RQ, RSQ = 147456, 168
def setup_dma():
    b = Blk()
    srd(b, SRD_A, 16, SZ['B_x']); srd(b, SRD_B, 18, SZ['B_wqkv'])
    b(f"""s_lshl_b32 s{S_R0}, s{S_RB}, 6
    s_mul_i32 s{S_MX}, s{S_W}, 3072
    s_lshl_b32 s{S_MW}, s{S_W}, 13
    s_add_u32 s{S_MW}, s{S_MW}, 12288
    s_mul_i32 s{T}, s{S_W}, 24
    s_add_u32 s{T}, s{T}, s{S_R0}
    s_sub_u32 s{T}, s{T}, 16
    s_and_b32 s{T+1}, s{S_W}, 1
    s_lshl_b32 s{T+1}, s{T+1}, 2
    v_lshlrev_b32 v{V_L16}, 4, v1
    v_lshrrev_b32 v2, 3, v1
    v_add_u32 v2, s{T}, v2
    v_lshrrev_b32 v3, 4, v1
    v_and_b32 v0, 7, v1
    v_xor_b32 v3, v3, v0
    v_xor_b32 v3, s{T+1}, v3""")
    for q in range(3):
        b(f"""v_add_u32 v0, {8*q}, v2
        v_max_i32 v0, 0, v0
        v_mul_u32_u24 v0, 1280, v0
        v_xor_b32 v16, {4*(q&1)}, v3
        v_lshl_add_u32 v{V_XD+q}, v16, 4, v0""")
    b(f"""s_mul_i32 s{T}, s{S_W}, {16*3840}
    s_mul_i32 s{T+1}, s{S_CG}, 160
    s_add_u32 s{T}, s{T}, s{T+1}
    v_lshrrev_b32 v2, 5, v1
    v_mul_u32_u24 v3, 3840, v2
    v_add_u32 v3, s{T}, v3
    v_lshlrev_b32 v2, 2, v2
    v_and_b32 v0, 31, v1
    v_xor_b32 v2, v2, v0""")
    for key, qs in (((0, 0), (0, 2)), ((1, 0), (1, 3)), ((0, 1), (4, 6)), ((1, 1), (5, 7))):
        x = (key[0] << 3) | (key[1] << 1)
        b(f"""v_xor_b32 v0, {x}, v2
        v_min_u32 v0, 29, v0
        v_mul_u32_u24 v16, 205, v0
        v_lshrrev_b32 v16, 11, v16
        v_mul_u32_u24 v16, {1280 - 160}, v16
        v_lshl_add_u32 v16, v0, 4, v16
        v_add_u32 v16, v16, v3""")
        for q in qs: b(f"v_add_u32 v{V_WD+q}, {q*7680 - (q&3)*1024}, v16")
    return b.l
def dma_stage(st):
    items = []
    sl = (st % 3) * STG
    for q in range(3):
        pre = ([f"s_mov_b32 s{S_OX}, {st*128}"] if q == 0 else []) + [f"s_add_u32 m0, s{S_MX}, {sl + q*1024}"]
        items.append((pre, f"buffer_load_dwordx4 v{V_XD+q}, {sr(SRD_A)}, s{S_OX} offen lds"))
    for q in range(8):
        pre = []
        if q == 0: pre.append(f"s_mov_b32 s{S_OW}, {st*64*3840}")
        if q % 4 == 0: pre.append(f"s_add_u32 m0, s{S_MW}, {sl + (q>>2)*4096}")
        items.append((pre, f"buffer_load_dwordx4 v{V_WD+q}, {sr(SRD_B)}, s{S_OW} offen offset:{(q&3)*1024} lds"))
    return items
def setup_rd():
    b = Blk()
    b(f"""s_mul_i32 s{T}, s{S_W}, 6144
    s_add_u32 s{T}, s{T}, {LSCR}
    v_lshlrev_b32 v0, 3, v1
    v_add_u32 v0, s{T}, v0
    v_and_b32 v2, 15, v1
    v_lshrrev_b32 v3, 1, v2
    v_lshlrev_b32 v2, 7, v2
    v_lshrrev_b32 v30, 4, v1
    v_xor_b32 v3, v3, v30
    v_lshl_add_u32 v{V_XA}, v3, 4, v2
    v_xor_b32 v3, 4, v3
    v_lshl_add_u32 v{V_XA+1}, v3, 4, v2
    s_lshl_b32 s{T}, s{S_W}, 3
    v_lshrrev_b32 v2, 4, v1
    v_lshrrev_b32 v3, 2, v1
    v_and_b32 v3, 3, v3
    v_lshl_add_u32 v30, v2, 3, v3
    v_lshlrev_b32 v30, 9, v30
    v_add_u32 v30, 12288, v30
    v_and_b32 v31, 1, v1
    v_lshl_add_u32 v30, v31, 3, v30
    v_and_b32 v2, 1, v2
    v_lshlrev_b32 v2, 1, v2
    v_lshl_or_b32 v2, v3, 2, v2
    v_lshrrev_b32 v3, 1, v1
    v_and_b32 v3, 1, v3
    v_xor_b32 v2, v2, v3
    v_xor_b32 v2, s{T}, v2""")
    for j in range(4): b(f"v_xor_b32 v3, {2*j}, v2\nv_lshl_add_u32 v{V_WA+j}, v3, 4, v30")
    for k in range(6): b(f"v_add_u32 v{V_XA+6+k}, {2*STG}, v{V_XA+k}")
    return b.l
def base(st): return (0, (st % 3) * STG) if st % 3 < 2 else (6, 0)
def rdX(kk, rs):
    o, off = base(kk // 2)
    return f"ds_read_b128 {ar(XF[kk&1] + 4*rs)}, v{V_XA + (kk&1) + o} offset:{off + rs*2048}"
def rdW(kk, j, u):
    o, off = base(kk // 2)
    return f"ds_read_b64_tr_b16 {ar(WF[kk&1] + 4*j + 2*u, 2)}, v{V_WA + j + o} offset:{off + (32*(kk&1) + 4*u)*512}"
def reads(kk):
    r = [rdW(kk, 0, 0), rdW(kk, 0, 1)] + [rdX(kk, rs) for rs in range(5)]
    for j in range(1, 4): r += [rdW(kk, j, 0), rdW(kk, j, 1)]
    return r
def kv_store(fr):
    pre = [f"s_add_u32 s{S_ST}, s{S_KVST}, {(fr>>3)*16384 + ((fr&7)>>1)*4096}"] if fr % 2 == 0 else []
    return pre, f"buffer_store_dwordx4 {vr(32 + 4*fr)}, v{V_L16}, {sr(SRD_WS)}, s{S_ST} offen offset:{(fr&1)*1024}{SC}"

def gemm(cx, b, vm, prev, extra, touch):
    code = []
    nst = 0
    for kk in range(20):
        st = kk // 2; ks = kk & 1
        mf = []
        for j in range(4):
            for rs in range(5):
                d = vr(ACC + (j*5 + rs)*4)
                mf.append(mfma16(d, ar(WF[ks] + 4*j), ar(XF[ks] + 4*rs), d if kk else "0"))
        f = Fill()
        if ks == 1 and kk + 1 < 20:
            f.put(1, [f"s_waitcnt vmcnt({vm.need(('B', st+1))}) lgkmcnt(0)", "s_barrier"])
        if kk + 1 < 20:
            for k, r in enumerate(reads(kk+1)): f.put(2 + k, r)
        ev = []
        if st + 2 < 10:
            it = dma_stage(st + 2)
            sel = it[:6] if ks == 0 else [([f"s_add_u32 m0, s{S_MW}, {((st+2)%3)*STG}"], it[6][1])] + it[7:]
            for k, (pre, d) in enumerate(sel): ev.append((2 + 3*k, pre, d, ("B", st+2)))
        for g in (15, 18):
            if nst < 32 and (kk < 16):
                pre, d = kv_store(nst); nst += 1
                ev.append((g + 0.5, pre, d, "kvst"))
        if touch:
            if kk in (0, 1): f.spread(touch[0][kk*11:(kk+1)*11], 2, 20)
            if kk in (3, 5, 7, 9): ev.append((1.9, [], touch[1][(kk-3)//2], "touch"))
        for g, pre, d, tag in sorted(ev, key=lambda e: e[0]):
            gi = int(g)
            if pre: f.put(gi - 1, pre)
            f.put(gi, d); vm.issue(tag)
        if kk >= 16:
            n4 = (len(extra) + 3) // 4
            f.spread(extra[(kk-16)*n4:(kk-15)*n4], 2, 20)
        code += interleave(mf, f)
    assert nst == 32
    b.ext(add_lgkm_waits(code, prev))

def signal(b, word_expr_sgpr, lab):
    b(f"""s_cmp_lg_u32 s{S_W}, 0
    s_cbranch_scc1 {lab}
    v_mov_b32 v2, s{word_expr_sgpr}
    v_mov_b32 v3, 1
    s_mov_b64 exec, 1
    global_atomic_add v2, v3, s[24:25] sc1
    s_mov_b64 exec, -1
    {lab}:""")

def result_write(b):
    b(f"""v_and_b32 v2, 15, v1
    v_lshrrev_b32 v3, 4, v1
    v_mul_u32_u24 v8, {RSKV}, v2
    v_lshl_add_u32 v8, v3, 3, v8
    v_mul_u32_u24 v9, {RSQ}, v2
    v_lshl_add_u32 v9, v3, 3, v9""")
    for t in range(20):
        r = ACC + 4*t
        b(f"v_cvt_pk_bf16_f32 v{r}, v{r}, v{r+1}\nv_cvt_pk_bf16_f32 v{r+1}, v{r+2}, v{r+3}")
    b(f"v_add_u32 v8, {RKV}, v8\nv_add_u32 v9, {RQ - 16*RSQ}, v9")
    paths = []
    for w in range(4):
        p = Blk()
        if w < 3: b(f"s_cmp_lg_u32 s{S_W}, {w}\ns_cbranch_scc1 LB_rw{w+1}")
        for j in range(4):
            ct = 4*w + j
            for rs in range(5):
                r = ACC + (j*5 + rs)*4
                if ct < 5:
                    if rs: p(f"ds_write_b64 v9, v[{r}:{r+1}] offset:{rs*16*RSQ + ct*32}")
                elif ct < 15: p(f"ds_write_b64 v8, v[{r}:{r+1}] offset:{rs*16*RSKV + (ct-5)*32}")
        b.ext(p)
        if w < 3: b(f"s_branch LB_rwd\nLB_rw{w+1}:")
        paths.append(p.l)
    b("LB_rwd:")

def local(b, vm):
    b(f"""v_add_u32 v4, 2, v1
    v_mul_u32_u24 v4, {RSKV}, v4
    s_mul_i32 s{T}, s{S_W}, 40
    s_add_u32 s{T+1}, s{T}, {RKV}
    v_add_u32 v4, s{T+1}, v4
    v_mul_u32_u24 v6, {RSQ}, v1
    s_add_u32 s{T+1}, s{T}, {RQ}
    v_add_u32 v6, s{T+1}, v6
    v_add_u32 v5, s{S_R0}, v1
    s_waitcnt lgkmcnt(0)
    s_barrier""")
    Q, K, V, LG, O = 8, 20, 100, 180, 190
    first = [f"ds_read_b64 v[{Q+2*m}:{Q+2*m+1}], v6 offset:{8*m}" for m in range(5)]
    for w8 in range(8):
        for m in range(5): first.append(f"ds_read_b64 v[{K+10*w8+2*m}:{K+10*w8+2*m+1}], v4 offset:{(14-2*w8)*RSKV + 8*m}")
    code = list(first)
    for w8 in range(8):
        for m in range(10):
            code.append(f"v_dot2_f32_bf16 v{LG+w8}, v{Q+m}, v{K+10*w8+m}, {'0' if m == 0 else 'v%d' % (LG+w8)}")
        for m in range(5): code.append(f"ds_read_b64 v[{V+10*w8+2*m}:{V+10*w8+2*m+1}], v4 offset:{(14-2*w8)*RSKV + 160 + 8*m}")
    sc = (20 ** -0.5) * 1.4426950408889634
    code.append(f"s_mov_b32 s{T}, {f2u(sc)}")
    code.append(f"v_mov_b32 v6, 0xf149f2ca")
    code.append("s_nop 2")
    for w8 in range(8): code.append(f"v_mul_f32 v{LG+w8}, s{T}, v{LG+w8}")
    for w8 in range(1, 8):
        code.append(f"v_cmp_gt_u32 vcc, {2*w8}, v5"); code.append("s_nop 1")
        code.append(f"v_cndmask_b32 v{LG+w8}, v{LG+w8}, v6, vcc")
    code += [f"v_max3_f32 v3, v{LG}, v{LG+1}, v{LG+2}", f"v_max3_f32 v3, v3, v{LG+3}, v{LG+4}", f"v_max3_f32 v3, v3, v{LG+5}, v{LG+6}", f"v_max_f32 v3, v3, v{LG+7}"]
    for w8 in range(8): code.append(f"v_sub_f32 v{LG+w8}, v{LG+w8}, v3")
    for w8 in range(8): code.append(f"v_exp_f32 v{LG+w8}, v{LG+w8}")
    code += ["s_nop 0", f"v_add_f32 v3, v{LG}, v{LG+1}"] + [f"v_add_f32 v3, v3, v{LG+k}" for k in range(2, 8)]
    code += ["v_rcp_f32 v3, v3", "s_nop 0"]
    for w8 in range(8): code.append(f"v_mul_f32 v{LG+w8}, v{LG+w8}, v3")
    PL, PH = 8, 20
    for w8 in range(8):
        code.append(f"v_cvt_pk_bf16_f32 v{PL+w8}, v{LG+w8}, 0")
        code.append(f"v_lshlrev_b32 v{PH+w8}, 16, v{PL+w8}")
    for w8 in range(8):
        for m in range(10):
            c0 = '0' if w8 == 0 else f"v{O+2*m}"; c1 = '0' if w8 == 0 else f"v{O+2*m+1}"
            code.append(f"v_dot2_f32_bf16 v{O+2*m}, v{V+10*w8+m}, v{PL+w8}, {c0}")
            code.append(f"v_dot2_f32_bf16 v{O+2*m+1}, v{V+10*w8+m}, v{PH+w8}, {c1}")
    code.append("s_nop 2")
    for m in range(10): code.append(f"v_cvt_pk_bf16_f32 v{O+20+m}, v{O+2*m}, v{O+2*m+1}")
    b.ext(add_lgkm_waits(code))
    b(f"""v_lshrrev_b32 v2, 4, v5
    v_mul_u32_u24 v2, 20480, v2
    v_and_b32 v3, 15, v1
    v_lshl_add_u32 v2, v3, 4, v2
    s_mul_i32 s{T}, s{S_CG}, 80
    s_mul_i32 s{T+1}, s{S_W}, 20
    s_add_u32 s{T}, s{T}, s{T+1}""")
    for m in range(5):
        b(f"""s_lshr_b32 s{T+1}, s{T}, 3
        s_lshl_b32 s{T+1}, s{T+1}, 8
        s_and_b32 s{T+2}, s{T}, 4
        s_lshl_b32 s{T+2}, s{T+2}, 1
        s_add_u32 s{T+1}, s{T+1}, s{T+2}
        s_add_u32 s{T+1}, s{T+1}, {WS_OB}
        buffer_store_dwordx2 v[{O+20+2*m}:{O+21+2*m}], v2, {sr(SRD_WS)}, s{T+1} offen{SC}
        s_add_u32 s{T}, s{T}, 4""")
        vm.issue("ob")
```

```python
from common import *
from sched import *
import struct
def f2u(x): return struct.unpack("<I", struct.pack("<f", x))[0]
S_W, S_H, S_RT = 28, 29, 30
S_Q = 31
SRD_A, SRD_B, SRD_WS, SRD_X = 32, 36, 40, 44
S_RB, S_CG = 100, 101
WS_FLAG = 66 << 20
WS_SIZE = 67 << 20
WS_STAMP = 200 << 20
SC = " sc1"
class Ctx:
    def __init__(self, dev, opts): self.dev = dev; self.opts = opts; self.nst = 0
    def stamp(self, b, wait=True):
        if not self.dev: return
        k = self.nst; self.nst += 1
        assert k < 14
        b(f"s_memrealtime s[88:89]\ns_memtime s[90:91]\ns_waitcnt lgkmcnt(0)\ns_mov_b32 s{60+k}, s88\ns_mov_b32 s{74+k}, s90")
    def stamp_store(self, b, pfx):
        if not self.dev: return
        b(f"""s_waitcnt lgkmcnt(0)
        s_cmp_lg_u32 s{S_W}, 0
        s_cbranch_scc1 {pfx}_nost
        s_mov_b32 s{SRD_WS+2}, {SZ['ws']}
        s_lshl_b32 s48, s2, 7
        s_add_u32 s48, s48, {WS_STAMP}
        v_mov_b32 v2, 0""")
        for k in range(self.nst):
            b(f"v_mov_b32 v3, s{60+k}\nbuffer_store_dword v3, v2, {sr(SRD_WS)}, s48 offen offset:{4*k}")
            b(f"v_mov_b32 v3, s{74+k}\nbuffer_store_dword v3, v2, {sr(SRD_WS)}, s48 offen offset:{64+4*k}")
        b(f"{pfx}_nost:")
class Fill(dict):
    def put(self, g, x):
        self.setdefault(g, []).extend([x] if isinstance(x, str) else list(x))
    def spread(self, items, lo, hi):
        n = len(items)
        for k, it in enumerate(items): self.put(lo + (k * (hi - lo)) // max(n, 1), it)
def lines(s): return [x.strip() for x in s.split("\n") if x.strip()]
```

```python
from fz_common import *
import fz_b as B
S_OFFA, S_OFFB, S_CNT, S_M0, S_CC, S_CO, T = 48, 49, 50, 51, 52, 53, 54
V_C, V_W, V_RA, V_WA, V_RB = 4, 12, 20, 22, 30
A_WF = [32, 96]; A_RF = 160; A_WT = 224
CS = {0: 65536, 1: 131072, 2: 0}
WP = [32768, 98304]
S_KVST = 58
S_WTA, S_WTB = 59, 3
def acc(r, c):
    t = r * 8 + c
    return vr(32 + 4 * t) if t < 56 else ar(4 * (t - 56))
def wf(s, ct, ks): return A_WF[s] + (ct * 2 + ks) * 4
def rf(r, ks): return A_RF + (r * 2 + ks) * 4
def rd_R(r, ks): return f"ds_read_b128 {ar(rf(r, ks))}, v{V_RA+ks} offset:{r*2048}"
def rd_W(s, ct, ks, u): return f"ds_read_b64_tr_b16 {ar(wf(s, ct, ks) + 2*u, 2)}, v{V_WA+ct} offset:{(32*ks + 4*u)*256}"
def dC(p): return f"buffer_load_dwordx4 v{V_C+p}, {sr(SRD_A)}, s{S_OFFA} offen offset:{(p&3)*1024} lds"
def dW(p): return f"buffer_load_dwordx4 v{V_W+p}, {sr(SRD_B)}, s{S_OFFB} offen offset:{(p&3)*1024} lds"
def flatC(base):
    o = []
    for p in range(8):
        if p % 4 == 0: o += [f"s_add_u32 m0, s{S_M0}, {base + (p>>2)*4096}", "s_nop 0"]
        o.append(dC(p))
    return o + [f"s_add_u32 s{S_OFFA}, s{S_OFFA}, 128"]
def flatW(base):
    o = []
    for p in range(8):
        if p % 4 == 0: o += [f"s_add_u32 m0, s{S_M0}, {base + (p>>2)*4096}", "s_nop 0"]
        o.append(dW(p))
    return o + [f"s_add_u32 s{S_OFFB}, s{S_OFFB}, {64*8192}"]

def cvt_frag(dst, s0, s1):
    return [f"v_cvt_pk_bf16_f32 v{dst}, v{s0}, v{s0+1}", f"v_cvt_pk_bf16_f32 v{dst+1}, v{s0+2}, v{s0+3}",
            f"v_cvt_pk_bf16_f32 v{dst+2}, v{s1}, v{s1+1}", f"v_cvt_pk_bf16_f32 v{dst+3}, v{s1+2}, v{s1+3}"]


def wt_loads():
    b = Blk()
    srd(b, SRD_X, 14, SZ['A_wo']); srd(b, 96, 20, SZ['B_wo'])
    b(f"""v_lshrrev_b32 v2, 4, v1
    v_lshrrev_b32 v3, 2, v1
    v_and_b32 v3, 3, v3
    v_and_b32 v0, 3, v1
    v_lshlrev_b32 v0, 3, v0
    v_lshl_add_u32 v17, v2, 2, v3
    v_mul_u32_u24 v17, 1280, v17
    v_add_u32 v17, v17, v0
    v_add_u32 v18, {16*1280}, v17
    v_lshl_add_u32 v19, v2, 3, v3
    v_mul_u32_u24 v19, 1280, v19
    v_add_u32 v19, v19, v0
    v_add_u32 v0, {4*1280}, v19
    s_and_b32 s{T}, s2, 1
    s_mul_i32 s{T}, s{T}, 20
    s_mul_i32 s{T+1}, s{S_W}, 5
    s_add_u32 s{T}, s{T}, s{T+1}
    s_lshr_b32 s{T+1}, s2, 1
    s_mul_i32 s92, s{T+1}, {32*1280}
    s_lshl_b32 s{T+2}, s{T}, 5
    s_add_u32 s92, s92, s{T+2}
    s_lshl_b32 s{S_WTA}, s{T}, 17
    s_lshl_b32 s{T+1}, s{T+1}, 10
    s_add_u32 s{S_WTA}, s{S_WTA}, s{T+1}
    s_add_u32 s{S_WTA}, s{S_WTA}, {WS_WOT}
    s_lshl_b32 s{T}, s2, 2
    s_add_u32 s{T}, s{T}, s{S_W}
    s_mul_i32 s{T+1}, s{T}, 1639
    s_lshr_b32 s{T+1}, s{T+1}, 16
    s_mul_i32 s{T+2}, s{T+1}, 40
    s_sub_u32 s{T+2}, s{T}, s{T+2}
    s_mul_i32 s{S_WTB}, s{T+2}, 20480
    s_lshl_b32 s93, s{T+1}, 10
    s_add_u32 s{S_WTB}, s{S_WTB}, s93
    s_add_u32 s{S_WTB}, s{S_WTB}, {WS_WOBT}
    s_cmp_lt_u32 s{T}, 800
    s_cselect_b32 s{S_WTB}, s{S_WTB}, {WS_SIZE}
    s_mul_i32 s93, s{T+1}, {32*1280}
    s_lshl_b32 s{T+2}, s{T+2}, 5
    s_add_u32 s93, s93, s{T+2}""")
    ld = []
    for fr in range(5):
        for u in range(2):
            ld.append(f"buffer_load_dwordx2 {ar(A_WT + 4*fr + 2*u, 2)}, v{17+u}, {sr(SRD_X)}, s92 offen offset:{fr*32}")
    ld.append(f"buffer_load_dwordx2 {ar(A_WT + 20, 2)}, v19, s[96:99], s93 offen")
    ld.append(f"buffer_load_dwordx2 {ar(A_WT + 22, 2)}, v0, s[96:99], s93 offen")
    return b.l, ld

def touch1():
    b = Blk()
    b(f"""s_lshl_b32 s{T}, s2, 2
    s_add_u32 s{T}, s{T}, s{S_W}
    v_lshlrev_b32 v0, 7, v1
    s_sub_u32 s{T+1}, s{T}, 640
    s_mov_b32 s{T+2}, {SZ['A_wq']}
    s_cmp_lt_u32 s{T}, 640
    s_cselect_b32 s{T}, s{T}, s{T+1}
    s_cselect_b32 s{SRD_X}, s8, s4
    s_cselect_b32 s{SRD_X+1}, s9, s5
    s_cselect_b32 s{SRD_X+2}, s{T+2}, {SZ['A_x']}
    s_cselect_b32 s96, s14, s20
    s_cselect_b32 s97, s15, s21
    s_cselect_b32 s98, s{T+2}, {SZ['B_wo']}
    s_mov_b32 s{SRD_X+3}, 0x20000
    s_mov_b32 s99, 0x20000
    s_lshl_b32 s{T}, s{T}, 13
    buffer_load_dword a248, v0, {sr(SRD_X)}, s{T} offen
    buffer_load_dword a249, v0, s[96:99], s{T} offen""")
    return b.l
def touch2():
    b = Blk()
    srd(b, SRD_X, 16, SZ['B_x']); srd(b, 96, 18, SZ['B_wqkv'])
    b(f"""s_lshl_b32 s{T}, s{S_Q}, 2
    s_add_u32 s{T}, s{T}, s{S_W}
    s_and_b32 s{T+1}, s2, 6
    s_mul_i32 s{T+1}, s{T+1}, {256*1280}
    s_max_u32 s{T+1}, s{T+1}, {16*1280}
    s_sub_u32 s{T+1}, s{T+1}, {16*1280}
    s_lshl_b32 s{T+2}, s{T}, 13
    s_add_u32 s{T+1}, s{T+1}, s{T+2}
    s_cmp_lt_u32 s{T}, 83
    s_cselect_b32 s{T+1}, s{T+1}, {SZ['B_x']}
    v_lshlrev_b32 v0, 7, v1
    buffer_load_dword a250, v0, {sr(SRD_X)}, s{T+1} offen
    v_mul_u32_u24 v2, 4370, v1
    v_lshrrev_b32 v2, 16, v2
    v_mul_u32_u24 v3, 15, v2
    v_sub_u32 v3, v1, v3
    v_mul_u32_u24 v0, 52, v3
    v_lshrrev_b32 v0, 8, v0
    v_mul_u32_u24 v0, 640, v0
    v_lshl_add_u32 v0, v3, 7, v0
    v_mul_u32_u24 v2, 3840, v2
    v_add_u32 v0, v0, v2
    s_and_b32 s{T+1}, s2, 1
    s_mul_i32 s{T+1}, s{T+1}, 640
    s_mul_i32 s{T+2}, s{T}, {8*3840}
    s_add_u32 s{T+1}, s{T+1}, s{T+2}
    s_add_u32 s{T+2}, s{T+1}, {4*3840}
    buffer_load_dword a251, v0, s[96:99], s{T+1} offen
    buffer_load_dword a252, v0, s[96:99], s{T+2} offen""")
    return b.l

def stage(isV, par, kind, vm=None):
    mf = []
    for r in range(8):
        for c in range(8):
            for ks in range(2):
                A, Bq = ar(rf(r, ks)), ar(wf(par, c, ks))
                mf.append(mfma16(acc(r, c), A, Bq) if isV else mfma16(acc(r, c), Bq, A))
    f = Fill()
    if kind == 'loop':
        f.put(6, ["s_waitcnt lgkmcnt(0)", "s_barrier"])
        f.put(9, f"s_add_u32 m0, s{S_M0}, {WP[par]}"); f.put(36, f"s_add_u32 m0, s{S_M0}, {WP[par] + 4096}")
        for p, g in enumerate([10, 14, 21, 27, 37, 43, 53, 59]): f.put(g, dW(p))
        f.put(61, f"s_add_u32 s{S_OFFB}, s{S_OFFB}, {64*8192}")
    for r in range(4):
        g0, g1 = (8, 12) if r == 0 else (2, 8)
        f.put(r*16 + g0, rd_R(r+4, 0)); f.put(r*16 + g1, rd_R(r+4, 1))
    if kind != 's7':
        for ct, g in enumerate([33, 35, 39, 41, 45, 47, 51, 55]): f.put(g, f"v_xor_b32 v{V_WA+ct}, 0x10000, v{V_WA+ct}")
        f.put(63, [f"s_waitcnt vmcnt({16 if kind == 'loop' else 0}) lgkmcnt(0)", "s_barrier"])
        f.put(64, [f"s_add_u32 s{S_CO}, s{S_CC}, s{S_M0}", f"s_add_u32 s{S_CC}, s{S_CC}, 0x10000"])
        f.put(65, [f"s_cmp_eq_u32 s{S_CC}, 0x30000", f"s_cselect_b32 s{S_CC}, 0, s{S_CC}"])
        f.put(69, [f"v_add_u32 v{V_RA}, s{S_CC}, v{V_RB}", f"v_add_u32 v{V_RA+1}, s{S_CC}, v{V_RB+1}"])
        for r in range(4, 8):
            base = r * 16
            reads = []
            for ct in (2*(r-4), 2*(r-4)+1):
                for ks in range(2):
                    for u in range(2): reads.append(rd_W(1-par, ct, ks, u))
            reads.insert(4, rd_R(r-4, 0)); reads.append(rd_R(r-4, 1))
            for k, g in enumerate([2, 3, 4, 6, 7, 8, 10, 11, 12, 14]): f.put(base + g, reads[k])
    if kind == 'loop':
        if par == 1: f.put(65, [f"s_cmp_eq_u32 s{S_CNT}, 1", f"s_cselect_b32 s{SRD_A+2}, 0, s{SRD_A+2}"])
        f.put(69, f"s_mov_b32 m0, s{S_CO}"); f.put(100, f"s_add_u32 m0, s{S_CO}, 4096")
        for p, g in enumerate([73, 77, 85, 93, 101, 109, 117, 125]): f.put(g, dC(p))
        f.put(127, f"s_add_u32 s{S_OFFA}, s{S_OFFA}, 128")
    if kind == 's6':
        su = B.setup_dma()
        wsu, wld = wt_loads()
        f.spread(su + wsu, 0, 62)
        for x, g in zip(wld, [65, 69, 73, 77, 79, 80, 81, 85, 89, 93, 95, 96]):
            f.put(g, x); vm.issue("wtl")
        items = B.dma_stage(0)
        gs = [97, 101, 105, 109, 111, 113, 117, 121, 123, 125, 127]
        for (pre, d), g in zip(items, gs):
            if pre: f.put(g - (1 if g not in (69,) else 1), pre)
            f.put(g, d); vm.issue(("B", 0))
    if kind == 's7':
        items = B.dma_stage(1)
        gs = [3, 5, 10, 14, 20, 26, 30, 36, 42, 46, 52]
        for (pre, d), g in zip(items, gs):
            if pre: f.put(g - 1, pre)
            f.put(g, d); vm.issue(("B", 1))
        if not isV:
            for r in range(7):
                ops = []
                for s in range(4):
                    fr = 4*r + s
                    ops += cvt_frag(32 + 4*fr, 32 + 8*fr, 36 + 8*fr)
                f.spread(ops, (r+1)*16 + 6, min((r+2)*16 + 6, 128))
        else:
            for j in range(3):
                ops = []
                for dt in range(8):
                    ops += cvt_frag(32 + 4*(8*j + dt), 32 + 64*j + 4*dt, 64 + 64*j + 4*dt)
                f.spread(ops, (2*j+2)*16 + 6, min((2*j+4)*16 + 4, 128))
        f.put(66, [f"s_waitcnt vmcnt({vm.need('wtl')}) lgkmcnt(0)", "s_barrier"])
        ra = B.setup_rd()
        f.spread(ra, 56, 92)
        wt = [f"ds_write_b64 v0, {ar(A_WT + 2*k, 2)} offset:{k*512}" for k in range(12)]
        f.spread(wt, 68, 82)
        f.put(86, "s_waitcnt lgkmcnt(0)")
        wr = [f"ds_read_b64_tr_b16 {ar(A_WT + 2*k, 2)}, v0 offset:{k*512}" for k in range(12)]
        f.spread(wr, 87, 99)
        f.put(100, [f"s_waitcnt vmcnt({vm.need(('B', 0))}) lgkmcnt(0)", "s_barrier"])
        f.spread(B.reads(0), 102, 126)
        st = []
        for k in range(5):
            st.append([f"buffer_store_dwordx4 {ar(A_WT + 4*k)}, v{B.V_L16}, {sr(SRD_WS)}, s{S_WTA} offen{SC}", f"s_add_u32 s{S_WTA}, s{S_WTA}, 131072"])
        st.append([f"buffer_store_dwordx4 {ar(A_WT + 20)}, v{B.V_L16}, {sr(SRD_WS)}, s{S_WTB} offen{SC}"])
        for x, g in zip(st, [103, 107, 111, 115, 119, 123]):
            f.put(g, x); vm.issue("wt")
    return interleave(mf, f)

def post(isV):
    b = Blk()
    b("s_nop 5")
    for q in range(32): b(f"v_accvgpr_read_b32 v{192+q}, a{q}")
    if not isV:
        for s in range(4): b.ext(cvt_frag(32 + 4*(28 + s), 192 + 8*s, 196 + 8*s))
    else:
        for dt in range(8): b.ext(cvt_frag(32 + 4*(24 + dt), 224 + 4*dt, 192 + 4*dt))
    return b.l

def prologue(cx, b, vm):
    b("s_cmp_ge_u32 s2, 256\ns_cbranch_scc1 L_end")
    cx.stamp(b, wait=False)
    b("s_load_dwordx16 s[4:19], s[0:1], 0\ns_load_dwordx8 s[20:27], s[0:1], 64")
    b(f"""v_and_b32 v1, 63, v0
    v_lshrrev_b32 v2, 6, v0
    s_and_b32 s{T}, s2, 7
    v_readfirstlane_b32 s{S_W}, v2
    s_lshl_b32 s{S_H}, s{T}, 2
    s_lshr_b32 s{S_Q}, s2, 3
    s_and_b32 s{T+1}, s{S_Q}, 3
    s_add_u32 s{S_H}, s{S_H}, s{T+1}
    s_lshr_b32 s{S_RT}, s2, 5
    s_lshl_b32 s{S_M0}, s{S_W}, 13
    s_mov_b32 s{S_OFFA}, 0
    s_mov_b32 s{S_OFFB}, 0""")
    b(f"""s_lshl_b32 s{T}, s{S_RT}, 8
    s_lshl_b32 s{T+1}, s{S_W}, 6
    s_add_u32 s{T}, s{T}, s{T+1}
    v_lshrrev_b32 v2, 3, v1
    v_add_u32 v2, s{T}, v2
    v_lshlrev_b32 v2, 10, v2
    v_lshrrev_b32 v3, 4, v1
    v_and_b32 v30, 7, v1
    v_xor_b32 v3, v3, v30
    v_lshl_add_u32 v30, v3, 4, v2
    v_xor_b32 v3, 4, v3
    v_lshl_add_u32 v31, v3, 4, v2""")
    for p in range(8): b(f"v_add_u32 v{V_C+p}, {p*8192 - (p&3)*1024}, v{30 + (p&1)}")
    b(f"""s_and_b32 s{T}, s{S_W}, 1
    s_lshl_b32 s{T}, s{T}, 18
    s_lshl_b32 s{T+1}, s{S_H}, 8
    s_add_u32 s{T}, s{T}, s{T+1}
    v_lshrrev_b32 v2, 4, v1
    v_lshlrev_b32 v3, 2, v2
    v_lshlrev_b32 v2, 13, v2
    v_add_u32 v2, s{T}, v2
    v_and_b32 v30, 15, v1
    v_xor_b32 v3, v3, v30
    v_lshl_add_u32 v30, v3, 4, v2
    v_xor_b32 v3, 2, v3
    v_lshl_add_u32 v31, v3, 4, v2""")
    for p in range(8): b(f"v_add_u32 v{V_W+p}, {p*4*8192 - (p&3)*1024}, v{30 + ((p>>1)&1)}")
    b("s_waitcnt lgkmcnt(0)")
    srd(b, SRD_A, 6, SZ['A_c'])
    b(f"""s_cmp_lt_u32 s{S_W}, 2
    s_cselect_b32 s{SRD_B}, s10, s12
    s_cselect_b32 s{SRD_B+1}, s11, s13
    s_mov_b32 s{SRD_B+2}, {SZ['A_wuk']}
    s_mov_b32 s{SRD_B+3}, 0x20000""")
    b.ext(flatW(WP[0])); b.ext(flatC(CS[0]))
    for _ in range(16): vm.issue("s0")
    wsb = cx.opts.get("wsb", 0)
    if wsb: b(f"s_add_u32 s26, s26, {wsb << 20}\ns_addc_u32 s27, s27, 0")
    srd(b, SRD_WS, 26, WS_SIZE)
    b.ext(flatC(CS[1])); b.ext(flatW(WP[1])); b.ext(flatC(CS[2]))
    for _ in range(24): vm.issue("s1")
    b(f"""s_lshl_b32 s{T}, s{S_RT}, 7
    s_lshl_b32 s{T+1}, s{S_H}, 2
    s_add_u32 s{T}, s{T}, s{T+1}
    s_add_u32 s{T}, s{T}, {WS_FLAG}
    v_mov_b32 v2, 0
    s_mov_b64 exec, 1
    buffer_store_dword v2, v2, {sr(SRD_WS)}, s{T} offen{SC}
    s_mov_b64 exec, -1""")
    vm.issue("flagclr")
    b(f"""s_and_b32 s{T}, s2, 7
    s_lshr_b32 s{T+1}, s{T}, 1
    s_lshl_b32 s{T+1}, s{T+1}, 3
    s_and_b32 s{S_RB}, s{S_Q}, 7
    s_add_u32 s{S_RB}, s{S_RB}, s{T+1}
    s_and_b32 s{T}, s{T}, 1
    s_lshl_b32 s{T}, s{T}, 2
    s_lshr_b32 s{S_CG}, s{S_Q}, 3
    s_add_u32 s{S_CG}, s{S_CG}, s{T}""")
    b(f"""s_mul_i32 s{S_KVST}, s{S_H}, {KV_HS}
    s_lshl_b32 s{T+1}, s{S_RT}, 17
    s_add_u32 s{S_KVST}, s{S_KVST}, s{T+1}
    s_lshr_b32 s{T+1}, s{S_W}, 1
    s_lshl_b32 s{T+1}, s{T+1}, 16
    s_add_u32 s{S_KVST}, s{S_KVST}, s{T+1}
    s_and_b32 s{T+1}, s{S_W}, 1
    s_mul_i32 s{T+1}, s{T+1}, {32768 + 2048}
    s_add_u32 s{S_KVST}, s{S_KVST}, s{T+1}""")
    b(f"""s_lshr_b32 s{T}, s{S_W}, 1
    s_lshl_b32 s{T}, s{T}, 14
    v_and_b32 v2, 15, v1
    v_lshrrev_b32 v3, 1, v2
    v_lshlrev_b32 v2, 7, v2
    v_add_u32 v2, s{T}, v2
    v_lshrrev_b32 v0, 4, v1
    v_xor_b32 v3, v3, v0
    v_lshl_add_u32 v{V_RB}, v3, 4, v2
    v_xor_b32 v3, 4, v3
    v_lshl_add_u32 v{V_RB+1}, v3, 4, v2
    s_mov_b32 s{S_CC}, {CS[0]}
    v_add_u32 v{V_RA}, {CS[0]}, v{V_RB}
    v_add_u32 v{V_RA+1}, {CS[0]}, v{V_RB+1}
    s_and_b32 s{T}, s{S_W}, 1
    s_lshl_b32 s{T}, s{T}, 14
    s_add_u32 s{T}, s{T}, {WP[0]}
    v_lshrrev_b32 v2, 4, v1
    v_lshrrev_b32 v3, 2, v1
    v_and_b32 v3, 3, v3
    v_lshl_add_u32 v0, v2, 3, v3
    v_lshlrev_b32 v0, 8, v0
    v_add_u32 v0, s{T}, v0
    v_and_b32 v32, 1, v1
    v_lshl_add_u32 v0, v32, 3, v0
    v_and_b32 v2, 1, v2
    v_lshlrev_b32 v2, 1, v2
    v_lshl_or_b32 v2, v3, 2, v2
    v_lshrrev_b32 v3, 1, v1
    v_and_b32 v3, 1, v3
    v_xor_b32 v2, v2, v3""")
    for ct in range(8): b(f"v_xor_b32 v3, {2*ct}, v2\nv_lshl_add_u32 v{V_WA+ct}, v3, 4, v0")
    for r in range(32, 256): b(f"v_mov_b32 v{r}, 0")
    for q in range(32): b(f"v_accvgpr_write_b32 a{q}, 0")
    b(f"s_waitcnt vmcnt({vm.need('s0')})\ns_barrier")
    for ct in range(8):
        for ks in range(2):
            for u in range(2): b(rd_W(0, ct, ks, u))
    for r in range(4):
        for ks in range(2): b(rd_R(r, ks))
    b(f"s_mov_b32 s{S_CNT}, 3")
    cx.stamp(b, wait=False)
    b(f"s_waitcnt lgkmcnt(0)\ns_bitcmp1_b32 s{S_W}, 0\ns_cbranch_scc1 LKV_V")

def build(cx, b, ool):
    pro = Blk(); vm0 = VM()
    prologue(cx, pro, vm0)
    b.ext(pro)
    tr = []
    for isV in (False, True):
        nm = "V" if isV else "K"
        vm = VM()
        body = loop_waits(stage(isV, 0, 'loop') + stage(isV, 1, 'loop') + [f"s_sub_u32 s{S_CNT}, s{S_CNT}, 1", f"s_cmp_lg_u32 s{S_CNT}, 0", f"s_cbranch_scc1 LKV_{nm}T"])
        t1 = touch1() if "notouch" not in cx.opts else []; t2 = touch2() if "notouch" not in cx.opts else []
        ool(f"LKV_{nm}T:\ns_cmp_eq_u32 s{S_CNT}, 1\ns_cbranch_scc1 LKV_{nm}T2")
        ool.ext(t1); ool(f"s_branch LKV_{nm}\nLKV_{nm}T2:"); ool.ext(t2); ool(f"s_branch LKV_{nm}")
        tail = add_lgkm_waits(stage(isV, 0, 's6', vm) + stage(isV, 1, 's7', vm), body) + post(isV)
        b(f".p2align 6\nLKV_{nm}:")
        b.ext(body); b.ext(tail)
        if not isV: b("s_branch LKV_done")
        tr.append(pro.l + body + t1 + body + t2 + body + tail)
    b("LKV_done:")
    return tr, vm
```

```python
from fz_common import *
import fz_a as A
T = 54
S_OA, S_OB_ = 48, 49
SRD_O = SRD_X
RING = 6
ACC_A, ACC_B = 32, 112
LD = " sc1"
def build(cx, b, ool):
    b(f"""v_lshlrev_b32 v3, 4, v1
    v_mov_b32 v22, 128
    global_load_dword v23, v22, s[24:25] sc1
    s_mul_i32 s{T+2}, s{S_RB}, {4*20480}
    s_add_u32 s{T+2}, s{T+2}, {WS_OB}
    s_mul_i32 s{T+3}, s{S_CG}, {5*20480}
    s_add_u32 s{T+3}, s{T+3}, {WS_WOBT}
    v_add_u32 v13, s{T+2}, v3
    v_add_u32 v17, s{T+3}, v3""")
    for i in range(1, 4): b(f"v_add_u32 v{13+i}, {i*20480}, v13")
    for j in range(1, 5): b(f"v_add_u32 v{17+j}, {j*20480}, v17")
    b(f"""s_lshl_b32 s{T+2}, s{S_RB}, 19
    s_add_u32 s{T+2}, s{T+2}, {WS_CTX}
    s_mul_i32 s{T+3}, s{S_CG}, {5*131072}
    s_add_u32 s{T+3}, s{T+3}, {WS_WOT}
    v_add_u32 v4, s{T+2}, v3
    v_add_u32 v8, s{T+3}, v3""")
    for i in range(1, 4): b(f"v_add_u32 v{4+i}, {i*131072}, v4")
    for j in range(1, 5): b(f"v_add_u32 v{8+j}, {j*131072}, v8")
    b(f"""s_lshl_b32 s{S_OA}, s{S_W}, 15
    s_mul_i32 s{S_OB_}, s{S_W}, 5120""")
    srd(b, SRD_O, 22, SZ['out'])
    b(f"""s_lshl_b32 s{T}, s{S_RT}, 7
    s_lshl_b32 s{T+1}, s{S_H}, 2
    s_add_u32 s{T}, s{T}, s{T+1}
    s_add_u32 s{T}, s{T}, {WS_FLAG}
    v_mov_b32 v24, 1
    v_mov_b32 v25, 0
    s_waitcnt vmcnt(0)
    s_barrier
    s_cmp_lg_u32 s{S_W}, 0
    s_cbranch_scc1 LO_nf
    s_mov_b64 exec, 1
    buffer_store_dword v24, v25, {sr(SRD_WS)}, s{T} offen{SC}
    s_mov_b64 exec, -1
    LO_nf:
    v_readfirstlane_b32 s{T}, v23
    s_nop 0
    s_cmp_lg_u32 s{T}, 256
    s_cbranch_scc1 LO_spin
    LO_spin_ret:""")
    ool.ext(A.spin("LO_spin", 22, 23, 256, T))
    cx.stamp(b)
    vm = VM()
    steps = [("B", k) for k in range(5)] + [("A", k) for k in range(32)]
    def loads(n):
        kind, k = steps[n]
        r = (n % RING) * 36
        out = []
        if kind == "B":
            if k == 4: out.append(f"s_add_u32 s{S_OB_}, s{S_OB_}, 4096")
            vb, so = 13, S_OB_
        else:
            if k % 4 == 0 and k: out.append(f"s_add_u32 s{S_OA}, s{S_OA}, 4096")
            vb, so = 4, S_OA
        for q in [4, 0, 1, 2, 3, 5, 6, 7, 8]:
            out.append(f"buffer_load_dwordx4 {ar(r + 4*q)}, v{vb+q}, {sr(SRD_WS)}, s{so} offen offset:{(k%4)*1024}{LD}")
        return out
    for n in range(RING - 1):
        for l in loads(n):
            b(l)
            if l.startswith("buffer"): vm.issue(n)
    b(f"""s_lshr_b32 s{T}, s{S_RB}, 1
    s_sub_u32 s{T+1}, 15, s{T}
    s_min_u32 s{T}, s{T}, s{T+1}
    s_lshl_b32 s{T}, s{T}, 7
    s_add_u32 s{T}, s{T}, {WS_FLAG}
    v_and_b32 v22, 31, v1
    v_lshlrev_b32 v22, 2, v22
    s_mov_b32 s{T+1}, 0x100000
    LO_fl:
    buffer_load_dword v23, v22, {sr(SRD_WS)}, s{T} offen sc1
    s_sub_u32 s{T+1}, s{T+1}, 1
    s_cmp_eq_u32 s{T+1}, 0
    s_cbranch_scc1 LO_fd
    s_waitcnt vmcnt(0)
    v_cmp_ne_u32 vcc, 1, v23
    s_nop 1
    s_cbranch_vccz LO_fd
    s_sleep 1
    s_branch LO_fl
    LO_fd:
    s_waitcnt vmcnt(0)""")
    vm.ops = []
    cx.stamp(b)
    for n in range(len(steps)):
        kind, k = steps[n]
        r = (n % RING) * 36
        acc = ACC_B if kind == "B" else ACC_A
        mf = []
        for j in range(5):
            for i in range(4):
                d = vr(acc + (i*5 + j)*4)
                mf.append(mfma16(d, ar(r + 16 + 4*j), ar(r + 4*i), d if k else "0"))
        f = Fill()
        if n in vm.ops: b(f"s_waitcnt vmcnt({vm.need(n)})")
        if n + RING - 1 < len(steps):
            g = 0
            for l in loads(n + RING - 1):
                f.put(g, l)
                if l.startswith("buffer"): vm.issue(n + RING - 1); g += 2
        b.ext(interleave(mf, f))
    cx.stamp(b)
    b(f"""s_mul_i32 s{T+2}, s{S_W}, 40960
    v_add_u32 v4, s{T+2}, v3
    s_mul_i32 s{T+2}, s{S_W}, 5120
    v_add_u32 v9, s{T+2}, v3
    v_add_u32 v10, {40960}, v9
    v_add_u32 v11, {2*40960}, v9
    v_add_u32 v12, {3*40960}, v9""")
    for t in range(20): b(f"ds_write_b128 v4, {vr(ACC_B + 4*t)} offset:{(20+t)*1024}")
    for t in range(20): b(f"ds_write_b128 v4, {vr(ACC_A + 4*t)} offset:{t*1024}")
    b(f"""s_lshl_b32 s{T+2}, s{S_RB}, 6
    s_lshl_b32 s{T+3}, s{S_W}, 4
    s_add_u32 s{T+2}, s{T+2}, s{T+3}
    v_and_b32 v7, 15, v1
    v_add_u32 v7, s{T+2}, v7
    v_mul_u32_u24 v7, 2560, v7
    v_lshrrev_b32 v8, 4, v1
    v_lshl_add_u32 v7, v8, 3, v7
    s_mul_i32 s{T+2}, s{S_CG}, 160
    s_waitcnt lgkmcnt(0)
    s_barrier""")
    code = []
    for part in range(2):
        for j in range(5):
            for c in range(4):
                r = 32 + ((part*5 + j)*4 + c)*4
                code.append(f"ds_read_b128 {vr(r)}, v{9 + c} offset:{part*20480 + j*1024}")
    for part in range(2):
        for j in range(5):
            r = 32 + (part*5 + j)*16
            for q in range(0, 4, 2):
                code.append(f"v_pk_add_f32 v[{r+q}:{r+q+1}], v[{r+q}:{r+q+1}], v[{r+4+q}:{r+5+q}]")
                code.append(f"v_pk_add_f32 v[{r+8+q}:{r+9+q}], v[{r+8+q}:{r+9+q}], v[{r+12+q}:{r+13+q}]")
            for q in range(0, 4, 2):
                code.append(f"v_pk_add_f32 v[{r+q}:{r+q+1}], v[{r+q}:{r+q+1}], v[{r+8+q}:{r+9+q}]")
            code.append(f"v_cvt_pk_bf16_f32 v{r}, v{r}, v{r+1}")
            code.append(f"v_cvt_pk_bf16_f32 v{r+1}, v{r+2}, v{r+3}")
            code.append(f"buffer_store_dwordx2 v[{r}:{r+1}], v7, {sr(SRD_O)}, s{T+2} offen offset:{part*1280 + j*32}")
    b.ext(add_lgkm_waits(code))
```

```python
import sys
from fz_common import *
import fz_kv as KV, fz_b as B, fz_a as A, fz_o as O
from lint import lint
HDR = open("cdna_kernels/" + NAME + ".s.ref").read().split("; Override launch")[0]
def build(dev=False, opts=None):
    cx = Ctx(dev, opts or {})
    lab = NAME + "_kernel"
    b = Blk(); ool = Blk()
    b(f"{lab}:")
    trs, vm = KV.build(cx, b, ool)
    mid = Blk()
    cx.stamp(mid)
    B.gemm(cx, mid, vm, B.reads(0), A.q_setup(), A.touch3() if 'notouch' not in cx.opts else None)
    cx.stamp(mid)
    mid(f"s_lshl_b32 s54, s{S_H}, 2\ns_waitcnt vmcnt(0)\ns_barrier")
    cx.stamp(mid)
    vm.ops = []
    B.signal(mid, 54, "LB_sig")
    A.q_pre(mid, vm)
    B.result_write(mid)
    cx.stamp(mid)
    B.local(mid, vm)
    A.qproj(cx, mid, vm, ool)
    A.attn_prologue(mid)
    cx.stamp(mid)
    b.ext(mid)
    trace = A.build_attn(cx, b)
    fin = Blk(); A.finalize(fin)
    O.build(cx, fin, ool)
    if dev: fin("s_waitcnt vmcnt(0)")
    cx.stamp(fin)
    cx.stamp_store(fin, "LF")
    fin("L_end:\ns_endpgm")
    b.ext(fin); b.ext(ool)
    out = [HDR.rstrip(), "; @launch grid=(256,1,1) block=(256,1,1) lds=163840",
           '.amdgcn_target "amdgcn-amd-amdhsa--gfx950"\n.text', f".globl {lab}\n.p2align 8\n.type {lab},@function", b.text(),
           '.section .rodata,"a"\n.p2align 6\n' + kdesc(lab, 512, 256)]
    nerr = 0
    for k, (i, w) in enumerate(((0, 0), (0, 1), (1, 2), (7, 3), (7, 2), (3, 0))):
        e = lint(trs[k & 1] + mid.l + trace(i, w) + fin.l, f"t{i}{w}")
        for x in e[:12]: print("LINT", x, file=sys.stderr)
        nerr += len(e)
    return "\n".join(out) + "\n", nerr
if __name__ == "__main__":
    opts = {}
    for a in sys.argv[2:]:
        if "=" in a: k, v = a.split("="); opts[k] = int(v)
        else: opts[a] = True
    txt, nerr = build("dev" in opts, opts)
    if "nosc" in opts: txt = "\n".join((l.replace(" sc1", "") if "buffer_store_dwordx" in l else l) for l in txt.split("\n"))
    if "nt" in opts: txt = "\n".join((l.replace(" sc1", " sc1 nt") if "buffer_store_dwordx" in l else l) for l in txt.split("\n"))
    if "sc01" in opts: txt = "\n".join((l.replace(" sc1", " sc0 sc1") if "buffer_store_dwordx" in l else l) for l in txt.split("\n"))
    if "noinv" in opts: txt = txt.replace("buffer_inv sc1", "s_nop 0")
    if "nokvst" in opts: txt = "\n".join(("  s_nop 0" if ("buffer_store_dwordx4 v[" in l and "s53 offen" in l) else l) for l in txt.split("\n"))
    if "not3" in opts: txt = "\n".join(("  s_nop 0" if ("buffer_load_dword a2" in l and ("v240" in l or "v241" in l)) else l) for l in txt.split("\n"))
    open(sys.argv[1], "w").write(txt)
    print("lint errors:", nerr, "lines", txt.count("\n"))
```

```python
from g_common import *
import g_b as B
S_N, S_EV, S_A, S_A0, S_SRC, S_T, S_C = 48, 49, 50, 51, 53, 54, 58
S_MASK = 92
S_NEG = 57
V_L16, V_P = 4, 5
OA, OB, LA, LB, SX, SY, PX, PY, CA, CB = 16, 80, 144, 152, 160, 176, 192, 200, 208, 224
VT = 240
QA, QB, KF, VF, ONES = 0, 32, 64, 96, 128
XR = 132
LQ = 98304
V_WA, V_WQ = 144, 244
CSCALE = (128 ** -0.5) * 1.4426950408889634
import struct
def f2u(x): return struct.unpack("<I", struct.pack("<f", x))[0]

def koff(f): return (f >> 1) * 4096 + (f & 1) * 1024
def rdK(f): return f"ds_read_b128 {ar(KF + 4*f)}, v{V_P} offset:{koff(f)}"
def rdV(f): return f"ds_read_b128 {ar(VF + 4*f)}, v{V_P} offset:{koff(f) + 2048}"
def dma_blk():
    return ([f"s_and_b32 m0, s{S_SRC}, 0x1ffff"],
            [f"buffer_load_dwordx4 v{V_L16}, {sr(SRD_WS)}, s{S_SRC} offen offset:{p*1024} sc1 lds" for p in range(4)],
            [f"s_add_u32 s{S_SRC}, s{S_SRC}, 16384"])
ADV = [f"v_add_u32 v{V_P}, 0x4000, v{V_P}", f"v_and_b32 v{V_P}, 0x1ffff, v{V_P}"]

def qk(S, Q, C, czero=False):
    m = []
    for ks in range(2):
        for qs in range(2):
            d = vr(S + (qs*2 + ks)*4)
            for s in range(4):
                c = d if s else ("0" if czero else vr(C + (qs*2 + ks)*4))
                m.append(mfma16(d, ar(KF + (ks*4 + s)*4), ar(Q + (qs*4 + s)*4), c))
    return m
def pv(O, L, P):
    m = []
    for dt in range(8):
        for qs in range(2):
            m.append(mfma16(vr(O + (qs*8 + dt)*4), ar(VF + 4*dt), vr(P + 4*qs)))
    for qs in range(2):
        m.append(mfma16(vr(L + 4*qs), ar(ONES), vr(P + 4*qs)))
    return m
def softmax_ops(S, P):
    order = []
    for ks in range(2):
        for qs in range(2):
            for j in range(4): order.append((qs, ks, j))
    exps = [f"v_exp_f32 v{S+(qs*2+ks)*4+j}, v{S+(qs*2+ks)*4+j}" for qs, ks, j in order]
    cvts = []
    for k in range(8):
        qs, ks, j = order[2*k]
        r = S + (qs*2 + ks)*4 + j
        cvts.append(f"v_cvt_pk_bf16_f32 v{P + 4*qs + 2*ks + j//2}, v{r}, v{r+1}")
    return exps, cvts

def half(fill, base, S, P, K, V, vmw, dma, adv_first, adv_mid):
    e, c = softmax_ops(S, P)
    put = lambda g, x: fill.put(base + g, x)
    for k in range(16): put(2*k, e[k])
    if adv_first: put(1, ADV[0]); put(3, ADV[1])
    for k, g in enumerate([5, 7, 7, 9, 13, 15, 15, 17]):
        if K: put(g, K[k])
    if vmw is not None: put(11, [f"s_waitcnt vmcnt({vmw}) lgkmcnt({4 if K else 0})", "s_barrier"])
    if adv_mid: put(17, ADV[0]); put(19, ADV[1])
    for k, g in enumerate([19, 21, 23, 25, 27, 29, 31, 32]):
        if V: put(g, V[k])
    for k, g in enumerate([5, 9, 13, 17, 21, 25, 29, 33]): put(g, c[k])
    if dma:
        pre, d, post = dma_blk()
        put(12 if not K else 16, pre[0])
        for g, x in zip([19, 23, 27, 31] if K else [15, 19, 23, 27], d): put(g, x)
        put(32, post[0])

V_AUX, SRD_AUX, S_AUX, S_AUXS = 12, 44, 57, 38
A_SV = 160
AUX = True
NX30 = 0
def body(mode, nb, last=False):
    QX = QA if mode == "S" else QB
    CX = CA if mode == "S" else CB
    OX, LX = (OA, LA) if mode in "ST" else (OB, LB)
    mf = qk(SX, QX, CX) + pv(OX, LX, PX) + qk(SY, QB, CB) + pv(OB, LB, PY)
    fill = Fill()
    K = [rdK(f) for f in range(8)]; V = [rdV(f) for f in range(8)]
    if nb == 1: w0, w1 = None, 4
    elif nb == 2: w0, w1 = (4 if mode == "S" else 8), 8
    else:
        w0, w1 = (5, 3) if not last else (63, 63)
        for g in (3, 21, 37, 55):
            fill.put(g, [f"buffer_load_dword a251, v{V_AUX}, {sr(SRD_AUX)}, s{S_AUX} offen"])
            fill.put(g + 4, [f"s_add_u32 s{S_AUX}, s{S_AUX}, s{S_AUXS}"])
    if mode == "S":
        half(fill, 0, SY, PY, [], [], w0, nb >= 1, False, False)
        half(fill, 34, SX, PX, K, V, w1, nb == 2, False, True)
    else:
        half(fill, 0, SY, PY, K, V, w0, nb >= 1, mode == "O", False)
        half(fill, 34, SX, PX, K, V, w1, nb == 2, True, False)
    fill.put(33, f"s_add_u32 s{S_N}, s{S_N}, 1")
    if mode != "S": fill.put(33, "s_waitcnt lgkmcnt(8)")
    fill.put(66, f"s_cmp_lg_u32 s{S_N}, s{S_EV}")
    fill.put(67, "s_waitcnt lgkmcnt(8)")
    return interleave(mf, fill)

def mask_c(b, C, src):
    for j in range(4):
        b(f"v_cndmask_b32 v{C+j}, v{src[0]}, v{VT+15}, {sr(S_MASK+2*j, 2)}")
        b(f"v_cndmask_b32 v{C+12+j}, v{src[1]}, v{VT+15}, {sr(S_MASK+2*j, 2)}")
        b(f"v_mov_b32 v{C+4+j}, v{VT+15}")

LSCR = 131072
WT_V = [8, 9, 10, 11, 13, 14]
S_WTA, S_WTB, A_WT, T = 52, 3, 204, 54
S_WO1, S_WO2 = 58, 59
SRD_Y = SRD_A
S_EVM = 36
def early(d=56, t=(2, 3, 0)):
    b = Blk()
    a, c, e = t
    b(f"s_mul_i32 s3, s{S_W}, 320\nv_add_u32 v{a}, s3, v1")
    for p in range(5):
        b(f"""v_add_u32 v{c}, {64*p}, v{a}
        v_mul_u32_u24 v{d}, 1639, v{c}
        v_lshrrev_b32 v{d}, 16, v{d}
        v_mul_u32_u24 v{d}, {1280 - 640}, v{d}
        v_lshl_add_u32 v{d}, v{c}, 4, v{d}
        v_accvgpr_write_b32 a{A_SV+p}, v{d}""")
    b(f"""s_lshl_b32 s3, s{S_W}, 3
    v_lshrrev_b32 v{a}, 3, v1
    v_add_u32 v{a}, s3, v{a}
    v_mul_u32_u24 v{a}, 1280, v{a}
    v_and_b32 v{c}, 7, v1
    v_lshl_add_u32 v{d}, v{c}, 4, v{a}
    v_accvgpr_write_b32 a{A_SV+5}, v{d}
    v_lshrrev_b32 v{a}, 4, v1
    v_lshrrev_b32 v{c}, 2, v1
    v_and_b32 v{c}, 3, v{c}
    v_and_b32 v{e}, 3, v1
    v_lshlrev_b32 v{e}, 3, v{e}
    v_lshl_add_u32 v{d}, v{a}, 2, v{c}
    v_mul_u32_u24 v{d}, 640, v{d}
    s_mul_i32 s3, s{S_W}, 160
    s_add_u32 s3, s3, {LSCR}
    v_add3_u32 v{d}, v{d}, v{e}, s3
    v_accvgpr_write_b32 a{A_SV+6}, v{d}
    v_lshl_add_u32 v{d}, v{a}, 3, v{c}
    v_lshlrev_b32 v{d}, 7, v{d}
    s_lshl_b32 s3, s{S_W}, 5
    s_add_u32 s3, s3, {LSCR + 20480}
    v_add3_u32 v{d}, v{d}, v{e}, s3
    v_accvgpr_write_b32 a{A_SV+7}, v{d}
    v_mul_u32_u24 v{a}, 52, v1
    v_lshrrev_b32 v{a}, 8, v{a}
    v_mul_u32_u24 v{a}, 640, v{a}
    s_min_u32 s3, s{S_W}, 1
    v_mul_u32_u24 v{a}, s3, v{a}
    v_lshl_add_u32 v{d}, v1, 7, v{a}
    s_mul_i32 s3, s3, 6
    s_sub_u32 s3, 21, s3
    v_cmp_gt_u32 vcc, s3, v1
    v_mov_b32 v{a}, 0x40000000
    s_nop 0
    v_cndmask_b32 v{d}, v{a}, v{d}, vcc
    v_accvgpr_write_b32 a{A_SV+8}, v{d}""")
    return b.l

def wt1(b):
    srd(b, SRD_A, 14, SZ['A_wo'])
    for p in range(6): b(f"v_accvgpr_read_b32 v{WT_V[p]}, a{A_SV+p}")
    b(f"""s_and_b32 s{T}, s2, 1
    s_lshr_b32 s{T+1}, s2, 1
    s_mul_i32 s{S_WO1}, s{T+1}, {32*1280}
    s_mul_i32 s{T}, s{T}, 640
    s_add_u32 s{S_WO1}, s{S_WO1}, s{T}
    s_mul_i32 s{T}, s{S_W}, 5120""")
    for p in range(5):
        b(f"s_add_u32 m0, s{T}, {LSCR + p*1024}\ns_nop 0\nbuffer_load_dwordx4 v{WT_V[p]}, {sr(SRD_A)}, s{S_WO1} offen nt lds")
    b(f"""s_mul_i32 s{T+1}, s2, 205
    s_lshr_b32 s{T+1}, s{T+1}, 11
    s_mul_i32 s{T+2}, s{T+1}, {32*1280 - 1280}
    s_lshl_b32 s{T}, s2, 7
    s_add_u32 s{S_WO2}, s{T+2}, s{T}
    s_mov_b32 s{SRD_A}, s20
    s_mov_b32 s{SRD_A+1}, s21
    s_mov_b32 s{SRD_A+2}, {SZ['B_wo']}
    s_lshl_b32 s{T}, s{S_W}, 10
    s_add_u32 m0, s{T}, {LSCR + 20480}
    s_nop 0
    buffer_load_dwordx4 v{WT_V[5]}, {sr(SRD_A)}, s{S_WO2} offen nt lds""")
S_WS1, S_WS2 = 58, 59
def wt2(b):
    b(f"v_accvgpr_read_b32 v10, a{A_SV+6}\nv_accvgpr_read_b32 v11, a{A_SV+7}")
    for fr in range(5):
        for u in range(2): b(f"ds_read_b64_tr_b16 {ar(A_WT + 4*fr + 2*u, 2)}, v10 offset:{fr*32 + u*10240}")
    for u in range(2): b(f"ds_read_b64_tr_b16 {ar(A_WT + 20 + 2*u, 2)}, v11 offset:{u*512}")
    b(f"""s_and_b32 s{T}, s2, 1
    s_mul_i32 s{T}, s{T}, 20
    s_mul_i32 s{T+2}, s{S_W}, 5
    s_add_u32 s{T}, s{T}, s{T+2}
    s_lshl_b32 s{S_WS1}, s{T}, 17
    s_lshr_b32 s{T+1}, s2, 1
    s_lshl_b32 s{T+1}, s{T+1}, 10
    s_add_u32 s{S_WS1}, s{S_WS1}, s{T+1}
    s_add_u32 s{S_WS1}, s{S_WS1}, {WS_WOT}
    s_mul_i32 s{T+1}, s2, 205
    s_lshr_b32 s{T+1}, s{T+1}, 11
    s_mul_i32 s{T+2}, s{T+1}, 10
    s_sub_u32 s{T+2}, s2, s{T+2}
    s_lshl_b32 s{T+2}, s{T+2}, 2
    s_add_u32 s{T+2}, s{T+2}, s{S_W}
    s_mul_i32 s{S_WS2}, s{T+2}, 20480
    s_lshl_b32 s{T+1}, s{T+1}, 10
    s_add_u32 s{S_WS2}, s{S_WS2}, s{T+1}
    s_add_u32 s{S_WS2}, s{S_WS2}, {WS_WOBT}
    s_cmp_lt_u32 s2, 200
    s_cselect_b32 s{S_WS2}, s{S_WS2}, {WS_SIZE}""")
def wt_stores():
    st = [([f"s_add_u32 s{S_WS1}, s{S_WS1}, 131072"] if k else [], f"buffer_store_dwordx4 {ar(A_WT + 4*k)}, v{V_L16}, {sr(SRD_WS)}, s{S_WS1} offen{SC}", "wt") for k in range(5)]
    return st + [([], f"buffer_store_dwordx4 {ar(A_WT + 20)}, v{V_L16}, {sr(SRD_WS)}, s{S_WS2} offen{SC}", "wt")]
def aux_on(b):
    b(f"""s_and_b32 s{T+1}, s2, 6
    s_mul_i32 s{T+1}, s{T+1}, {256*1280}
    s_max_u32 s{T+1}, s{T+1}, {16*1280}
    s_sub_u32 s{T+1}, s{T+1}, {16*1280}
    s_mul_i32 s{T}, s{S_Q}, {168*128}
    s_add_u32 s{T+1}, s{T+1}, s{T}
    s_mul_i32 s{T}, s{S_Q}, 3
    s_add_u32 s{T}, s{T}, s{S_W}
    s_sub_u32 s{T}, s{T}, 1
    s_mul_i32 s{T}, s{T}, {7*3840}
    s_and_b32 s{T+2}, s2, 1
    s_mul_i32 s{T+2}, s{T+2}, 640
    s_add_u32 s{T}, s{T}, s{T+2}
    s_mov_b32 s{T+2}, {SZ['B_x']}
    s_mov_b32 s{S_AUXS}, 3840
    s_cmp_eq_u32 s{S_W}, 0
    s_cselect_b32 s{S_AUX}, s{T+1}, s{T}
    s_cselect_b32 s{SRD_AUX+2}, s{T+2}, {SZ['B_wqkv']}
    s_cselect_b32 s{S_AUXS}, {21*128}, s{S_AUXS}""")

def attn_prologue(b):
    T = S_T
    b(f"""s_lshl_b32 s{S_A0}, s{S_RT}, 2
    s_add_u32 s{S_A}, s{S_A0}, s{S_W}
    v_lshlrev_b32 v{V_L16}, 4, v1
    v_lshrrev_b32 v2, 4, v1
    v_lshlrev_b32 v2, 2, v2
    v_and_b32 v3, 15, v1
    v_mov_b32 v{VT+15}, 0xf149f2ca
    v_mov_b32 v{V_P}, v{V_L16}
    v_mov_b32 v6, 0x3f803f80""")
    for j in range(4):
        b(f"v_add_u32 v7, {j}, v2\nv_cmp_gt_u32 {sr(S_MASK+2*j, 2)}, v7, v3\nv_accvgpr_write_b32 a{ONES+j}, v6")
    wt1(b)
    b("s_waitcnt vmcnt(14)\ns_barrier")
    for f in range(8): b(rdK(f))
    for r in range(CA, CA+16): b(f"v_mov_b32 v{r}, 0")
    b(f"v_mov_b32 v6, 0\ns_cmp_lg_u32 s{S_A}, 0\ns_cbranch_scc1 LA_nomask0")
    mask_c(b, CA, [6, 6])
    b("LA_nomask0:")
    b("s_waitcnt lgkmcnt(0)")
    b.ext(qk(SX, QA, CA)); b.ext(qk(SY, QB, 0, czero=True))
    b.ext(ADV)
    for f in range(8): b(rdK(f))
    b.ext(ADV)
    for f in range(8): b(rdV(f))
    for r in range(OA, LB+8): b(f"v_mov_b32 v{r}, 0")
    for (S, C, tb) in ((SX, CA, VT), (SY, CB, VT+4)):
        for qs in range(2):
            r = S + qs*8; m = tb + 2*qs
            b(f"""v_max3_f32 v{m}, v{r}, v{r+1}, v{r+2}
            v_max3_f32 v{m+1}, v{r+3}, v{r+4}, v{r+5}
            v_max3_f32 v{m}, v{m}, v{r+6}, v{r+7}
            v_max_f32 v{m}, v{m}, v{m+1}
            v_mov_b32 v{m+1}, v{m}""")
    b("s_nop 1")
    for m in (VT, VT+2, VT+4, VT+6): b(f"v_permlane32_swap_b32 v{m}, v{m+1}")
    for m in (VT, VT+2, VT+4, VT+6): b(f"v_max_f32 v{m}, v{m}, v{m+1}\nv_mov_b32 v{m+1}, v{m}")
    b("s_nop 1")
    for m in (VT, VT+2, VT+4, VT+6): b(f"v_permlane16_swap_b32 v{m}, v{m+1}")
    for m in (VT, VT+2, VT+4, VT+6): b(f"v_max_f32 v{m}, v{m}, v{m+1}\nv_sub_f32 v{m}, 0, v{m}")
    for (S, C, tb) in ((SX, CA, VT), (SY, CB, VT+4)):
        for qs in range(2):
            for k in range(8):
                b(f"v_add_f32 v{S+qs*8+k}, v{S+qs*8+k}, v{tb+2*qs}")
                b(f"v_mov_b32 v{C+qs*8+k}, v{tb+2*qs}")
    e, c = softmax_ops(SX, PX)
    b.ext(e); b.ext(c)
    b(f"""s_cmp_eq_u32 s{S_W}, 0
    s_cselect_b32 s{SRD_AUX}, s16, s18
    s_cselect_b32 s{SRD_AUX+1}, s17, s19
    s_mov_b32 s{SRD_AUX+3}, 0x20000
    v_accvgpr_read_b32 v{V_AUX}, a{A_SV+8}""")
    aux_on(b)
    fixed = sum(1 << n for n in FIXED)
    b(f"""s_lshl_b64 s[{S_EVM}:{S_EVM+1}], 7, s{S_A}
    s_lshl_b64 s[{T}:{T+1}], 1, s{S_A0}
    s_or_b64 s[{S_EVM}:{S_EVM+1}], s[{S_EVM}:{S_EVM+1}], s[{T}:{T+1}]
    s_lshr_b64 s[{S_EVM}:{S_EVM+1}], s[{S_EVM}:{S_EVM+1}], 1
    s_lshl_b64 s[{T}:{T+1}], 32, s{S_A0}
    s_or_b32 s{S_EVM}, s{S_EVM}, s{T}
    s_or_b32 s{S_EVM}, s{S_EVM}, {fixed & 0xffffffff}
    s_or_b32 s{S_EVM+1}, s{S_EVM+1}, 1
    s_mov_b32 s{S_N}, 0
    s_mov_b32 s89, 0
    s_waitcnt vmcnt(10) lgkmcnt(0)
    s_barrier""")

N_WT2, N_WTF = 4, 9
FIXED = (N_WT2, N_WTF, 30, 31)
ACT = sum(1 << n for n in (N_WT2, N_WTF, 31))
def handler(cx, b, ool):
    T = S_T
    acts = {}
    b("LA_H:")
    if "evst" in cx.opts:
        b(f"""s_memtime s[90:91]
        s_waitcnt lgkmcnt(0)
        s_mov_b32 m0, s89
        s_nop 0
        s_movreld_b32 s74, s90
        s_movreld_b32 s60, s{S_N}
        s_add_u32 s89, s89, 1""")
        cx.nst = 14
    b(f"""s_cmp_eq_u32 s{S_N}, 32
    s_cbranch_scc1 LA_fin
    s_add_u32 s{T}, s{S_N}, 1
    s_lshr_b64 s[{T+4}:{T+5}], s[{S_EVM}:{S_EVM+1}], s{T}
    s_ff1_i32_b64 s{S_EV}, s[{T+4}:{T+5}]
    s_add_u32 s{S_EV}, s{S_EV}, s{T}
    s_cmp_eq_u32 s{T}, s{S_A}
    s_cbranch_scc1 LA_e1
    LA_e1r:
    s_sub_u32 s{T}, s{S_N}, 5
    s_cmp_eq_u32 s{T}, s{S_A0}
    s_cbranch_scc1 LA_fa
    LA_far:
    s_mov_b32 s{T}, {ACT}
    s_bitcmp1_b32 s{T}, s{S_N}
    s_cbranch_scc1 LA_act
    LA_sel:
    s_cmp_ge_u32 s{S_N}, 30
    s_cbranch_scc1 LA_sel0
    s_cmp_gt_u32 s{S_N}, s{S_A}
    s_cbranch_scc1 LA_O2
    s_cmp_eq_u32 s{S_N}, s{S_A}
    s_cbranch_scc1 LA_T2
    s_add_u32 s{T}, s{S_N}, 2
    s_cmp_gt_u32 s{T}, s{S_A0}
    s_cbranch_scc1 LA_S2
    s_branch LA_S1
    LA_sel1:
    s_cmp_eq_u32 s{S_A}, 31
    s_cbranch_scc1 LA_T0L
    s_branch LA_O0L
    LA_sel0:
    s_cmp_eq_u32 s{S_N}, 31
    s_cbranch_scc1 LA_sel1
    s_cmp_gt_u32 s{S_N}, s{S_A}
    s_cbranch_scc1 LA_O0
    s_cmp_eq_u32 s{S_N}, s{S_A}
    s_cbranch_scc1 LA_T0
    s_branch LA_S0""")
    e1 = Blk(); e1(f"v_mov_b32 v{VT}, v{CA}"); mask_c(e1, CA, [VT, CA+8])
    ool("LA_e1:"); ool.ext(e1); ool("s_branch LA_e1r")
    fa = Blk(); fin_tile(fa, OA, LA, True, None)
    ool("LA_fa:"); ool.ext(fa); ool("s_branch LA_far")
    e4 = Blk(); e4(f"v_mov_b32 v{VT}, v{CB}"); mask_c(e4, CB, [VT, CB+8]); acts[31] = e4
    w2 = Blk(); wt2(w2); w2("s_waitcnt lgkmcnt(0)")
    for pre, d, tag in wt_stores(): w2.ext(pre); w2(d)
    acts[N_WT2] = w2
    w3 = Blk(); w3(f"s_lshl_b32 s{T}, s2, 3\ns_add_u32 s{T}, s{T}, {F_WT}"); flag_store(w3, T, "LA_wf")
    acts[N_WTF] = w3
    ool("LA_act:")
    keys = sorted(acts)
    for n in keys[:-1]: ool(f"s_cmp_eq_u32 s{S_N}, {n}\ns_cbranch_scc1 LA_act{n}")
    for n in reversed(keys):
        ool(f"LA_act{n}:"); ool.ext(acts[n]); ool("s_branch LA_sel")
    return e1.l, fa.l, {n: a.l for n, a in acts.items()}

def fin_tile(b, O, L, isA, hook):
    T = S_T
    if isA:
        b(f"""s_lshl_b32 s{T}, s{S_H}, 12
        s_add_u32 s{T}, s{T}, {WS_CTX}
        s_lshl_b32 s{T+1}, s{S_A}, 18
        s_add_u32 s{T}, s{T}, s{T+1}""")
    for qs in range(2): b(f"v_rcp_f32 v{VT+8+2*qs}, v{L+4*qs}")
    for qs in range(2): b(f"v_mov_b32 v{VT+9+2*qs}, v{VT+8+2*qs}")
    for qs in range(2):
        if qs and isA: b(f"s_add_u32 s{T}, s{T}, 131072")
        for s in range(4):
            t = O + (qs*4 + s)*4
            r = O + (qs*8 + 2*s)*4
            for k in range(4): b(f"v_pk_mul_f32 v[{r+2*k}:{r+2*k+1}], v[{r+2*k}:{r+2*k+1}], v[{VT+8+2*qs}:{VT+9+2*qs}]")
            if hook: hook()
            for k in range(4): b(f"v_cvt_pk_bf16_f32 v{t+k}, v{r+2*k}, v{r+2*k+1}")
            if hook: hook()
            if isA: b(f"buffer_store_dwordx4 {vr(t)}, v{V_L16}, {sr(SRD_WS)}, s{T} offen offset:{s*1024}{SC}")
def ctxb_stores():
    return [([f"s_add_u32 s{S_WO2}, s{S_WO2}, 131072"] if k == 4 else [],
             f"buffer_store_dwordx4 {vr(OB + 4*k)}, v{V_L16}, {sr(SRD_WS)}, s{S_WO2} offen offset:{(k&3)*1024}{SC}", "ctx") for k in range(8)]

def finalize(cx, b, vm):
    T = S_T
    b("LA_fin:")
    cx.stamp(b)
    b("s_waitcnt lgkmcnt(0)\ns_barrier")
    b(f"s_cmp_lg_u32 s{S_RT}, 7\ns_cbranch_scc1 LA_fin2")
    fin_tile(b, OA, LA, True, None)
    b("LA_fin2:")
    fl = Fill(); fl.spread(B.setup_s(), 0, 12)
    dm = [x + (("B", st),) for st in range(2) for x in B.dma_stage(st)]
    for g in (13, 15, 17):
        pre, d, tag = dm.pop(0); fl.put(g - 1, pre); fl.put(g, d); vm.issue(tag)
    b.ext(interleave(pv(OB, LB, PX), fl))
    b(f"""s_lshl_b32 s{T}, s{S_H}, 12
    s_add_u32 s{T}, s{T}, {WS_CTX}
    s_lshl_b32 s{T+1}, s{S_A}, 18
    s_sub_u32 s{T+1}, {63 << 18}, s{T+1}
    s_add_u32 s{S_WO2}, s{T}, s{T+1}""")
    def emit_dma(n=1):
        for _ in range(n):
            if dm:
                pre, d, tag = dm.pop(0)
                b.ext(pre)
                if pre: b("s_nop 0")
                b(d); vm.issue(tag)
    emit_dma(5)
    fin_tile(b, OB, LB, False, emit_dma)
    return dm

def build_attn(cx, b, ool):
    hb = Blk(); e1, fa, acts = handler(cx, hb, ool); b.ext(hb)
    bodies = {}
    for nm in ("S1", "S2", "T2", "O2", "S0", "T0", "O0", "T0L", "O0L"):
        raw = body(nm[0], int(nm[1]), nm.endswith("L"))
        import re
        if "a_novm" in cx.opts: raw = [re.sub(r"vmcnt\(\d+\) ", "", x) for x in raw]
        if "a_nodma" in cx.opts: raw = [x for x in raw if not x.startswith("buffer_load")]
        if "a_nobar" in cx.opts: raw = [x for x in raw if x != "s_barrier"]
        if "a_nods" in cx.opts: raw = [x for x in raw if not x.startswith("ds_read")]
        if "a_noexp" in cx.opts: raw = [x for x in raw if not x.startswith("v_exp")]
        if "a_nosc1" in cx.opts: raw = [x.replace(" sc1", "") for x in raw]
        bodies[nm] = loop_waits(raw)
        b(f".p2align 6\nLA_{nm}:")
        b.ext(bodies[nm])
        b(f"s_cbranch_scc1 LA_{nm}\ns_branch LA_H")
    def trace(i, w):
        a0 = 4*i; a = a0 + w
        tr = []
        for n in range(32):
            if n + 1 == a: tr += e1
            if n == a0 + 5: tr += fa
            tr += acts.get(n, [])
            tr += ["s_nop 0"] * 3
            mode = "S" if n < a else ("T" if n == a else "O")
            nb = 0 if n >= 30 else (2 if n + 2 > a0 else 1)
            tr += bodies[mode + str(nb) + ('L' if n == 31 else '')]
        return tr
    return trace
```

```python
from g_common import *
S_R0, S_MX, S_MW, S_OX, S_OW, T = 48, 49, 51, 52, 53, 54
STG = 49152
V_XD, V_WD, V_XA, V_WA = 200, 203, 212, 214
HI = [16, 17, 18, 19, 20, 21]
TV = (184, 185, 186, 187, 188)
ACC = 112
XF, WF = [132, 168], [152, 188]
RS = 488
def touch():
    b = Blk()
    srd(b, SRD_X, 16, SZ['B_x']); srd(b, SRD_A, 18, SZ['B_wqkv'])
    b(f"""s_lshl_b32 s{T}, s{S_Q}, 2
    s_add_u32 s{T}, s{T}, s{S_W}
    s_and_b32 s{T+1}, s2, 6
    s_mul_i32 s{T+1}, s{T+1}, {256*1280}
    s_max_u32 s{T+1}, s{T+1}, {16*1280}
    s_sub_u32 s{T+1}, s{T+1}, {16*1280}
    s_mul_i32 s{T+2}, s{T}, 5376
    s_add_u32 s{T+2}, s{T+2}, s{T+1}
    v_lshlrev_b32 v0, 7, v1""")
    b.ext(oob_mask(0, 42, 2))
    b(f"""buffer_load_dword a248, v0, {sr(SRD_X)}, s{T+2} offen
    s_and_b32 s{T+1}, s2, 1
    s_mul_i32 s{T+1}, s{T+1}, 640
    s_mul_i32 s{T+2}, s{T}, {5*3840}
    s_add_u32 s{T+2}, s{T+2}, s{T+1}
    s_add_u32 s{T+1}, s{T+2}, {4*3840}
    v_mul_u32_u24 v2, 4370, v1
    v_lshrrev_b32 v2, 16, v2
    v_mul_u32_u24 v3, 15, v2
    v_sub_u32 v3, v1, v3
    v_mul_u32_u24 v0, 52, v3
    v_lshrrev_b32 v0, 8, v0
    v_mul_u32_u24 v0, 640, v0
    v_lshl_add_u32 v0, v3, 7, v0
    v_mul_u32_u24 v2, 3840, v2
    v_add_u32 v0, v0, v2
    v_mov_b32 v6, v0""")
    b.ext(oob_mask(0, 60, 2)); b.ext(oob_mask(6, 15, 2))
    b(f"""buffer_load_dword a249, v0, {sr(SRD_A)}, s{T+2} offen
    buffer_load_dword a250, v6, {sr(SRD_A)}, s{T+1} offen""")
    return b.l
def setup_early(V_XD=32, V_WD=35, V_XA=44, V_WA=46, TV=(50, 51, 52, 53, 54)):
    b = Blk()
    t0, t2, t3, t4, t5 = TV
    b(f"""s_lshl_b32 s{T+1}, s{S_RB}, 6
    s_mul_i32 s{T}, s{S_W}, 24
    s_add_u32 s{T}, s{T}, s{T+1}
    s_sub_u32 s{T}, s{T}, 16
    s_and_b32 s{T+1}, s{S_W}, 1
    s_lshl_b32 s{T+1}, s{T+1}, 2
    v_lshrrev_b32 v{t2}, 3, v1
    v_add_u32 v{t2}, s{T}, v{t2}
    v_lshrrev_b32 v{t3}, 4, v1
    v_and_b32 v{t0}, 7, v1
    v_xor_b32 v{t3}, v{t3}, v{t0}
    v_xor_b32 v{t3}, s{T+1}, v{t3}""")
    for q in range(3):
        b(f"""v_add_u32 v{t0}, {8*q}, v{t2}
        v_max_i32 v{t0}, 0, v{t0}
        v_mul_u32_u24 v{t0}, 1280, v{t0}
        v_xor_b32 v{t4}, {4*(q&1)}, v{t3}
        v_lshl_add_u32 v{V_XD+q}, v{t4}, 4, v{t0}""")
    b(f"""s_mul_i32 s{T}, s{S_W}, {16*3840}
    s_mul_i32 s{T+1}, s{S_CG}, 160
    s_and_b32 s{T+1}, s{T+1}, 0xffffffc0
    s_add_u32 s{T}, s{T}, s{T+1}
    v_lshrrev_b32 v{t2}, 2, v1
    v_and_b32 v{t3}, 3, v1""")
    for p in range(9):
        d = V_WD + p
        b(f"""v_add_u32 v{t0}, {16*p}, v{t2}
        v_mul_u32_u24 v{t4}, 57, v{t0}
        v_lshrrev_b32 v{t4}, 9, v{t4}
        v_mul_u32_u24 v{d}, 9, v{t4}
        v_sub_u32 v{t0}, v{t0}, v{d}
        v_mul_u32_u24 v{d}, 86, v{t0}
        v_lshrrev_b32 v{d}, 8, v{d}
        v_mul_u32_u24 v{d}, {1280 - 192}, v{d}
        v_lshl_add_u32 v{d}, v{t0}, 6, v{d}
        v_lshrrev_b32 v{t5}, 2, v{t4}
        v_and_b32 v{t5}, 2, v{t5}
        v_xor_b32 v{t5}, v{t5}, v{t3}
        v_lshl_add_u32 v{d}, v{t5}, 4, v{d}
        v_mul_u32_u24 v{t4}, 3840, v{t4}
        v_add3_u32 v{d}, v{d}, v{t4}, s{T}""")
        if p & 3: b(f"v_subrev_u32 v{d}, {(p&3)*1024}, v{d}")
    row_addr(b, V_XA, V_XA+1, None, TV[:3])
    t0, t2, t3 = TV[:3]
    b(f"""v_lshrrev_b32 v{t0}, 4, v1
    v_lshrrev_b32 v{t2}, 2, v1
    v_and_b32 v{t2}, 3, v{t2}
    v_lshl_add_u32 v{t2}, v{t0}, 3, v{t2}
    v_mul_u32_u24 v{t2}, 576, v{t2}
    v_and_b32 v{t3}, 3, v1
    v_lshl_add_u32 v{t2}, v{t3}, 3, v{t2}
    v_add_u32 v{t2}, 12288, v{t2}
    v_and_b32 v{t0}, 1, v{t0}
    v_lshlrev_b32 v{t0}, 5, v{t0}
    s_and_b32 s{T+2}, s{S_CG}, 1
    s_lshl_b32 s{T+2}, s{T+2}, 5""")
    for j in range(4):
        b(f"""s_lshl_b32 s{T}, s{S_W}, 2
        s_add_u32 s{T}, s{T}, {j}
        s_min_u32 s{T}, s{T}, 14
        s_mul_i32 s{T+1}, s{T}, 52
        s_lshr_b32 s{T+1}, s{T+1}, 8
        s_add_u32 s{T}, s{T}, s{T+1}
        s_lshl_b32 s{T}, s{T}, 5
        s_add_u32 s{T}, s{T}, s{T+2}
        v_xor_b32 v{t3}, s{T}, v{t0}
        v_add_u32 v{V_WA+j}, v{t3}, v{t2}""")
    for k in range(18): b(f"v_accvgpr_write_b32 a{A_SAVE+k}, v{V_XD+k}")
    return b.l
def setup_s():
    b = Blk()
    srd(b, SRD_A, 16, SZ['B_x']); srd(b, SRD_B, 18, SZ['B_wqkv'])
    b(f"""s_lshl_b32 s{S_R0}, s{S_RB}, 6
    s_mul_i32 s{S_MX}, s{S_W}, 3072
    s_mul_i32 s{S_MW}, s{S_W}, 9216
    s_add_u32 s{S_MW}, s{S_MW}, 12288""")
    for k in range(12): b(f"v_accvgpr_read_b32 v{V_XD+k}, a{A_SAVE+k}")
    return b.l
def setup_rd(b):
    for k in range(6): b(f"v_accvgpr_read_b32 v{V_XA+k}, a{A_SAVE+12+k}")
    for k in range(6): b(f"v_add_u32 v{HI[k]}, {STG}, v{V_XA+k}\nv_add_u32 v{HI2[k]}, {2*STG}, v{V_XA+k}")
A_SAVE = 228
def dma_stage(st):
    items = []
    sl = (st % 3) * STG
    for q in range(3):
        pre = ([f"s_mov_b32 s{S_OX}, {st*128}"] if q == 0 else []) + [f"s_add_u32 m0, s{S_MX}, {sl + q*1024}"]
        items.append((pre, f"buffer_load_dwordx4 v{V_XD+q}, {sr(SRD_A)}, s{S_OX} offen lds"))
    for q in range(9):
        pre = []
        if q == 0: pre.append(f"s_mov_b32 s{S_OW}, {st*64*3840}")
        if q % 4 == 0: pre.append(f"s_add_u32 m0, s{S_MW}, {sl + (q>>2)*4096}")
        items.append((pre, f"buffer_load_dwordx4 v{V_WD+q}, {sr(SRD_B)}, s{S_OW} offen offset:{(q&3)*1024} lds"))
    return items
HI2 = [22, 23, 24, 25, 26, 27]
def areg(k, st): return [V_XA + k, HI[k], HI2[k]][st % 3]
def aoff(st): return 0
def rdX(kk, rs): return f"ds_read_b128 {ar(XF[kk&1] + 4*rs)}, v{areg(kk&1, kk//2)} offset:{aoff(kk//2) + rs*2048}"
def rdW(kk, j, u): return f"ds_read_b64_tr_b16 {ar(WF[kk&1] + 4*j + 2*u, 2)}, v{areg(2 + j, kk//2)} offset:{aoff(kk//2) + (32*(kk&1) + 4*u)*576}"
def reads(kk):
    r = [rdW(kk, 0, 0), rdW(kk, 0, 1)] + [rdX(kk, rs) for rs in range(5)]
    for j in range(1, 4): r += [rdW(kk, j, 0), rdW(kk, j, 1)]
    return r

CF_KK = 11
def gemm(cx, b, vm, extra, polls, rest, cst):
    setup_rd(b)
    for pre, d, tag in rest:
        b.ext(pre)
        if pre: b("s_nop 0")
        b(d); vm.issue(tag)
    b(f"""s_lshl_b32 s{T}, s{S_RT}, 8
    s_lshl_b32 s{T+1}, s{S_H}, 3
    s_add_u32 s50, s{T}, s{T+1}
    s_add_u32 s50, s50, {F_CTX}
    s_lshl_b32 s58, s2, 3
    s_add_u32 s58, s58, {F_WT}
    s_waitcnt vmcnt({vm.need(('B', 0))}) lgkmcnt(0)
    s_barrier""")
    first = reads(0); b.ext(first)
    code = []
    for kk in range(20):
        st = kk // 2; ks = kk & 1
        mf = []
        for j in range(4):
            for rs in range(5):
                d = vr(ACC + (j*5 + rs)*4)
                mf.append(mfma16(d, ar(WF[ks] + 4*j), ar(XF[ks] + 4*rs), d if kk else "0"))
        f = Fill()
        if ks == 1 and kk + 1 < 20:
            need = [('B', st+1)] + (['ctx'] if kk == CF_KK else [])
            f.put(1, [f"s_waitcnt vmcnt({vm.need(*need)}) lgkmcnt(0)", "s_barrier"])
            if kk == CF_KK:
                sg = Blk(); flag_store(sg, 50, "LB_cf"); f.put(1, sg.l)
        if kk + 1 < 20:
            for k, r in enumerate(reads(kk+1)): f.put(2 + k, r)
        ev = []
        sn = (kk - 1) // 2 + 3
        if kk >= 1 and sn < 10:
            it = dma_stage(sn)
            sel = it[:7] if ks == 1 else [([f"s_add_u32 m0, s{S_MW}, {(sn%3)*STG + 4096}"], it[7][1])] + it[8:]
            for k, (pre, d) in enumerate(sel): ev.append((3 + 2*k, pre, d, ("B", sn)))
        if kk == 0:
            for k, (pre, d) in enumerate(dma_stage(2)): ev.append((1 + (3*k+1)//2, pre, d, ("B", 2)))
        if 1 <= kk <= len(cst): ev.append((17,) + cst[kk-1])
        if 6 <= kk < 14:
            n8 = (len(extra) + 7) // 8
            f.spread(extra[(kk-6)*n8:(kk-5)*n8], 2, 20)
        if kk == 18:
            for k, (pre, d, tag) in enumerate(polls): ev.append((16 + 2*k, pre, d, tag))
        for g, pre, d, tag in sorted(ev, key=lambda e: e[0]):
            if pre: f.put(g - 1, pre)
            f.put(g, d); vm.issue(tag)
        code += interleave(mf, f)
    b.ext(add_lgkm_waits(code, first))

def result_write(b):
    b(f"""v_and_b32 v2, 15, v1
    v_mul_u32_u24 v2, {RS}, v2
    v_lshrrev_b32 v3, 4, v1
    v_lshl_add_u32 v2, v3, 3, v2
    s_lshl_b32 s{T}, s{S_W}, 7
    v_add_u32 v2, s{T}, v2
    s_cmp_eq_u32 s{S_W}, 3
    s_cselect_b32 s{T}, 65536, 0
    v_add_u32 v3, s{T}, v2
    s_barrier""")
    for j in range(4):
        for rs in range(5):
            r = ACC + (j*5 + rs)*4
            b(f"v_cvt_pk_bf16_f32 v{r}, v{r}, v{r+1}\nv_cvt_pk_bf16_f32 v{r+1}, v{r+2}, v{r+3}")
            b(f"ds_write_b64 v{3 if j == 3 else 2}, v[{r}:{r+1}] offset:{rs*16*RS + j*32}")

V_OB, S_OB = 220, 52
def local(b, vm, inter):
    b(f"""v_add_u32 v4, 2, v1
    v_mul_u32_u24 v4, {RS}, v4
    s_mul_i32 s{T}, s{S_W}, 40
    v_add_u32 v4, s{T}, v4
    v_add_u32 v5, s{S_R0}, v1
    s_waitcnt lgkmcnt(0)
    s_barrier""")
    Q, K, V, LG, O = 8, 20, 100, 180, 190
    code = [f"ds_read_b64 v[{Q+2*m}:{Q+2*m+1}], v4 offset:{14*RS + 8*m}" for m in range(5)]
    for w8 in range(8):
        for m in range(5): code.append(f"ds_read_b64 v[{K+10*w8+2*m}:{K+10*w8+2*m+1}], v4 offset:{(14-2*w8)*RS + 160 + 8*m}")
    for w8 in range(8):
        for m in range(10):
            code.append(f"v_dot2_f32_bf16 v{LG+w8}, v{Q+m}, v{K+10*w8+m}, {'0' if m == 0 else 'v%d' % (LG+w8)}")
        for m in range(5): code.append(f"ds_read_b64 v[{V+10*w8+2*m}:{V+10*w8+2*m+1}], v4 offset:{(14-2*w8)*RS + 320 + 8*m}")
    sc = (20 ** -0.5) * 1.4426950408889634
    code.append(f"s_mov_b32 s{T}, {f2u(sc)}")
    code.append(f"v_mov_b32 v6, 0xf149f2ca")
    code.append("s_nop 2")
    for w8 in range(8): code.append(f"v_mul_f32 v{LG+w8}, s{T}, v{LG+w8}")
    for w8 in range(1, 8):
        code.append(f"v_cmp_gt_u32 vcc, {2*w8}, v5"); code.append("s_nop 1")
        code.append(f"v_cndmask_b32 v{LG+w8}, v{LG+w8}, v6, vcc")
    code += [f"v_max3_f32 v3, v{LG}, v{LG+1}, v{LG+2}", f"v_max3_f32 v3, v3, v{LG+3}, v{LG+4}", f"v_max3_f32 v3, v3, v{LG+5}, v{LG+6}", f"v_max_f32 v3, v3, v{LG+7}"]
    for w8 in range(8): code.append(f"v_sub_f32 v{LG+w8}, v{LG+w8}, v3")
    for w8 in range(8): code.append(f"v_exp_f32 v{LG+w8}, v{LG+w8}")
    code += ["s_nop 0", f"v_add_f32 v3, v{LG}, v{LG+1}"] + [f"v_add_f32 v3, v3, v{LG+k}" for k in range(2, 8)]
    code += ["v_rcp_f32 v3, v3", "s_nop 0"]
    for w8 in range(8): code.append(f"v_mul_f32 v{LG+w8}, v{LG+w8}, v3")
    PL, PH = 8, 20
    for w8 in range(8):
        code.append(f"v_cvt_pk_bf16_f32 v{PL+w8}, v{LG+w8}, 0")
        code.append(f"v_lshlrev_b32 v{PH+w8}, 16, v{PL+w8}")
    for w8 in range(8):
        for m in range(10):
            c0 = '0' if w8 == 0 else f"v{O+2*m}"; c1 = '0' if w8 == 0 else f"v{O+2*m+1}"
            code.append(f"v_dot2_f32_bf16 v{O+2*m}, v{V+10*w8+m}, v{PL+w8}, {c0}")
            code.append(f"v_dot2_f32_bf16 v{O+2*m+1}, v{V+10*w8+m}, v{PH+w8}, {c1}")
    code.append("s_nop 2")
    for m in range(10): code.append(f"v_cvt_pk_bf16_f32 v{O+20+m}, v{O+2*m}, v{O+2*m+1}")
    n = len(inter)
    step = (len(code) - 60) / max(n, 1)
    for k in reversed(range(n)):
        pos = int(48 + k*step)
        while code[pos-1].startswith(("v_cmp", "s_nop", "v_exp", "v_rcp")) or code[pos].startswith(("s_nop", "v_cndmask")): pos += 1
        code[pos:pos] = inter[k]
    b.ext(add_lgkm_waits(code))
    for m in range(5): b(f"ds_write_b64 v4, v[{O+20+2*m}:{O+21+2*m}] offset:{14*RS + 8*m}")
    b(f"""v_mul_u32_u24 v8, {RS}, v1
    s_lshl_b32 s{T}, s{S_W}, 4
    s_add_u32 s{T}, s{T}, {16*RS}
    v_add_u32 v8, s{T}, v8
    v_lshrrev_b32 v2, 4, v5
    v_mul_u32_u24 v2, 20480, v2
    v_and_b32 v3, 15, v1
    v_lshl_add_u32 v{V_OB}, v3, 4, v2
    s_mul_i32 s{T}, s{S_CG}, 10
    s_add_u32 s{T}, s{T}, s{S_W}
    s_lshl_b32 s{S_OB}, s{T}, 8
    s_add_u32 s{S_OB}, s{S_OB}, {WS_OB}
    s_add_u32 s{S_OB+1}, s{S_OB}, 2048
    s_cmp_lt_u32 s{S_W}, 2
    s_cselect_b32 s{S_OB+1}, s{S_OB+1}, {WS_SIZE}
    s_waitcnt lgkmcnt(0)
    s_barrier""")
    for k in range(3):
        for u in range(2): b(f"ds_read_b64 v[{8+4*k+2*u}:{9+4*k+2*u}], v8 offset:{64*k + 8*u}".replace("v[8:9]", "v[20:21]") if False else f"ds_read_b64 v[{12+4*k+2*u}:{13+4*k+2*u}], v8 offset:{64*k + 8*u}")
    b("s_waitcnt lgkmcnt(0)")
    b(f"buffer_store_dwordx4 {vr(12)}, v{V_OB}, {sr(SRD_WS)}, s{S_OB} offen{SC}")
    b(f"buffer_store_dwordx4 {vr(16)}, v{V_OB}, {sr(SRD_WS)}, s{S_OB} offen offset:1024{SC}")
    b(f"buffer_store_dwordx4 {vr(20)}, v{V_OB}, {sr(SRD_WS)}, s{S_OB+1} offen{SC}")
    for _ in range(3): vm.issue("ob")
```

```python
from common import *
from sched import *
import struct
def f2u(x): return struct.unpack("<I", struct.pack("<f", x))[0]
S_W, S_H, S_RT = 28, 29, 30
S_Q = 31
SRD_A, SRD_B, SRD_WS, SRD_X = 32, 36, 40, 44
S_RB, S_CG = 100, 101
WS_FLAG = 66 << 20
F_CTX = WS_FLAG
F_KV = WS_FLAG + 4096
F_WT = WS_FLAG + 8192 + 4096
F_OB = WS_FLAG + 16384
S_NC = 0
WS_SIZE = 67 << 20
WS_STAMP = 200 << 20
SC = " sc1"
class Ctx:
    def __init__(self, dev, opts): self.dev = dev; self.opts = opts; self.nst = 0; self.cnt = 0
    def stamp(self, b, wait=True):
        if not self.dev: return
        k = self.nst; self.nst += 1
        if 'only' in self.opts and not ((self.opts['only'] >> self.cnt) & 1):
            self.nst -= 1; self.cnt += 1; return
        self.cnt += 1
        assert k < 14, k
        b(f"s_memrealtime s[88:89]\ns_memtime s[90:91]\ns_waitcnt lgkmcnt(0)\ns_mov_b32 s{60+k}, s88\ns_mov_b32 s{74+k}, s90")
    def stamp_store(self, b, pfx):
        if not self.dev: return
        b(f"""s_waitcnt lgkmcnt(0)
        s_cmp_lg_u32 s{S_W}, {self.opts.get('sw', 0)}
        s_cbranch_scc1 {pfx}_nost
        s_mov_b32 s{SRD_WS+2}, {SZ['ws']}
        s_lshl_b32 s48, s2, 7
        s_add_u32 s48, s48, {WS_STAMP}
        v_mov_b32 v2, 0""")
        for k in range(self.nst):
            b(f"v_mov_b32 v3, s{60+k}\nbuffer_store_dword v3, v2, {sr(SRD_WS)}, s48 offen offset:{4*k}")
            b(f"v_mov_b32 v3, s{74+k}\nbuffer_store_dword v3, v2, {sr(SRD_WS)}, s48 offen offset:{64+4*k}")
        b(f"{pfx}_nost:")
class Fill(dict):
    def put(self, g, x):
        self.setdefault(g, []).extend([x] if isinstance(x, str) else list(x))
    def spread(self, items, lo, hi):
        n = len(items)
        for k, it in enumerate(items): self.put(lo + (k * (hi - lo)) // max(n, 1), it)
def lines(s): return [x.strip() for x in s.split("\n") if x.strip()]

def flag_store(b, s_off, lab, vt=(0, 2), s_off2=None):
    b(f"""s_cmp_lg_u32 s{S_W}, 0
    s_cbranch_scc1 {lab}
    v_mov_b32 v{vt[1]}, s{S_NC}
    v_mov_b32 v{vt[1]+1}, s{S_NC+1}
    v_mov_b32 v{vt[0]}, 0
    s_mov_b64 exec, 1
    buffer_store_dwordx2 v[{vt[1]}:{vt[1]+1}], v{vt[0]}, {sr(SRD_WS)}, s{s_off} offen sc1""")
    if s_off2 is not None: b(f"buffer_store_dwordx2 v[{vt[1]}:{vt[1]+1}], v{vt[0]}, {sr(SRD_WS)}, s{s_off2} offen sc1")
    b(f"""s_mov_b64 exec, -1
    {lab}:""")
def flag_load(vdat, voff, s_off):
    return f"buffer_load_dwordx2 v[{vdat}:{vdat+1}], v{voff}, {sr(SRD_WS)}, s{s_off} offen sc1"
def flag_check(lab, vdat):
    return [f"v_cmp_ne_u64 vcc, s[{S_NC}:{S_NC+1}], v[{vdat}:{vdat+1}]", "s_nop 1", f"s_cbranch_vccnz {lab}", f"{lab}_ret:"]
def flag_spin(lab, vdat, voff, s_off, st, sleep=8):
    b = Blk()
    b(f"""{lab}:
    s_mov_b32 s{st}, 0x10000
    {lab}_l:
    s_sleep {sleep}
    {flag_load(vdat, voff, s_off)}
    s_sub_u32 s{st}, s{st}, 1
    s_cmp_eq_u32 s{st}, 0
    s_waitcnt vmcnt(0)
    s_cbranch_scc1 {lab}_ret
    v_cmp_ne_u64 vcc, s[{S_NC}:{S_NC+1}], v[{vdat}:{vdat+1}]
    s_nop 1
    s_cbranch_vccnz {lab}_l
    s_branch {lab}_ret""")
    return b

def tr_addr(b, dsts, base, rowshift, vt, xor_s=None):
    a, c, d = vt
    b(f"""v_lshrrev_b32 v{a}, 4, v1
    v_lshrrev_b32 v{c}, 2, v1
    v_and_b32 v{c}, 3, v{c}
    v_lshl_add_u32 v{d}, v{a}, 3, v{c}
    v_lshlrev_b32 v{d}, {rowshift}, v{d}
    v_add_u32 v{d}, {base}, v{d}
    v_and_b32 v{a}, 1, v{a}
    v_lshlrev_b32 v{a}, 1, v{a}
    v_lshl_or_b32 v{a}, v{c}, 2, v{a}
    v_and_b32 v{c}, 1, v1
    v_lshl_add_u32 v{d}, v{c}, 3, v{d}
    v_lshrrev_b32 v{c}, 1, v1
    v_and_b32 v{c}, 1, v{c}
    v_xor_b32 v{a}, v{a}, v{c}""")
    if xor_s is not None: b(f"v_xor_b32 v{a}, s{xor_s}, v{a}")
    for ct, r in enumerate(dsts): b(f"v_xor_b32 v{c}, {2*ct}, v{a}\nv_lshl_add_u32 v{r}, v{c}, 4, v{d}")
def row_addr(b, d0, d1, base, vt):
    a, c, d = vt
    b(f"""v_and_b32 v{a}, 15, v1
    v_lshrrev_b32 v{c}, 1, v{a}
    v_lshlrev_b32 v{a}, 7, v{a}""")
    if base is not None: b(f"v_add_u32 v{a}, {base}, v{a}")
    b(f"""v_lshrrev_b32 v{d}, 4, v1
    v_xor_b32 v{c}, v{c}, v{d}
    v_lshl_add_u32 v{d0}, v{c}, 4, v{a}
    v_xor_b32 v{c}, 4, v{c}
    v_lshl_add_u32 v{d1}, v{c}, 4, v{a}""")
def oob_mask(v, n, vt):
    return [f"v_cmp_gt_u32 vcc, {n}, v1", f"v_mov_b32 v{vt}, 0x40000000", "s_nop 0", f"v_cndmask_b32 v{v}, v{vt}, v{v}, vcc"]
```

```python
from g_common import *
import g_q as Q
S_OFFA, S_OFFB, S_CNT, S_M0, S_CC, S_CO, T = 48, 49, 50, 51, 52, 53, 54
V_C, V_W, V_RA, V_WA, V_RB = 4, 12, 20, 22, 30
A_WF = [32, 96]; A_RF = 160; A_WT = 224
CS = {0: 65536, 1: 131072, 2: 0}
WP = [32768, 98304]
S_KVST = 58
def acc(r, c):
    t = r * 8 + c
    return vr(32 + 4 * t) if t < 56 else ar(4 * (t - 56))
def wf(s, ct, ks): return A_WF[s] + (ct * 2 + ks) * 4
def rf(r, ks): return A_RF + (r * 2 + ks) * 4
def rd_R(r, ks): return f"ds_read_b128 {ar(rf(r, ks))}, v{V_RA+ks} offset:{r*2048}"
def rd_W(s, ct, ks, u): return f"ds_read_b64_tr_b16 {ar(wf(s, ct, ks) + 2*u, 2)}, v{V_WA+ct} offset:{(32*ks + 4*u)*256}"
def dC(p): return f"buffer_load_dwordx4 v{V_C+p}, {sr(SRD_A)}, s{S_OFFA} offen offset:{(p&3)*1024} lds"
def dW(p): return f"buffer_load_dwordx4 v{V_W+p}, {sr(SRD_B)}, s{S_OFFB} offen offset:{(p&3)*1024} nt lds"
def flatC(base):
    o = []
    for p in range(8):
        if p % 4 == 0: o += [f"s_add_u32 m0, s{S_M0}, {base + (p>>2)*4096}", "s_nop 0"]
        o.append(dC(p))
    return o + [f"s_add_u32 s{S_OFFA}, s{S_OFFA}, 128"]
def flatW(base):
    o = []
    for p in range(8):
        if p % 4 == 0: o += [f"s_add_u32 m0, s{S_M0}, {base + (p>>2)*4096}", "s_nop 0"]
        o.append(dW(p))
    return o + [f"s_add_u32 s{S_OFFB}, s{S_OFFB}, {64*8192}"]

def cvt_frag(dst, s0, s1):
    return [f"v_cvt_pk_bf16_f32 v{dst}, v{s0}, v{s0+1}", f"v_cvt_pk_bf16_f32 v{dst+1}, v{s0+2}, v{s0+3}",
            f"v_cvt_pk_bf16_f32 v{dst+2}, v{s1}, v{s1+1}", f"v_cvt_pk_bf16_f32 v{dst+3}, v{s1+2}, v{s1+3}"]


S_TA, S_TB = 92, 93
XL = 54
def tinit(cx):
    b = Blk()
    srd(b, SRD_X, 4, SZ['A_x']); srd(b, 96, 8, SZ['A_wq'])
    b(f"""s_lshl_b32 s94, s{S_Q}, 2
    s_add_u32 s94, s94, s{S_W}
    s_mul_i32 s{S_TA}, s94, {160*128}
    s_mul_i32 s{S_TB}, s94, {5*8192}
    s_and_b32 s{T}, s2, 7
    s_lshl_b32 s{T}, s{T}, 10
    s_add_u32 s{S_TB}, s{S_TB}, s{T}
    s_sub_u32 s{S_TB}, s{S_TB}, {2*8192}
    v_lshlrev_b32 v0, 7, v1
    v_lshrrev_b32 v2, 3, v1
    v_lshlrev_b32 v2, 13, v2
    v_and_b32 v3, 7, v1
    v_lshl_add_u32 v2, v3, 7, v2""")
    if "xl" not in cx.opts: b(f"s_lshl_b32 s{S_TA}, s2, 2\ns_add_u32 s{S_TA}, s{S_TA}, s{S_W}\ns_mul_i32 s{S_TA}, s{S_TA}, {21*128}")
    global XL; XL = 7 if 'xl' not in cx.opts else 54
    b(f"""s_cmp_eq_u32 s{S_W}, 2
    s_cselect_b32 s{SRD_WS}, s16, s14
    s_cselect_b32 s{SRD_WS+1}, s17, s15
    s_lshl_b32 s{T}, s2, 1
    s_add_u32 s{T}, s{T}, s{S_W}
    s_cmp_eq_u32 s{S_W}, 2
    s_cselect_b32 s{T}, s2, s{T}
    s_mul_i32 s95, s{T}, 10240
    s_mul_i32 s{T}, s2, 9600
    s_mov_b32 s{T+1}, 10240
    s_cmp_eq_u32 s{S_W}, 3
    s_cselect_b32 s{SRD_WS}, s18, s{SRD_WS}
    s_cselect_b32 s{SRD_WS+1}, s19, s{SRD_WS+1}
    s_cselect_b32 s95, s{T}, s95
    s_cselect_b32 s{T}, 9600, s{T+1}
    s_add_u32 s{SRD_WS+2}, s95, s{T}""")
    b(f"s_mov_b32 s{SRD_WS+2}, 0")
    b.ext(oob_mask(0, XL, 3)); b.ext(oob_mask(2, 0 if 'wn' in cx.opts else 16, 3))
    return b.l
def tlb_warm(b, cx):
    if "tlb" not in cx.opts: return
    R = 96
    b(f"""s_mov_b32 s{R}, s26
    s_mov_b32 s{R+1}, s27
    s_mov_b32 s{R+2}, {WS_SIZE}
    s_mov_b32 s{R+3}, 0x20000
    s_lshl_b32 s{T}, s94, 22""")
    k = 20
    for nm, p in (('A_wo', 14), ('B_x', 16), ('B_wqkv', 18), ('B_wo', 20), ('out', 22), ('A_x', 4), ('A_wq', 8)):
        for half in range((SZ[nm] + (4 << 20) - 1) // (4 << 20)):
            b(f"""s_cmp_eq_u32 s94, {k}
            s_cselect_b32 s{R}, s{p}, s{R}
            s_cselect_b32 s{R+1}, s{p+1}, s{R+1}
            s_cselect_b32 s{R+2}, {SZ[nm]}, s{R+2}
            s_cselect_b32 s{T}, {half << 22}, s{T}""")
            k += 1
    b(f"""v_lshlrev_b32 v3, 16, v1
    buffer_load_dword a252, v3, s[{R}:{R+3}], s{T} offen""")

def tnext(): return [f"s_add_u32 s{S_TA}, s{S_TA}, {XL*128}", f"s_add_u32 s{S_TB}, s{S_TB}, {2*8192}"]

def stage(isV, par, kind, vm=None, touch=True):
    mf = []
    for r in range(8):
        for c in range(8):
            for ks in range(2):
                A, Bq = ar(rf(r, ks)), ar(wf(par, c, ks))
                mf.append(mfma16(acc(r, c), A, Bq) if isV else mfma16(acc(r, c), Bq, A))
    f = Fill()
    if kind == 'loop':
        f.put(6, ["s_waitcnt lgkmcnt(0)", "s_barrier"])
        f.put(9, f"s_add_u32 m0, s{S_M0}, {WP[par]}"); f.put(36, f"s_add_u32 m0, s{S_M0}, {WP[par] + 4096}")
        for p, g in enumerate([10, 14, 21, 27, 37, 43, 53, 59]): f.put(g, dW(p))
        f.put(61, f"s_add_u32 s{S_OFFB}, s{S_OFFB}, {64*8192}")
    for r in range(4):
        g0, g1 = (8, 12) if r == 0 else (2, 8)
        f.put(r*16 + g0, rd_R(r+4, 0)); f.put(r*16 + g1, rd_R(r+4, 1))
    if kind != 's7':
        for ct, g in enumerate([33, 35, 39, 41, 45, 47, 51, 55]): f.put(g, f"v_xor_b32 v{V_WA+ct}, 0x10000, v{V_WA+ct}")
        f.put(63, [f"s_waitcnt vmcnt({(17 if touch else 16) if kind == 'loop' else 0}) lgkmcnt(0)", "s_barrier"])
        f.put(64, [f"s_add_u32 s{S_CO}, s{S_CC}, s{S_M0}", f"s_add_u32 s{S_CC}, s{S_CC}, 0x10000"])
        f.put(65, [f"s_cmp_eq_u32 s{S_CC}, 0x30000", f"s_cselect_b32 s{S_CC}, 0, s{S_CC}"])
        f.put(69, [f"v_add_u32 v{V_RA}, s{S_CC}, v{V_RB}", f"v_add_u32 v{V_RA+1}, s{S_CC}, v{V_RB+1}"])
        for r in range(4, 8):
            base = r * 16
            reads = []
            for ct in (2*(r-4), 2*(r-4)+1):
                for ks in range(2):
                    for u in range(2): reads.append(rd_W(1-par, ct, ks, u))
            reads.insert(4, rd_R(r-4, 0)); reads.append(rd_R(r-4, 1))
            for k, g in enumerate([2, 3, 4, 6, 7, 8, 10, 11, 12, 14]): f.put(base + g, reads[k])
    if kind == 'loop':
        if par == 1: f.put(65, [f"s_cmp_eq_u32 s{S_CNT}, 1", f"s_cselect_b32 s{SRD_A+2}, 0, s{SRD_A+2}"])
        f.put(69, f"s_mov_b32 m0, s{S_CO}"); f.put(100, f"s_add_u32 m0, s{S_CO}, 4096")
        for p, g in enumerate([73, 77, 85, 93, 101, 109, 117, 125]): f.put(g, dC(p))
        f.put(127, f"s_add_u32 s{S_OFFA}, s{S_OFFA}, 128")
        if touch and par == 1: f.put(126, tnext()[0])
        if touch and par == 0: f.put(20, tnext()[1])
        if False: f.put(121, f"buffer_load_dword a250, v3, {sr(SRD_WS)}, s95 offen"); f.put(123, f"s_add_u32 s95, s95, {14*128}")
        if touch: f.put(127, f"buffer_load_dword a{248+par}, v{2*par}, {sr(SRD_X) if par == 0 else 's[96:99]'}, s{S_TA+par} offen")
    def place(items, gs):
        for (pre, d, tag), g in zip(items, gs):
            if pre: f.put(g - 1, pre)
            f.put(g, d); vm.issue(tag)
    if kind == 's6':
        sw = Blk(); srd(sw, SRD_WS, 26, WS_SIZE)
        f.spread(sw.l + Q.setup_dma(), 0, 62)
        place(Q.dmaX(0), [69, 77, 85, 93, 101, 109, 117, 125])
    if kind == 's7':
        f.put(4, ["s_waitcnt lgkmcnt(0)", "s_barrier"])
        st = [Q.kv_store(fr) + ("kvst",) for fr in range(8)]
        place(Q.dmaW(0) + Q.dmaX(1) + Q.dmaW(1), [6, 9, 13, 16, 20, 23, 27, 30, 35, 38, 42, 45, 49, 53, 58, 62])
        if not isV:
            for r in range(7):
                ops = []
                for s in range(4):
                    fr = 4*r + s
                    ops += cvt_frag(Q.kvreg(fr), 32 + 8*fr, 36 + 8*fr)
                f.spread(ops, (r+1)*16 + 6, min((r+2)*16 + 6, 128))
        else:
            for j in range(3):
                ops = []
                for dt in range(8):
                    ops += cvt_frag(32 + 4*(8*j + dt), 32 + 64*j + 4*dt, 64 + 64*j + 4*dt)
                f.spread(ops, (2*j+2)*16 + 6, min((2*j+4)*16 + 4, 128))
        f.put(66, ["s_waitcnt lgkmcnt(0)", "s_barrier"])
        f.spread(Q.setup_rd(), 58, 98)
        x2 = Q.dmaX(2); w2 = Q.dmaW(2)
        seq = [x2[0], st[0], x2[1], st[1], x2[2], st[2], x2[3], st[3], x2[4], st[4], x2[5], st[5]]
        place(seq, [68, 71, 74, 77, 80, 83, 86, 89, 92, 95, 98, 100])
        f.put(102, [f"s_waitcnt vmcnt({vm.need(('W', 0), ('x', 0))}) lgkmcnt(0)", "s_barrier"])
        place([x2[6], st[6], x2[7], st[7]] + w2, [104, 107, 110, 113, 116, 119, 123, 126])
        f.spread(Q.first_reads(), 103, 128)
    return interleave(mf, f)

def post(isV):
    b = Blk()
    b("s_nop 5")
    for q in range(32): b(f"v_accvgpr_read_b32 v{192+q}, a{q}")
    if not isV:
        for s in range(4): b.ext(cvt_frag(Q.kvreg(28 + s), 192 + 8*s, 196 + 8*s))
    else:
        for dt in range(8): b.ext(cvt_frag(Q.kvreg(24 + dt), 224 + 4*dt, 192 + 4*dt))
    return b.l

def prologue(cx, b, vm):
    b("s_cmp_ge_u32 s2, 256\ns_cbranch_scc1 L_end")
    cx.stamp(b, wait=False)
    b("s_load_dwordx16 s[4:19], s[0:1], 0\ns_load_dwordx8 s[20:27], s[0:1], 64")
    if "noct" not in cx.opts:
        b("""s_getpc_b64 s[94:95]
        L_pc:
        v_lshlrev_b32 v2, 7, v0
        s_mov_b32 s93, L_codeend - L_pc - 4
        v_min_u32 v3, s93, v2
        global_load_dword a253, v3, s[94:95]
        v_add_u32 v2, 0x8000, v2
        v_min_u32 v3, s93, v2
        global_load_dword a254, v3, s[94:95]
        v_add_u32 v2, 0x8000, v2
        v_min_u32 v3, s93, v2
        global_load_dword a255, v3, s[94:95]""")
    b(f"""v_and_b32 v1, 63, v0
    v_lshrrev_b32 v2, 6, v0
    s_and_b32 s{T}, s2, 7
    v_readfirstlane_b32 s{S_W}, v2
    s_lshl_b32 s{S_H}, s{T}, 2
    s_lshr_b32 s{S_Q}, s2, 3
    s_and_b32 s{T+1}, s{S_Q}, 3
    s_add_u32 s{S_H}, s{S_H}, s{T+1}
    s_lshr_b32 s{S_RT}, s2, 5
    s_lshl_b32 s{S_M0}, s{S_W}, 13
    s_mov_b32 s{S_OFFA}, 0
    s_mov_b32 s{S_OFFB}, 0""")
    b(f"""s_lshl_b32 s{T}, s{S_RT}, 8
    s_lshl_b32 s{T+1}, s{S_W}, 6
    s_add_u32 s{T}, s{T}, s{T+1}
    v_lshrrev_b32 v2, 3, v1
    v_add_u32 v2, s{T}, v2
    v_lshlrev_b32 v2, 10, v2
    v_lshrrev_b32 v3, 4, v1
    v_and_b32 v30, 7, v1
    v_xor_b32 v3, v3, v30
    v_lshl_add_u32 v30, v3, 4, v2
    v_xor_b32 v3, 4, v3
    v_lshl_add_u32 v31, v3, 4, v2""")
    for p in range(8): b(f"v_add_u32 v{V_C+p}, {p*8192 - (p&3)*1024}, v{30 + (p&1)}")
    b(f"""s_and_b32 s{T}, s{S_W}, 1
    s_lshl_b32 s{T}, s{T}, 18
    s_lshl_b32 s{T+1}, s{S_H}, 8
    s_add_u32 s{T}, s{T}, s{T+1}
    v_lshrrev_b32 v2, 4, v1
    v_lshlrev_b32 v3, 2, v2
    v_lshlrev_b32 v2, 13, v2
    v_add_u32 v2, s{T}, v2
    v_and_b32 v30, 15, v1
    v_xor_b32 v3, v3, v30
    v_lshl_add_u32 v30, v3, 4, v2
    v_xor_b32 v3, 2, v3
    v_lshl_add_u32 v31, v3, 4, v2""")
    for p in range(8): b(f"v_add_u32 v{V_W+p}, {p*4*8192 - (p&3)*1024}, v{30 + ((p>>1)&1)}")
    b("s_waitcnt lgkmcnt(0)")
    srd(b, SRD_A, 6, SZ['A_c'])
    b(f"""s_cmp_lt_u32 s{S_W}, 2
    s_cselect_b32 s{SRD_B}, s10, s12
    s_cselect_b32 s{SRD_B+1}, s11, s13
    s_mov_b32 s{SRD_B+2}, {SZ['A_wuk']}
    s_mov_b32 s{SRD_B+3}, 0x20000""")
    b.ext(flatW(WP[0])); b.ext(flatC(CS[0]))
    for _ in range(16): vm.issue("s0")
    wsb = cx.opts.get("wsb", 0)
    if wsb: b(f"s_add_u32 s26, s26, {wsb << 20}\ns_addc_u32 s27, s27, 0")
    srd(b, SRD_WS, 26, WS_SIZE)
    b(f"""s_lshl_b32 s{T}, s2, 2
    s_add_u32 s{T}, s{T}, s{S_W}
    s_cmp_lg_u32 s{T}, 0
    s_cbranch_scc1 L_nonce
    s_memrealtime s[{T}:{T+1}]
    s_waitcnt lgkmcnt(0)
    s_or_b32 s{T}, s{T}, 1
    v_mov_b32 v2, s{T}
    v_mov_b32 v3, s{T+1}
    v_mov_b32 v0, 0
    s_mov_b64 exec, 1
    global_store_dwordx2 v0, v[2:3], s[24:25] sc1
    s_mov_b64 exec, -1
    L_nonce:""")
    b(f"""s_and_b32 s{T}, s2, 7
    s_lshr_b32 s{T+1}, s{T}, 1
    s_lshl_b32 s{T+1}, s{T+1}, 3
    s_and_b32 s{S_RB}, s{S_Q}, 7
    s_add_u32 s{S_RB}, s{S_RB}, s{T+1}
    s_and_b32 s{T}, s{T}, 1
    s_lshl_b32 s{T}, s{T}, 2
    s_lshr_b32 s{S_CG}, s{S_Q}, 3
    s_add_u32 s{S_CG}, s{S_CG}, s{T}""")
    b(f"""s_mul_i32 s{S_KVST}, s{S_H}, {KV_HS}
    s_lshl_b32 s{T+1}, s{S_RT}, 17
    s_add_u32 s{S_KVST}, s{S_KVST}, s{T+1}
    s_lshr_b32 s{T+1}, s{S_W}, 1
    s_lshl_b32 s{T+1}, s{T+1}, 16
    s_add_u32 s{S_KVST}, s{S_KVST}, s{T+1}
    s_and_b32 s{T+1}, s{S_W}, 1
    s_mul_i32 s{T+1}, s{T+1}, {32768 + 2048}
    s_add_u32 s{S_KVST}, s{S_KVST}, s{T+1}""")
    b(f"""s_lshr_b32 s{T}, s{S_W}, 1
    s_lshl_b32 s{T}, s{T}, 14
    v_and_b32 v2, 15, v1
    v_lshrrev_b32 v3, 1, v2
    v_lshlrev_b32 v2, 7, v2
    v_add_u32 v2, s{T}, v2
    v_lshrrev_b32 v0, 4, v1
    v_xor_b32 v3, v3, v0
    v_lshl_add_u32 v{V_RB}, v3, 4, v2
    v_xor_b32 v3, 4, v3
    v_lshl_add_u32 v{V_RB+1}, v3, 4, v2
    s_mov_b32 s{S_CC}, {CS[0]}
    v_add_u32 v{V_RA}, {CS[0]}, v{V_RB}
    v_add_u32 v{V_RA+1}, {CS[0]}, v{V_RB+1}
    s_and_b32 s{T}, s{S_W}, 1
    s_lshl_b32 s{T}, s{T}, 14
    s_add_u32 s{T}, s{T}, {WP[0]}
    v_lshrrev_b32 v2, 4, v1
    v_lshrrev_b32 v3, 2, v1
    v_and_b32 v3, 3, v3
    v_lshl_add_u32 v0, v2, 3, v3
    v_lshlrev_b32 v0, 8, v0
    v_add_u32 v0, s{T}, v0
    v_and_b32 v32, 1, v1
    v_lshl_add_u32 v0, v32, 3, v0
    v_and_b32 v2, 1, v2
    v_lshlrev_b32 v2, 1, v2
    v_lshl_or_b32 v2, v3, 2, v2
    v_lshrrev_b32 v3, 1, v1
    v_and_b32 v3, 1, v3
    v_xor_b32 v2, v2, v3""")
    for ct in range(8): b(f"v_xor_b32 v3, {2*ct}, v2\nv_lshl_add_u32 v{V_WA+ct}, v3, 4, v0")
    b(f"s_lshl_b32 s94, s{S_Q}, 2\ns_add_u32 s94, s94, s{S_W}")
    tlb_warm(b, cx)
    b.ext(tinit(cx))
    for r in range(32, 256): b(f"v_mov_b32 v{r}, 0")
    for q in range(32): b(f"v_accvgpr_write_b32 a{q}, 0")
    b.ext(flatC(CS[1])); b.ext(flatW(WP[1])); b.ext(flatC(CS[2]))
    for _ in range(24): vm.issue("s1")
    b(f"s_waitcnt vmcnt({vm.need('s0')})\ns_barrier")
    for ct in range(8):
        for ks in range(2):
            for u in range(2): b(rd_W(0, ct, ks, u))
    for r in range(4):
        for ks in range(2): b(rd_R(r, ks))
    b(f"s_mov_b32 s{S_CNT}, 3")
    cx.stamp(b, wait=False)
    b(f"s_waitcnt lgkmcnt(0)\ns_bitcmp1_b32 s{S_W}, 0\ns_cbranch_scc1 LKV_V")

def build(cx, b, ool):
    pro = Blk(); vm0 = VM()
    prologue(cx, pro, vm0)
    b.ext(pro)
    tr = []
    tch = 'notouch' not in cx.opts
    for isV in (False, True):
        nm = "V" if isV else "K"
        vm = VM()
        body = loop_waits(stage(isV, 0, 'loop', touch=tch) + stage(isV, 1, 'loop', touch=tch) + [f"s_sub_u32 s{S_CNT}, s{S_CNT}, 1", f"s_cmp_lg_u32 s{S_CNT}, 0", f"s_cbranch_scc1 LKV_{nm}"])
        n0 = cx.nst; c0 = cx.cnt
        sa = Blk(); cx.stamp(sa); sb = Blk(); cx.stamp(sb)
        if not isV: cx.nst = n0; cx.cnt = c0
        tail = add_lgkm_waits(sa.l + stage(isV, 0, 's6', vm, tch) + sb.l + stage(isV, 1, 's7', vm, tch), body) + post(isV)
        b(f".p2align 6\nLKV_{nm}:")
        b.ext(body); b.ext(tail)
        if not isV: b("s_branch LKV_done")
        tr.append(pro.l + body*3 + tail)
    b("LKV_done:")
    return tr, vm
```

```python
from g_common import *
T = 54
S_OA, S_OB_, S_P1, S_P2, S_P3, S_SIG = 92, 93, 94, 95, 96, 97
SRD_O = SRD_X
RING = 6
ACC_A, ACC_B = 32, 112
VA, VB = 224, 233
V_P1, V_P2 = 242, 243
V_D1, V_D2 = 244, 246
LD = " sc1"
steps = [("A", k) for k in range(32)] + [("B", k) for k in range(5)]
def setup():
    b = Blk()
    b(f"v_lshlrev_b32 v248, 4, v1")
    for (V, abase, astr, wbase) in ((VA, WS_CTX, 131072, WS_WOT), (VB, WS_OB, 20480, WS_WOBT)):
        b(f"s_mul_i32 s{T+2}, s{S_RB}, {4*astr}\ns_add_u32 s{T+2}, s{T+2}, {abase}")
        for i in range(4):
            b(f"""s_add_u32 s{T+3}, s{S_W}, {i}
            s_and_b32 s{T+3}, s{T+3}, 3
            s_mul_i32 s{T+3}, s{T+3}, {astr}
            s_add_u32 s{T+3}, s{T+3}, s{T+2}
            v_add_u32 v{V+i}, s{T+3}, v248""")
        b(f"s_mul_i32 s{T+3}, s{S_CG}, {5*astr}\ns_add_u32 s{T+3}, s{T+3}, {wbase}\nv_add_u32 v{V+4}, s{T+3}, v248")
        for j in range(1, 5): b(f"v_add_u32 v{V+4+j}, {j*astr}, v{V+4}")
    b(f"""s_lshl_b32 s{S_OA}, s{S_W}, 15
    s_mul_i32 s{S_OB_}, s{S_W}, 5120
    v_lshlrev_b32 v{V_P1}, 3, v1
    s_lshl_b32 s{S_P1}, s{S_W}, 9
    s_add_u32 s{S_P1}, s{S_P1}, {F_WT}
    s_lshr_b32 s{T+2}, s{S_RB}, 1
    s_sub_u32 s{T+3}, 15, s{T+2}
    s_min_u32 s{T+2}, s{T+2}, s{T+3}
    s_lshl_b32 s{S_P2}, s{T+2}, 8
    s_add_u32 s{S_P2}, s{S_P2}, {F_CTX}
    v_and_b32 v{V_P2}, 31, v1
    v_lshlrev_b32 v{V_P2}, 3, v{V_P2}
    s_lshl_b32 s{S_P3}, s{S_RB}, 7
    s_add_u32 s{S_P3}, s{S_P3}, {F_OB}
    s_lshl_b32 s{S_SIG}, s{S_CG}, 3
    s_add_u32 s{S_SIG}, s{S_SIG}, s{S_P3}""")
    srd(b, SRD_O, 22, SZ['out'])
    return b.l
def polls(): return [([], flag_load(V_D1, V_P1, S_P1), "p1"), ([], flag_load(V_D2, V_P2, S_P2), "p2")]
def check(b, vm, ool):
    b(f"s_waitcnt vmcnt({vm.need('p1', 'p2')})")
    b.ext(flag_check("LO_s1", V_D1)); ool.ext(flag_spin("LO_s1", V_D1, V_P1, S_P1, T+1))
    b.ext(flag_check("LO_s2", V_D2)); ool.ext(flag_spin("LO_s2", V_D2, V_P2, S_P2, T+1, sleep=4))
def loads(n):
    kind, k = steps[n]
    r = (n % RING) * 36
    out = []
    vb, so = (VB, S_OB_) if kind == "B" else (VA, S_OA)
    for c, q in enumerate([4, 0, 1, 2, 3, 5, 6, 7, 8]):
        pre = [f"s_add_u32 s{so}, s{so}, 4096"] if (c == 0 and k % 4 == 0 and k) else []
        out.append(pre + [f"buffer_load_dwordx4 {ar(r + 4*q)}, v{vb+q}, {sr(SRD_WS)}, s{so} offen offset:{(k%4)*1024}{LD}"])
    return out
def prefetch(vm):
    out = []
    for n in range(RING - 1):
        for g in loads(n): out.append(g); vm.issue(n)
    return out
def build(cx, b, vm, ool):
    LB = 49152
    b(f"v_lshlrev_b32 v3, 4, v1\nv_and_b32 v{V_P1}, 7, v1\nv_lshlrev_b32 v{V_P1}, 3, v{V_P1}")
    for i in range(1, 4):
        b(f"""s_add_u32 s{T}, s{S_W}, {i}
        s_and_b32 s{T}, s{T}, 3
        s_mul_i32 s{T}, s{T}, 15360
        s_add_u32 s{T}, s{T}, {(i-1)*5120}
        v_add_u32 v{4+i}, s{T}, v3""")
    b(f"""s_mul_i32 s{T}, s{S_W}, 15360
    v_add_u32 v4, s{T}, v3
    v_add_u32 v8, 61440, v4
    s_lshl_b32 s{T+2}, s{S_RB}, 6
    s_lshl_b32 s{T+3}, s{S_W}, 4
    s_add_u32 s{T+2}, s{T+2}, s{T+3}
    v_and_b32 v9, 15, v1
    v_add_u32 v9, s{T+2}, v9
    v_mul_u32_u24 v9, 2560, v9
    v_lshrrev_b32 v10, 4, v1
    v_lshl_add_u32 v9, v10, 3, v9
    s_mul_i32 s{T+2}, s{S_CG}, 160""")
    for i in range(1, 4): b(f"v_add_u32 v{12+i}, 61440, v{4+i}")
    wrA = [f"ds_write_b128 v{4+i}, {vr(ACC_A + (i*5 + j)*4)} offset:{j*1024}" for i in range(1, 4) for j in range(5)]
    wrB = [f"ds_write_b128 v{12+i}, {vr(ACC_B + (i*5 + j)*4)} offset:{j*1024}" for i in range(1, 4) for j in range(5)]
    for n in range(len(steps)):
        kind, k = steps[n]
        r = (n % RING) * 36
        acc = ACC_B if kind == "B" else ACC_A
        mf = []
        for j in range(5):
            for i in range(4):
                d = vr(acc + (i*5 + j)*4)
                mf.append(mfma16(d, ar(r + 16 + 4*j), ar(r + 4*i), d if k else "0"))
        f = Fill()
        need = [n] + (['ob'] if n == 5 else []) + (['p3'] if n == 27 else [])
        b(f"s_waitcnt vmcnt({vm.need(*need)})")
        if n == 5:
            b("s_barrier"); flag_store(b, S_SIG, "LO_of", vt=(0, 10))
        if n == 27:
            b.ext(flag_check("LO_s3", V_D1)); ool.ext(flag_spin("LO_s3", V_D1, V_P1, S_P3, T+1))
        if n + RING - 1 < len(steps):
            for c, g in enumerate(loads(n + RING - 1)):
                f.put(2*c, g); vm.issue(n + RING - 1)
        if n == 20: f.put(19, flag_load(V_D1, V_P1, S_P3)); vm.issue('p3')
        if n >= 33: f.spread(wrA[(n-33)*4:(n-32)*4], 1, 19)
        b.ext(interleave(mf, f))
    cx.stamp(b)
    rd = lambda part, base: [f"ds_read_b128 {vr(base + (c*5 + j)*4)}, v{4 if part == 0 else 8} offset:{c*5120 + j*1024}" for j in range(5) for c in range(3)]
    b("s_waitcnt lgkmcnt(0)\ns_barrier")
    code = rd(0, 52) + wrB
    def red(acc, base, part):
        o = []
        for j in range(5):
            r = acc + 4*j
            x = [base + (c*5 + j)*4 for c in range(3)]
            for q in (0, 2):
                o.append(f"v_pk_add_f32 v[{r+q}:{r+q+1}], v[{r+q}:{r+q+1}], v[{x[0]+q}:{x[0]+q+1}]")
                o.append(f"v_pk_add_f32 v[{x[1]+q}:{x[1]+q+1}], v[{x[1]+q}:{x[1]+q+1}], v[{x[2]+q}:{x[2]+q+1}]")
            for q in (0, 2): o.append(f"v_pk_add_f32 v[{r+q}:{r+q+1}], v[{r+q}:{r+q+1}], v[{x[1]+q}:{x[1]+q+1}]")
            o.append(f"v_cvt_pk_bf16_f32 v{r}, v{r}, v{r+1}"); o.append(f"v_cvt_pk_bf16_f32 v{r+1}, v{r+2}, v{r+3}")
            o.append(f"buffer_store_dwordx2 v[{r}:{r+1}], v9, {sr(SRD_O)}, s{T+2} offen offset:{part*1280 + j*32}")
        return o
    code += red(ACC_A, 52, 0) + ["s_waitcnt lgkmcnt(0)", "s_barrier"] + rd(1, 132) + red(ACC_B, 132, 1)
    b.ext(add_lgkm_waits(code))
```

```python
from g_common import *
T = 54
S_MW, S_MX, S_OW, S_OX = 48, 49, 50, 51
S_KVST, S_ST, S_SRC, S_POLL, S_SIG, S_C = 58, 57, 53, 52, 59, 58
V_XD, V_WQ, V_L16 = 4, 12, 16
V_WA = [22, 23, 24, 25, 26, 27, 28, 29]
V_XA = [18, 19, 30, 31]
V_PO, V_PD = 17, 20
ACC = 128
WFR = [64, 96]; XFR = [32, 128]
LQ = 98304
XSLOT = [65536, 0, 32768]
CSCALE = (128 ** -0.5) * 1.4426950408889634
def kvreg(fr): return 32 + 4*fr if fr < 24 else 32 + 4*(fr - 24)
def kv_store(fr):
    return ([f"s_add_u32 s{S_ST}, s{S_KVST}, {(fr>>3)*16384 + ((fr&7)>>1)*4096}"],
            f"buffer_store_dwordx4 {vr(kvreg(fr))}, v{V_L16}, {sr(SRD_WS)}, s{S_ST} offen offset:{(fr&1)*1024}{SC}")
def dmaW(st):
    return [([f"s_add_u32 m0, s{S_MW}, {(st%4)*16384}", f"s_mov_b32 s{S_OW}, {st*64*8192}"] if p in (0, 2) else [],
             f"buffer_load_dwordx4 v{V_WQ+p}, {sr(SRD_B)}, s{S_OW} offen offset:{p*1024} lds", ("W", st)) for p in range(4)]
def dmaX(st):
    return [([f"s_add_u32 m0, s{S_MX}, {XSLOT[st%3] + (p>>2)*4096}", f"s_mov_b32 s{S_OX}, {st*128}"] if p % 4 == 0 else [],
             f"buffer_load_dwordx4 v{V_XD+p}, {sr(SRD_A)}, s{S_OX} offen offset:{(p&3)*1024} lds", ("x", st)) for p in range(8)]
def setup_dma():
    b = Blk()
    srd(b, SRD_A, 4, SZ['A_x']); srd(b, SRD_B, 8, SZ['A_wq'])
    b(f"""s_lshl_b32 s{T}, s{S_W}, 17
    s_lshl_b32 s{T+1}, s{S_H}, 8
    s_add_u32 s{T}, s{T}, s{T+1}
    v_lshlrev_b32 v{V_L16}, 4, v1
    v_lshrrev_b32 v2, 4, v1
    v_lshlrev_b32 v3, 2, v2
    v_lshlrev_b32 v2, 13, v2
    v_add_u32 v2, s{T}, v2
    v_and_b32 v0, 15, v1
    v_xor_b32 v3, v3, v0
    v_lshl_add_u32 v0, v3, 4, v2
    v_xor_b32 v3, 2, v3
    v_lshl_add_u32 v3, v3, 4, v2""")
    for p in range(4): b(f"v_add_u32 v{V_WQ+p}, {p*4*8192 - p*1024}, v{3 if (p>>1)&1 else 0}")
    b(f"""s_lshl_b32 s{S_MW}, s{S_W}, 12
    s_add_u32 s{S_MW}, s{S_MW}, {LQ}
    s_lshl_b32 s{S_MX}, s{S_W}, 13
    s_lshl_b32 s{T}, s{S_RT}, 2
    s_add_u32 s{T}, s{T}, s{S_W}
    s_mul_i32 s{T}, s{T}, {32*1280}
    s_sub_u32 s{T+1}, {63*32*1280}, s{T}
    v_lshrrev_b32 v2, 3, v1
    v_mul_u32_u24 v2, 1280, v2
    v_lshrrev_b32 v3, 4, v1
    v_and_b32 v0, 7, v1
    v_xor_b32 v3, v3, v0
    v_lshl_add_u32 v0, v3, 4, v2
    v_xor_b32 v3, 4, v3
    v_lshl_add_u32 v3, v3, 4, v2""")
    for p in range(8):
        b(f"v_add_u32 v{V_XD+p}, {(p&3)*(8*1280 - 1024)}, v{3 if p&1 else 0}")
        b(f"v_add_u32 v{V_XD+p}, s{T if p < 4 else T+1}, v{V_XD+p}")
    return b.l
def setup_rd():
    b = Blk()
    tr_addr(b, V_WA, LQ, 8, (0, 2, 3))
    row_addr(b, V_XA[0], V_XA[1], f"s{S_MX}", (0, 2, 3))
    b(f"""v_add_u32 v{V_XA[2]}, 0x10000, v{V_XA[0]}
    v_add_u32 v{V_XA[3]}, 0x10000, v{V_XA[1]}
    v_mov_b32 v{V_PO}, 0""")
    return b.l
def wf(kk, dt): return WFR[kk & 1] + 4*dt
def rdW(kk, dt, u):
    return f"ds_read_b64_tr_b16 {ar(wf(kk, dt) + 2*u, 2)}, v{V_WA[dt]} offset:{((kk>>1)%4)*16384 + (32*(kk&1) + 4*u)*256}"
def xf(st, ks, qs): return XFR[st & 1] + (ks*4 + qs)*4
def rdX(st, ks, qs):
    sl = XSLOT[st % 3]; hi = sl >= 65536
    return f"ds_read_b128 {ar(xf(st, ks, qs))}, v{V_XA[ks + 2*hi]} offset:{sl - 65536*hi + qs*2048}"
def first_reads():
    return [rdW(0, 0, 0), rdW(0, 0, 1)] + [rdX(0, 0, qs) for qs in range(4)] + [rdW(0, dt, u) for dt in range(1, 8) for u in range(2)] + [rdX(0, 1, qs) for qs in range(4)]
def dma_blk(vl):
    return ([f"s_and_b32 m0, s{S_SRC}, 0x1ffff"],
            [f"buffer_load_dwordx4 v{vl}, {sr(SRD_WS)}, s{S_SRC} offen offset:{p*1024} sc1 lds" for p in range(4)],
            [f"s_add_u32 s{S_SRC}, s{S_SRC}, 16384"])

def build(cx, b, vm, ool, extra):
    order = list(range(24, 32)) + list(range(8, 24))
    last_kk = cx.opts.get("stk", 15)
    sched_st = {}
    for k in range(24): sched_st.setdefault((k * (last_kk + 1)) // 24, []).append(order[k])
    sig_kk = last_kk + 2 if last_kk % 2 else last_kk + 3
    code = []
    for kk in range(20):
        st = kk // 2; ks = kk % 2
        mf = []
        for dt in range(8):
            for qs in range(4):
                d = vr(ACC + (dt*4 + qs)*4)
                mf.append(mfma16(d, ar(wf(kk, dt)), ar(xf(st, ks, qs)), d if kk else "0"))
        f = Fill(); put = f.put
        if kk in (4, 8, 12, 16) and 'qst' in cx.opts:
            sb = Blk(); cx.stamp(sb); put(0, sb.l)
        if ks == 1:
            need = ([('W', st+1)] if kk < 19 else []) + (['kvst'] if kk == sig_kk else []) + (['nonce'] if kk == 5 else [])
            put(1, [f"s_waitcnt vmcnt({vm.need(*need)}) lgkmcnt(0)" if need else "s_waitcnt lgkmcnt(0)", "s_barrier"])
            if kk == 5:
                put(2, [f"v_readfirstlane_b32 s{S_NC}, v{V_PD}", f"v_readfirstlane_b32 s{S_NC+1}, v{V_PD+1}"])
                put(3, [f"s_cmp_eq_u32 s{S_NC}, 0", "s_cbranch_scc1 LQ_nspin", "LQ_nspin_ret:"])
            if kk == sig_kk:
                sg = Blk(); flag_store(sg, S_SIG, "LQ_sig"); put(1, sg.l)
        if ks == 0 and st + 1 < 10:
            put(1, f"s_waitcnt vmcnt({vm.need(('x', st+1))}) lgkmcnt(0)")
        if kk + 1 < 20:
            rs = [rdW(kk+1, dt, u) for dt in range(8) for u in range(2)]
            for g, r in zip([2, 3, 5, 6, 8, 9, 11, 12, 14, 15, 17, 18, 20, 21, 23, 24], rs): put(g, r)
        if st + 1 < 10:
            for g, qs in zip([22, 25, 26, 27], range(4)): put(g, rdX(st+1, ks, qs))
        ev = []
        if st + 3 < 10:
            for g, it in zip([4, 7, 10, 13], dmaX(st+3)[ks*4:ks*4+4]): ev.append((g,) + it)
            for g, it in zip([16, 19], dmaW(st+3)[ks*2:ks*2+2]): ev.append((g,) + it)
        if kk == 1: ev.append((29, [], f"global_load_dwordx2 v[{V_PD}:{V_PD+1}], v{V_PO}, s[24:25] sc1", "nonce"))
        for g, fr in zip([23, 30], sched_st.get(kk, [])):
            pre, d = kv_store(fr); ev.append((g, pre, d, "kvst"))
        if kk == 6:
            f.spread(lines(f"""s_mul_i32 s{S_SRC}, s{S_H}, {KV_HS}
            s_lshl_b32 s{T}, s{S_W}, 12
            s_add_u32 s{S_SRC}, s{S_SRC}, s{T}
            s_lshl_b32 s{S_POLL}, s{S_H}, 7
            s_add_u32 s{S_POLL}, s{S_POLL}, {F_KV}
            s_lshl_b32 s{S_SIG}, s{S_RT}, 3
            s_add_u32 s{S_SIG}, s{S_SIG}, s{S_POLL}
            v_and_b32 v{V_PO}, 7, v1
            v_lshlrev_b32 v{V_PO}, 3, v{V_PO}"""), 26, 32)
        if 9 <= kk < 19:
            n10 = (len(extra) + 9) // 10
            f.spread(extra[(kk-9)*n10:(kk-8)*n10], 2, 32)
        if kk == 19: ev.append((cx.opts.get("pollg", 16), [], flag_load(V_PD, V_PO, S_POLL), "poll"))
        for g, pre, d, tag in sorted(ev, key=lambda e: e[0]):
            if pre: put(g - 1, pre)
            put(g, d); vm.issue(tag)
        code += interleave(mf, f)
    b.ext(add_lgkm_waits(code, first_reads()))
    ool(f"""LQ_nspin:
    s_mov_b32 s{T}, 0x10000
    LQ_nspin_l:
    s_sleep 8
    global_load_dwordx2 v[{V_PD}:{V_PD+1}], v{V_PO}, s[24:25] sc1
    s_sub_u32 s{T}, s{T}, 1
    s_waitcnt vmcnt(0)
    v_readfirstlane_b32 s{S_NC}, v{V_PD}
    v_readfirstlane_b32 s{S_NC+1}, v{V_PD+1}
    s_cmp_eq_u32 s{T}, 0
    s_cbranch_scc1 LQ_nspin_ret
    s_cmp_eq_u32 s{S_NC}, 0
    s_cbranch_scc1 LQ_nspin_l
    s_branch LQ_nspin_ret""")
    cx.stamp(b)
    b("s_waitcnt vmcnt(0)")
    b.ext(flag_check("LQ_spin", V_PD))
    ool.ext(flag_spin("LQ_spin", V_PD, V_PO, S_POLL, T, sleep=2))
    cx.stamp(b)
    ep = []
    ep.append(f"s_mov_b32 s{S_C}, {f2u(CSCALE)}"); ep.append(f"s_mov_b32 s{S_C+1}, {f2u(CSCALE)}")
    groups = []
    for qs in range(4):
        for s in range(4):
            g = []
            r0 = ACC + ((2*s)*4 + qs)*4; r1 = ACC + ((2*s + 1)*4 + qs)*4
            for r in (r0, r1):
                g.append(f"v_pk_mul_f32 v[{r}:{r+1}], v[{r}:{r+1}], s[{S_C}:{S_C+1}]")
                g.append(f"v_pk_mul_f32 v[{r+2}:{r+3}], v[{r+2}:{r+3}], s[{S_C}:{S_C+1}]")
            g += [f"v_cvt_pk_bf16_f32 v{r0}, v{r0}, v{r0+1}", f"v_cvt_pk_bf16_f32 v{r0+1}, v{r0+2}, v{r0+3}",
                  f"v_cvt_pk_bf16_f32 v{r0+2}, v{r1}, v{r1+1}", f"v_cvt_pk_bf16_f32 v{r0+3}, v{r1+2}, v{r1+3}"]
            for k in range(4): g.append(f"v_accvgpr_write_b32 a{(qs*4+s)*4 + k}, v{r0+k}")
            groups.append(g)
    dm = []
    for blk in range(5):
        pr, d, post = dma_blk(V_L16)
        dm += [pr + ["s_nop 0", d[0]], [d[1]], [d[2]], [d[3]] + post]
    for x in dm[:8]: ep += x
    for k, g in enumerate(groups):
        ep += g
        if 8 + k < 20: ep += dm[8 + k]
    b.ext(ep)
    pre, d, post = dma_blk(V_L16)
    b(f"s_cmp_lg_u32 s{S_RT}, 0\ns_cbranch_scc1 LA_nob5")
    b.ext(pre); b("s_nop 0"); b.ext(d); b.ext(post); b("LA_nob5:")
```

```python
import re
REG = re.compile(r'^(-?)(?:abs\()?([vas])(\d+)\)?$')
RNG = re.compile(r'^(-?)([vas])\[(\d+):(\d+)\]$')
def regs(op):
    op = op.strip()
    m = REG.match(op)
    if m: return [(m.group(2), int(m.group(3)))]
    m = RNG.match(op)
    if m: return [(m.group(2), i) for i in range(int(m.group(3)), int(m.group(4)) + 1)]
    if op == 'vcc': return [('s', 'vcc')]
    if op == 'exec': return [('s', 'exec')]
    if op == 'm0': return [('s', 'm0')]
    if op == 'scc': return [('s', 'scc')]
    return []
TRANS = ('v_exp_f32', 'v_log_f32', 'v_rcp_f32', 'v_rsq_f32', 'v_sqrt_f32', 'v_sin_f32', 'v_cos_f32')
class I:
    pass
def parse(line):
    s = line.split(';')[0].split('//')[0].strip()
    if not s or s.endswith(':') or s.startswith('.'): return None
    parts = s.split(None, 1)
    mn = parts[0]
    rest = parts[1] if len(parts) > 1 else ''
    ops = [o.strip() for o in rest.split(',')] if rest else []
    mods = ''
    if ops:
        lp = ops[-1].split(None, 1)
        ops[-1] = lp[0]
        mods = lp[1] if len(lp) > 1 else ''
    i = I(); i.text = s; i.mn = mn; i.ops = ops; i.mods = mods
    i.w = []; i.r = []; i.kind = 'other'; i.ws = 1
    R = lambda k: regs(ops[k]) if k < len(ops) else []
    base = mn.replace('_e32', '').replace('_e64', '')
    if mn.startswith('v_mfma'):
        i.kind = 'mfma'; i.w = R(0); i.a = R(1); i.b = R(2); i.c = R(3); i.r = i.a + i.b + i.c
        i.passes = 8 if '32x32' in mn else 4
    elif mn.startswith('ds_read') or mn.startswith('ds_bpermute') or mn.startswith('ds_swizzle'):
        i.kind = 'ds'; i.w = R(0); i.r = sum((R(k) for k in range(1, len(ops))), []); i.load = True
    elif mn.startswith('ds_'):
        i.kind = 'ds'; i.r = sum((R(k) for k in range(len(ops))), []); i.load = False
        if 'rtn' in mn: i.w = R(0); i.r = sum((R(k) for k in range(1, len(ops))), []); i.load = True
    elif mn.startswith('buffer_load') or mn.startswith('global_load'):
        i.kind = 'vmem'
        if ' lds' in (' ' + mods) or 'lds' in mn:
            i.r = sum((R(k) for k in range(len(ops))), []) + [('s', 'm0')]; i.dma = True; i.load = False
        else:
            i.w = R(0); i.r = sum((R(k) for k in range(1, len(ops))), []); i.dma = False; i.load = True
    elif mn.startswith('buffer_store') or mn.startswith('global_store') or mn.startswith('buffer_atomic') or mn.startswith('global_atomic'):
        i.kind = 'vmem'; i.r = sum((R(k) for k in range(len(ops))), []); i.dma = False; i.load = False
        i.wide = ('x4' in mn or 'x3' in mn)
        i.data = R(0) if mn.startswith('buffer') else R(1)
        if 'atomic' in mn and 'sc0' in mods: i.w = R(0); i.load = True
    elif mn.startswith('buffer_inv') or mn.startswith('buffer_wbl2'):
        i.kind = 'vmem'; i.dma = False; i.load = False
    elif mn.startswith('s_load') or mn.startswith('s_memtime') or mn.startswith('s_memrealtime'):
        i.kind = 'smem'; i.w = R(0); i.r = R(1)
    elif mn == 's_waitcnt':
        i.kind = 'wait'
        m = re.search(r'vmcnt\((\d+)\)', s); i.vm = int(m.group(1)) if m else None
        m = re.search(r'lgkmcnt\((\d+)\)', s); i.lg = int(m.group(1)) if m else None
        if i.vm is not None: assert i.vm <= 63, s
        if i.lg is not None: assert i.lg <= 15, s
    elif mn == 's_nop':
        i.kind = 'nop'; i.ws = int(ops[0], 0) + 1
    elif mn in ('s_barrier', 's_endpgm', 's_setprio', 's_sleep') or mn.startswith('s_branch') or mn.startswith('s_cbranch'):
        i.kind = 'ctl'
        if 'vcc' in mn: i.r = [('s', 'vcc')]
    elif mn == 's_getpc_b64':
        i.kind = 'salu'; i.w = R(0)
    elif mn.startswith('s_cmp'):
        i.kind = 'salu'; i.r = R(0) + R(1)
    elif mn.startswith('s_'):
        i.kind = 'salu'; i.w = R(0); i.r = sum((R(k) for k in range(1, len(ops))), [])
        if 'saveexec' in mn: i.w += [('s', 'exec')]
    elif mn.startswith('v_'):
        i.kind = 'valu'
        if base.startswith('v_cmp'):
            i.w = R(0); i.r = R(1) + R(2)
        elif base.startswith('v_permlane') and 'swap' in base:
            i.w = R(0) + R(1); i.r = R(0) + R(1)
        elif base in ('v_fmac_f32',) or base.startswith('v_dot2c') :
            i.w = R(0); i.r = R(0) + R(1) + R(2)
        elif base.startswith('v_add_co') or base.startswith('v_sub_co') or base.startswith('v_addc_co'):
            i.w = R(0) + R(1); i.r = sum((R(k) for k in range(2, len(ops))), [])
        elif base == 'v_writelane_b32':
            i.w = R(0); i.r = R(0) + R(1) + R(2)
        else:
            i.w = R(0); i.r = sum((R(k) for k in range(1, len(ops))), [])
        i.trans = base in TRANS
        i.dpp = ('row_' in mods or 'quad_perm' in mods or 'wave_' in mods)
    else:
        raise ValueError('unknown instr: ' + s)
    return i

def lint(trace, name=''):
    ins = [x for x in (parse(l) for l in trace) if x is not None]
    errs = []
    pos = 0
    positions = []
    for x in ins:
        positions.append(pos); pos += x.ws
    def dist(j, k):
        return positions[k] - positions[j] - ins[j].ws
    W = 24
    lg = []
    vm = []
    smem_out = []
    NOSCC = ('s_mov', 's_mul_i32', 's_cselect', 's_movk', 's_getpc', 's_ff1', 's_movreld', 's_memtime', 's_memrealtime', 's_load')
    lastscc = None
    for k, x in enumerate(ins):
        if x.mn.startswith('s_cselect') or x.mn.startswith('s_cbranch_scc'):
            if lastscc is None or not lastscc.startswith(('s_cmp', 's_bitcmp')): errs.append(f'{name}: [{k}] {x.text} uses SCC from {lastscc}')
        if x.kind == 'salu' and not x.mn.startswith(NOSCC): lastscc = x.mn
        rs, wsx = set(x.r), set(x.w)
        if x.kind == 'wait':
            if x.lg is not None:
                if smem_out and x.lg != 0 : errs.append(f'{name}: counted lgkmcnt with smem outstanding: {x.text}')
                if x.lg == 0: smem_out = []
                while len(lg) > x.lg: lg.pop(0)
            if x.vm is not None:
                while len(vm) > x.vm: vm.pop(0)
        else:
            for lst, nm in ((lg, 'lgkm'), (vm, 'vm'), (smem_out, 'smem')):
                for (j, d) in lst:
                    if d and (rs & d or wsx & d):
                        errs.append(f'{name}: [{k}] {x.text}  touches regs of outstanding {nm} op [{j}] {ins[j].text}')
        if x.kind == 'ds': lg.append((k, set(x.w)))
        if x.kind == 'vmem': vm.append((k, {r for r in x.w if not (r[0] == 'a' and r[1] >= 248)}))
        if x.kind == 'smem': smem_out.append((k, set(x.w)))
        if len(vm) > 63: errs.append(f'{name}: [{k}] vmcnt overflow >63 outstanding'); vm.pop(0)
        if len(lg) > 15 and False: errs.append(f'{name}: [{k}] lgkm >15')
        j = k - 1
        while j >= 0 and positions[k] - positions[j] <= W + 16:
            p = ins[j]; d = dist(j, k)
            pw = set(p.w)
            def need(n, why):
                if d < n: errs.append(f'{name}: [{k}] {x.text}  needs {n} ws after [{j}] {p.text} (has {d}): {why}')
            if p.kind == 'valu':
                vw = {r for r in pw if r[0] in 'va'}
                sw = {r for r in pw if r[0] == 's'}
                if x.kind == 'mfma' and vw & rs: need(2, 'valu->mfma')
                if x.kind == 'valu':
                    if p.trans and not x.trans and vw & rs: need(1, 'trans->valu')
                    if x.mn.startswith('v_readfirstlane') or x.mn.startswith('v_readlane'):
                        if vw & rs: need(1, 'valu->readlane')
                    if x.mn.startswith('v_permlane') and vw & rs: need(2, 'valu->permlane')
                    if x.dpp and vw & rs: need(2, 'valu->dpp')
                    if sw & rs: need(2, 'valu sgpr->valu')
                    if ('s','exec') in sw and x.dpp: need(5, 'exec->dpp')
                if p.mn.startswith('v_dot2') and x.kind in ('valu', 'ds', 'vmem', 'mfma') and (vw & rs or vw & wsx):
                    need(3, 'dot2 result')
                if x.kind == 'vmem' and sw & rs: need(5, 'valu sgpr->vmem')
                if x.kind in ('salu','ctl') and sw & rs: need(1, 'valu sgpr->salu (conservative)')
                if x.kind == 'mfma' and ('s','exec') in sw: need(4, 'exec->mfma')
                if p.trans and x.kind in ('ds','vmem') and vw & rs: need(1, 'trans->mem (conservative)')
            if p.kind == 'salu':
                if ('s', 'm0') in pw and x.kind == 'vmem' and getattr(x, 'dma', False): need(1, 'm0->dma')
            if p.kind == 'mfma':
                n_ab = 12 if p.passes == 8 else 8
                n_c = 10 if p.passes == 8 else 6
                n_war = 7 if p.passes == 8 else 3
                if x.kind == 'mfma':
                    if pw & (set(x.a) | set(x.b)): need(n_ab, 'mfma D->A/B')
                    if pw & set(x.c):
                        if not (p.w == x.c and p.passes == x.passes): need(n_c, 'mfma D->C overlap')
                    if pw & wsx and not (p.w == x.w and p.w == x.c):
                        if not (pw & set(x.c)): need(n_c, 'mfma WAW (conservative)')
                elif x.kind in ('valu', 'ds', 'vmem'):
                    if pw & rs or pw & wsx: need(n_ab, 'mfma D->valu/mem')
                    if x.kind == 'valu' and set(p.c) & wsx: need(n_war, 'mfma C WAR')
                    if x.kind in ('ds','vmem') and set(p.c) & wsx: need(n_war, 'mfma C WAR by load (conservative)')
            if p.kind == 'vmem' and getattr(p, 'wide', False) and x.kind == 'valu' and set(p.data) & wsx: need(2, 'store data WAR')
            if p.kind == 'ds' and not p.load and x.kind == 'valu' and False: pass
            j -= 1
    return errs
```

```python
import sys
from g_common import *
import g_kv as KV, g_q as Q, g_b as B, g_a as A, g_o as O
from lint import lint
HDR = open("cdna_kernels/" + NAME + ".s.ref").read().split("; Override launch")[0]
def build(dev=False, opts=None):
    cx = Ctx(dev, opts or {})
    lab = NAME + "_kernel"
    b = Blk(); ool = Blk()
    b(f"{lab}:")
    trs, vm = KV.build(cx, b, ool)
    mid = Blk()
    cx.stamp(mid)
    Q.build(cx, mid, vm, ool, A.early() + B.setup_early())
    A.attn_prologue(mid)
    cx.stamp(mid)
    b.ext(mid)
    trace = A.build_attn(cx, b, ool)
    fin = Blk(); vm = VM()
    rest = A.finalize(cx, fin, vm)
    cx.stamp(fin)
    B.gemm(cx, fin, vm, O.setup(), O.polls(), rest, A.ctxb_stores())
    cx.stamp(fin)
    B.result_write(fin)
    O.check(fin, vm, ool)
    cx.stamp(fin)
    B.local(fin, vm, O.prefetch(vm))
    cx.stamp(fin)
    O.build(cx, fin, vm, ool)
    if dev: fin("s_waitcnt vmcnt(0)")
    cx.stamp(fin)
    cx.stamp_store(fin, "LF")
    fin("L_end:\ns_endpgm")
    b.ext(fin); b.ext(ool); b('L_codeend:\ns_endpgm')
    out = [HDR.rstrip(), "; @launch grid=(256,1,1) block=(256,1,1) lds=163840",
           '.amdgcn_target "amdgcn-amd-amdhsa--gfx950"\n.text', f".globl {lab}\n.p2align 8\n.type {lab},@function", b.text(),
           '.section .rodata,"a"\n.p2align 6\n' + kdesc(lab, 512, 256)]
    nerr = 0
    for k, (i, w) in enumerate(((0, 0), (0, 1), (1, 2), (7, 3), (7, 2), (3, 0))):
        e = lint(trs[k & 1] + mid.l + trace(i, w) + fin.l, f"t{i}{w}")
        for x in e[:4]: print("LINT", x, file=sys.stderr)
        nerr += len(e)
    return "\n".join(out) + "\n", nerr
if __name__ == "__main__":
    opts = {}
    for a in sys.argv[2:]:
        if "=" in a: k, v = a.split("="); opts[k] = int(v, 0)
        else: opts[a] = True
    txt, nerr = build("dev" in opts, opts)
    import re
    def filt(pred, rep="  s_nop 0"):
        global txt
        txt = "\n".join((rep if pred(l) else l) for l in txt.split("\n"))
    if "nobdma" in opts: filt(lambda l: re.search(r"buffer_load_dwordx4 v2(0\d|1[01]),", l) and " lds" in l)
    if "nobw" in opts: filt(lambda l: re.search(r"buffer_load_dwordx4 v1(6[3-9]|7[01]),", l) and " lds" in l)
    if "noctxst" in opts: filt(lambda l: "buffer_store_dwordx4 v[24" in l)
    if "nokvst" in opts: filt(lambda l: "buffer_store_dwordx4" in l and "s57 offen" in l)
    open(sys.argv[1], "w").write(txt)
    print("lint errors:", nerr, "lines", txt.count("\n"))
```

```python
import math
NAME = "concat_heads__compressed_kv_cla__sliding_local_dilated__prompt"
KA = dict(A_x=0, A_c=8, A_wq=16, A_wuk=24, A_wuv=32, A_wo=40, B_x=48, B_wqkv=56, B_wo=64, out=72, dbg=80, ws=88)
SZ = dict(A_x=2048*640*2, A_c=2048*512*2, A_wq=640*4096*2, A_wuk=512*4096*2, A_wuv=512*4096*2, A_wo=4096*640*2,
          B_x=2048*640*2, B_wqkv=640*1920*2, B_wo=640*640*2, out=2048*1280*2, dbg=256, ws=268435456)
WS_KV = 0
KV_HS = 72 * 16384
WS_CTX = 40 << 20
WS_WOT = (40 << 20) + 132 * (131072 + (0 if 'nopad' in __import__('sys').argv else 1024))
WS_OB = 63 << 20
WS_WOBT = 66 << 20
WS_WQT = (66 << 20) + 40 * 21504 + 4096
WS_END = 70 << 20
import sys as _sys
PADK = 0 if 'nopad' in _sys.argv else 1024
STA = 131072 + PADK
STB = 20480 + PADK

class Blk:
    def __init__(self, name=""):
        self.l = []; self.name = name
    def __call__(self, s):
        for x in s.split("\n"):
            x = x.strip()
            if x: self.l.append(x)
        return self
    def ext(self, o):
        self.l += (o.l if isinstance(o, Blk) else o); return self
    def text(self):
        return "\n".join((x if x.endswith(":") or x.startswith(".") else "  " + x) for x in self.l)

def vr(b, n=4): return f"v[{b}:{b+n-1}]" if n > 1 else f"v{b}"
def ar(b, n=4): return f"a[{b}:{b+n-1}]" if n > 1 else f"a{b}"
def sr(b, n=4): return f"s[{b}:{b+n-1}]" if n > 1 else f"s{b}"

def mfma16(d, a, b, c=None):
    return f"v_mfma_f32_16x16x32_bf16 {d}, {a}, {b}, {d if c is None else c}"

def interleave(mf, fill):
    out = []
    for i, m in enumerate(mf):
        out.append(m)
        out += fill.get(i, [])
    return out

def spread(fill, items, lo, hi, front=False):
    n = len(items)
    for k, it in enumerate(items):
        g = lo + (k * (hi - lo)) // n
        it = [it] if isinstance(it, str) else list(it)
        if front: fill[g] = it + fill.get(g, [])
        else: fill.setdefault(g, []).extend(it)

def srd(b, s_base, ptr_s, size):
    b(f"s_mov_b32 s{s_base}, s{ptr_s}")
    b(f"s_mov_b32 s{s_base+1}, s{ptr_s+1}")
    b(f"s_mov_b32 s{s_base+2}, {size}")
    b(f"s_mov_b32 s{s_base+3}, 0x20000")

def kdesc(label, vgpr, accum, sgpr=102):
    return f""".amdhsa_kernel {label}
  .amdhsa_next_free_vgpr {vgpr}
  .amdhsa_next_free_sgpr {sgpr}
  .amdhsa_accum_offset {accum}
  .amdhsa_group_segment_fixed_size 0
  .amdhsa_kernarg_size 96
  .amdhsa_user_sgpr_count 2
  .amdhsa_user_sgpr_kernarg_segment_ptr 1
  .amdhsa_system_sgpr_workgroup_id_x 1
.end_amdhsa_kernel"""

class VM:
    def __init__(self): self.ops = []
    def issue(self, tag): self.ops.append(tag)
    def need(self, *tags):
        last = -1
        for k, t in enumerate(self.ops):
            if t in tags: last = k
        n = len(self.ops) - 1 - last
        return min(n, 63)
```

```python
from g_common import *
import g_b as B
S_N, S_EV, S_A, S_A0, S_SRC, S_T, S_C = 48, 49, 50, 51, 53, 54, 58
S_MASK = 92
S_NEG = 57
V_L16, V_P = 4, 5
OA, OB, LA, LB, SX, SY, PX, PY, CA, CB = 16, 80, 144, 152, 160, 176, 192, 200, 208, 224
VT = 240
QA, QB, KF, VF, ONES = 0, 32, 64, 96, 128
XR = 132
LQ = 98304
V_WA, V_WQ = 144, 244
CSCALE = (128 ** -0.5) * 1.4426950408889634
import struct
def f2u(x): return struct.unpack("<I", struct.pack("<f", x))[0]

def koff(f): return (f >> 1) * 4096 + (f & 1) * 1024
def rdK(f): return f"ds_read_b128 {ar(KF + 4*f)}, v{V_P} offset:{koff(f)}"
def rdV(f): return f"ds_read_b128 {ar(VF + 4*f)}, v{V_P} offset:{koff(f) + 2048}"
def dma_blk():
    return ([f"s_and_b32 m0, s{S_SRC}, 0x1ffff"],
            [f"buffer_load_dwordx4 v{V_L16}, {sr(SRD_WS)}, s{S_SRC} offen offset:{p*1024} sc1 lds" for p in range(4)],
            [f"s_add_u32 s{S_SRC}, s{S_SRC}, 16384"])
ADV = [f"v_add_u32 v{V_P}, 0x4000, v{V_P}", f"v_and_b32 v{V_P}, 0x1ffff, v{V_P}"]

def qk(S, Q, C, czero=False):
    m = []
    for ks in range(2):
        for qs in range(2):
            d = vr(S + (qs*2 + ks)*4)
            for s in range(4):
                c = d if s else ("0" if czero else vr(C + (qs*2 + ks)*4))
                m.append(mfma16(d, ar(KF + (ks*4 + s)*4), ar(Q + (qs*4 + s)*4), c))
    return m
def pv(O, L, P):
    m = []
    for dt in range(8):
        for qs in range(2):
            m.append(mfma16(vr(O + (qs*8 + dt)*4), ar(VF + 4*dt), vr(P + 4*qs)))
    for qs in range(2):
        m.append(mfma16(vr(L + 4*qs), ar(ONES), vr(P + 4*qs)))
    return m
def softmax_ops(S, P):
    order = []
    for ks in range(2):
        for qs in range(2):
            for j in range(4): order.append((qs, ks, j))
    exps = [f"v_exp_f32 v{S+(qs*2+ks)*4+j}, v{S+(qs*2+ks)*4+j}" for qs, ks, j in order]
    cvts = []
    for k in range(8):
        qs, ks, j = order[2*k]
        r = S + (qs*2 + ks)*4 + j
        cvts.append(f"v_cvt_pk_bf16_f32 v{P + 4*qs + 2*ks + j//2}, v{r}, v{r+1}")
    return exps, cvts

def half(fill, base, S, P, K, V, vmw, dma, adv_first, adv_mid):
    e, c = softmax_ops(S, P)
    put = lambda g, x: fill.put(base + g, x)
    for k in range(16): put(2*k, e[k])
    if adv_first: put(1, ADV[0]); put(3, ADV[1])
    for k, g in enumerate([5, 7, 7, 9, 13, 15, 15, 17]):
        if K: put(g, K[k])
    if vmw is not None: put(11, [f"s_waitcnt vmcnt({vmw}) lgkmcnt({4 if K else 0})", "s_barrier"])
    if adv_mid: put(17, ADV[0]); put(19, ADV[1])
    for k, g in enumerate([19, 21, 23, 25, 27, 29, 31, 32]):
        if V: put(g, V[k])
    for k, g in enumerate([5, 9, 13, 17, 21, 25, 29, 33]): put(g, c[k])
    if dma:
        pre, d, post = dma_blk()
        put(12 if not K else 16, pre[0])
        for g, x in zip([19, 23, 27, 31] if K else [15, 19, 23, 27], d): put(g, x)
        put(32, post[0])

V_AUX, SRD_AUX, S_AUX, S_AUXS = 12, 44, 57, 38
A_SV = 160
import sys
CT30 = 0 if 'noct2' in sys.argv else 1
AUX = True
NX30 = 0
def body(mode, nb, last=False):
    QX = QA if mode == "S" else QB
    CX = CA if mode == "S" else CB
    OX, LX = (OA, LA) if mode in "ST" else (OB, LB)
    mf = qk(SX, QX, CX) + pv(OX, LX, PX) + qk(SY, QB, CB) + pv(OB, LB, PY)
    fill = Fill()
    K = [rdK(f) for f in range(8)]; V = [rdV(f) for f in range(8)]
    if nb == 1: w0, w1 = None, 4
    elif nb == 2: w0, w1 = (4 if mode == "S" else 8), 8
    else:
        w0, w1 = (5, 3) if not last else (63, 63)
        if not last: w0, w1 = w0 + CT30, w1 + CT30
        for g in (3, 21, 37, 55):
            fill.put(g, [f"buffer_load_dword a251, v{V_AUX}, {sr(SRD_AUX)}, s{S_AUX} offen"])
            fill.put(g + 4, [f"s_add_u32 s{S_AUX}, s{S_AUX}, s{S_AUXS}"])
    if mode == "S":
        half(fill, 0, SY, PY, [], [], w0, nb >= 1, False, False)
        half(fill, 34, SX, PX, K, V, w1, nb == 2, False, True)
    else:
        half(fill, 0, SY, PY, K, V, w0, nb >= 1, mode == "O", False)
        half(fill, 34, SX, PX, K, V, w1, nb == 2, True, False)
    fill.put(33, f"s_add_u32 s{S_N}, s{S_N}, 1")
    if mode != "S": fill.put(33, "s_waitcnt lgkmcnt(8)")
    fill.put(66, f"s_cmp_lg_u32 s{S_N}, s{S_EV}")
    fill.put(67, "s_waitcnt lgkmcnt(8)")
    return interleave(mf, fill)

def mask_c(b, C, src):
    for j in range(4):
        b(f"v_cndmask_b32 v{C+j}, v{src[0]}, v{VT+15}, {sr(S_MASK+2*j, 2)}")
        b(f"v_cndmask_b32 v{C+12+j}, v{src[1]}, v{VT+15}, {sr(S_MASK+2*j, 2)}")
        b(f"v_mov_b32 v{C+4+j}, v{VT+15}")

LSCR = 131072
WT_V = [8, 9, 10, 11, 13, 14]
S_WTA, S_WTB, A_WT, T = 52, 3, 204, 54
S_WO1, S_WO2 = 58, 59
SRD_Y = SRD_A
S_EVM = 36
def early(d=56, t=(2, 3, 0)):
    b = Blk()
    a, c, e = t
    b(f"s_mul_i32 s3, s{S_W}, 320\nv_add_u32 v{a}, s3, v1")
    for p in range(5):
        b(f"""v_add_u32 v{c}, {64*p}, v{a}
        v_mul_u32_u24 v{d}, 1639, v{c}
        v_lshrrev_b32 v{d}, 16, v{d}
        v_mul_u32_u24 v{d}, {1280 - 640}, v{d}
        v_lshl_add_u32 v{d}, v{c}, 4, v{d}
        v_accvgpr_write_b32 a{A_SV+p}, v{d}""")
    b(f"""s_lshl_b32 s3, s{S_W}, 3
    v_lshrrev_b32 v{a}, 3, v1
    v_add_u32 v{a}, s3, v{a}
    v_mul_u32_u24 v{a}, 1280, v{a}
    v_and_b32 v{c}, 7, v1
    v_lshl_add_u32 v{d}, v{c}, 4, v{a}
    v_accvgpr_write_b32 a{A_SV+5}, v{d}
    v_lshrrev_b32 v{a}, 4, v1
    v_lshrrev_b32 v{c}, 2, v1
    v_and_b32 v{c}, 3, v{c}
    v_and_b32 v{e}, 3, v1
    v_lshlrev_b32 v{e}, 3, v{e}
    v_lshl_add_u32 v{d}, v{a}, 2, v{c}
    v_mul_u32_u24 v{d}, 640, v{d}
    s_mul_i32 s3, s{S_W}, 160
    s_add_u32 s3, s3, {LSCR}
    v_add3_u32 v{d}, v{d}, v{e}, s3
    v_accvgpr_write_b32 a{A_SV+6}, v{d}
    v_lshl_add_u32 v{d}, v{a}, 3, v{c}
    v_lshlrev_b32 v{d}, 7, v{d}
    s_lshl_b32 s3, s{S_W}, 5
    s_add_u32 s3, s3, {LSCR + 20480}
    v_add3_u32 v{d}, v{d}, v{e}, s3
    v_accvgpr_write_b32 a{A_SV+7}, v{d}
    v_mul_u32_u24 v{a}, 52, v1
    v_lshrrev_b32 v{a}, 8, v{a}
    v_mul_u32_u24 v{a}, 640, v{a}
    s_min_u32 s3, s{S_W}, 1
    v_mul_u32_u24 v{a}, s3, v{a}
    v_lshl_add_u32 v{d}, v1, 7, v{a}
    s_mul_i32 s3, s3, 10
    s_sub_u32 s3, 25, s3
    v_cmp_gt_u32 vcc, s3, v1
    v_mov_b32 v{a}, 0x40000000
    s_nop 0
    v_cndmask_b32 v{d}, v{a}, v{d}, vcc
    v_accvgpr_write_b32 a{A_SV+8}, v{d}""")
    return b.l

def wt1(b):
    srd(b, SRD_A, 14, SZ['A_wo'])
    for p in range(6): b(f"v_accvgpr_read_b32 v{WT_V[p]}, a{A_SV+p}")
    b(f"""s_and_b32 s{T}, s2, 1
    s_lshr_b32 s{T+1}, s2, 1
    s_mul_i32 s{S_WO1}, s{T+1}, {32*1280}
    s_mul_i32 s{T}, s{T}, 640
    s_add_u32 s{S_WO1}, s{S_WO1}, s{T}
    s_mul_i32 s{T}, s{S_W}, 5120""")
    for p in range(5):
        b(f"s_add_u32 m0, s{T}, {LSCR + p*1024}\ns_nop 0\nbuffer_load_dwordx4 v{WT_V[p]}, {sr(SRD_A)}, s{S_WO1} offen nt lds")
    b(f"""s_mul_i32 s{T+1}, s2, 205
    s_lshr_b32 s{T+1}, s{T+1}, 11
    s_mul_i32 s{T+2}, s{T+1}, {32*1280 - 1280}
    s_lshl_b32 s{T}, s2, 7
    s_add_u32 s{S_WO2}, s{T+2}, s{T}
    s_mov_b32 s{SRD_A}, s20
    s_mov_b32 s{SRD_A+1}, s21
    s_mov_b32 s{SRD_A+2}, {SZ['B_wo']}
    s_lshl_b32 s{T}, s{S_W}, 10
    s_add_u32 m0, s{T}, {LSCR + 20480}
    s_nop 0
    buffer_load_dwordx4 v{WT_V[5]}, {sr(SRD_A)}, s{S_WO2} offen nt lds""")
S_WS1, S_WS2 = 58, 59
def wt2(b):
    b(f"v_accvgpr_read_b32 v10, a{A_SV+6}\nv_accvgpr_read_b32 v11, a{A_SV+7}")
    for fr in range(5):
        for u in range(2): b(f"ds_read_b64_tr_b16 {ar(A_WT + 4*fr + 2*u, 2)}, v10 offset:{fr*32 + u*10240}")
    for u in range(2): b(f"ds_read_b64_tr_b16 {ar(A_WT + 20 + 2*u, 2)}, v11 offset:{u*512}")
    b(f"""s_and_b32 s{T}, s2, 1
    s_mul_i32 s{T}, s{T}, 20
    s_mul_i32 s{T+2}, s{S_W}, 5
    s_add_u32 s{T}, s{T}, s{T+2}
    s_mul_i32 s{S_WS1}, s{T}, {STA}
    s_lshr_b32 s{T+1}, s2, 1
    s_lshl_b32 s{T+1}, s{T+1}, 10
    s_add_u32 s{S_WS1}, s{S_WS1}, s{T+1}
    s_add_u32 s{S_WS1}, s{S_WS1}, {WS_WOT}
    s_mul_i32 s{T+1}, s2, 205
    s_lshr_b32 s{T+1}, s{T+1}, 11
    s_mul_i32 s{T+2}, s{T+1}, 10
    s_sub_u32 s{T+2}, s2, s{T+2}
    s_lshl_b32 s{T+2}, s{T+2}, 2
    s_add_u32 s{T+2}, s{T+2}, s{S_W}
    s_mul_i32 s{S_WS2}, s{T+2}, {STB}
    s_lshl_b32 s{T+1}, s{T+1}, 10
    s_add_u32 s{S_WS2}, s{S_WS2}, s{T+1}
    s_add_u32 s{S_WS2}, s{S_WS2}, {WS_WOBT}
    s_cmp_lt_u32 s2, 200
    s_cselect_b32 s{S_WS2}, s{S_WS2}, {WS_SIZE}""")
def wt_stores():
    st = [([f"s_add_u32 s{S_WS1}, s{S_WS1}, {STA}"] if k else [], f"buffer_store_dwordx4 {ar(A_WT + 4*k)}, v{V_L16}, {sr(SRD_WS)}, s{S_WS1} offen{SC}", "wt") for k in range(5)]
    return st + [([], f"buffer_store_dwordx4 {ar(A_WT + 20)}, v{V_L16}, {sr(SRD_WS)}, s{S_WS2} offen{SC}", "wt")]
def aux_on(b):
    b(f"""s_lshl_b32 s{T+1}, s{S_RB}, 6
    s_and_b32 s{T}, s{S_Q}, 3
    s_mul_i32 s{T}, s{T}, 20
    s_add_u32 s{T+1}, s{T+1}, s{T}
    s_max_u32 s{T+1}, s{T+1}, 16
    s_sub_u32 s{T+1}, s{T+1}, 16
    s_mul_i32 s{T+1}, s{T+1}, 1280
    s_mul_i32 s{T}, s{S_Q}, 3
    s_add_u32 s{T}, s{T}, s{S_W}
    s_sub_u32 s{T}, s{T}, 1
    s_mul_i32 s{T}, s{T}, {7*3840}
    s_and_b32 s{T+2}, s2, 1
    s_mul_i32 s{T+2}, s{T+2}, 640
    s_add_u32 s{T}, s{T}, s{T+2}
    s_mov_b32 s{T+2}, {SZ['B_x']}
    s_mov_b32 s{S_AUXS}, 3840
    s_cmp_eq_u32 s{S_W}, 0
    s_cselect_b32 s{S_AUX}, s{T+1}, s{T}
    s_cselect_b32 s{SRD_AUX+2}, s{T+2}, {SZ['B_wqkv']}
    s_cselect_b32 s{S_AUXS}, {25*128}, s{S_AUXS}""")

def late_setup(b):
    T = S_T
    b(f"""s_cmp_eq_u32 s{S_W}, 0
    s_cselect_b32 s{SRD_AUX}, s16, s18
    s_cselect_b32 s{SRD_AUX+1}, s17, s19
    s_mov_b32 s{SRD_AUX+3}, 0x20000
    v_accvgpr_read_b32 v{V_AUX}, a{A_SV+8}""")
    aux_on(b)
    fixed = sum(1 << n for n in FIXED)
    b(f"""s_lshl_b64 s[{S_EVM}:{S_EVM+1}], 7, s{S_A}
    s_lshl_b64 s[{T}:{T+1}], 1, s{S_A0}
    s_or_b64 s[{S_EVM}:{S_EVM+1}], s[{S_EVM}:{S_EVM+1}], s[{T}:{T+1}]
    s_lshr_b64 s[{S_EVM}:{S_EVM+1}], s[{S_EVM}:{S_EVM+1}], 1
    s_lshl_b64 s[{T}:{T+1}], 32, s{S_A0}
    s_or_b32 s{S_EVM}, s{S_EVM}, s{T}
    s_or_b32 s{S_EVM}, s{S_EVM}, {fixed & 0xffffffff}
    s_or_b32 s{S_EVM+1}, s{S_EVM+1}, 1""")

def attn_prologue(b):
    T = S_T
    b(f"""s_lshl_b32 s{S_A0}, s{S_RT}, 2
    s_add_u32 s{S_A}, s{S_A0}, s{S_W}
    v_lshlrev_b32 v{V_L16}, 4, v1
    v_lshrrev_b32 v2, 4, v1
    v_lshlrev_b32 v2, 2, v2
    v_and_b32 v3, 15, v1
    v_mov_b32 v{VT+15}, 0xf149f2ca
    v_mov_b32 v{V_P}, v{V_L16}
    v_mov_b32 v6, 0x3f803f80""")
    for j in range(4):
        b(f"v_add_u32 v7, {j}, v2\nv_cmp_gt_u32 {sr(S_MASK+2*j, 2)}, v7, v3\nv_accvgpr_write_b32 a{ONES+j}, v6")
    wt1(b)
    for r in list(range(OA, LB+8)) + list(range(CA, CA+16)): b(f"v_mov_b32 v{r}, 0")
    b(f"v_mov_b32 v6, 0\ns_cmp_lg_u32 s{S_A}, 0\ns_cbranch_scc1 LA_nomask0")
    mask_c(b, CA, [6, 6])
    b("LA_nomask0:")
    late_setup(b)
    b("s_waitcnt vmcnt(22)\ns_barrier")
    for f in range(8): b(rdK(f))
    b("s_waitcnt vmcnt(14)\ns_barrier\ns_waitcnt lgkmcnt(0)")
    b.ext(qk(SX, QA, CA)); b.ext(qk(SY, QB, 0, czero=True))
    b.ext(ADV)
    for f in range(8): b(rdK(f))
    b.ext(ADV)
    for f in range(8): b(rdV(f))
    for (S, C, tb) in ((SX, CA, VT), (SY, CB, VT+4)):
        for qs in range(2):
            r = S + qs*8; m = tb + 2*qs
            b(f"""v_max3_f32 v{m}, v{r}, v{r+1}, v{r+2}
            v_max3_f32 v{m+1}, v{r+3}, v{r+4}, v{r+5}
            v_max3_f32 v{m}, v{m}, v{r+6}, v{r+7}
            v_max_f32 v{m}, v{m}, v{m+1}
            v_mov_b32 v{m+1}, v{m}""")
    b("s_nop 1")
    for m in (VT, VT+2, VT+4, VT+6): b(f"v_permlane32_swap_b32 v{m}, v{m+1}")
    for m in (VT, VT+2, VT+4, VT+6): b(f"v_max_f32 v{m}, v{m}, v{m+1}\nv_mov_b32 v{m+1}, v{m}")
    b("s_nop 1")
    for m in (VT, VT+2, VT+4, VT+6): b(f"v_permlane16_swap_b32 v{m}, v{m+1}")
    for m in (VT, VT+2, VT+4, VT+6): b(f"v_max_f32 v{m}, v{m}, v{m+1}\nv_sub_f32 v{m}, 0, v{m}")
    for (S, C, tb) in ((SX, CA, VT), (SY, CB, VT+4)):
        for qs in range(2):
            for k in range(8):
                b(f"v_add_f32 v{S+qs*8+k}, v{S+qs*8+k}, v{tb+2*qs}")
                b(f"v_mov_b32 v{C+qs*8+k}, v{tb+2*qs}")
    e, c = softmax_ops(SX, PX)
    b.ext(e); b.ext(c)
    b(f"""s_mov_b32 s{S_N}, 0
    s_mov_b32 s89, 0
    s_waitcnt vmcnt(10) lgkmcnt(0)
    s_barrier""")

N_WT2, N_WTF, N_CT = 4, 9, 30
FIXED = (N_WT2, N_WTF, 30, 31)
ACT = sum(1 << n for n in (N_WT2, N_WTF, N_CT, 31))
def handler(cx, b, ool):
    T = S_T
    acts = {}
    b("LA_H:")
    if "evst" in cx.opts:
        b(f"""s_memtime s[90:91]
        s_waitcnt lgkmcnt(0)
        s_mov_b32 m0, s89
        s_nop 0
        s_movreld_b32 s74, s90
        s_movreld_b32 s60, s{S_N}
        s_add_u32 s89, s89, 1""")
        cx.nst = 14
    b(f"""s_cmp_eq_u32 s{S_N}, 32
    s_cbranch_scc1 LA_fin
    s_add_u32 s{T}, s{S_N}, 1
    s_lshr_b64 s[{T+4}:{T+5}], s[{S_EVM}:{S_EVM+1}], s{T}
    s_ff1_i32_b64 s{S_EV}, s[{T+4}:{T+5}]
    s_add_u32 s{S_EV}, s{S_EV}, s{T}
    s_cmp_eq_u32 s{T}, s{S_A}
    s_cbranch_scc1 LA_e1
    LA_e1r:
    s_sub_u32 s{T}, s{S_N}, 5
    s_cmp_eq_u32 s{T}, s{S_A0}
    s_cbranch_scc1 LA_fa
    LA_far:
    s_mov_b32 s{T}, {ACT}
    s_bitcmp1_b32 s{T}, s{S_N}
    s_cbranch_scc1 LA_act
    LA_sel:
    s_cmp_ge_u32 s{S_N}, 30
    s_cbranch_scc1 LA_sel0
    s_cmp_gt_u32 s{S_N}, s{S_A}
    s_cbranch_scc1 LA_O2
    s_cmp_eq_u32 s{S_N}, s{S_A}
    s_cbranch_scc1 LA_T2
    s_add_u32 s{T}, s{S_N}, 2
    s_cmp_gt_u32 s{T}, s{S_A0}
    s_cbranch_scc1 LA_S2
    s_branch LA_S1
    LA_sel1:
    s_cmp_eq_u32 s{S_A}, 31
    s_cbranch_scc1 LA_T0L
    s_branch LA_O0L
    LA_sel0:
    s_cmp_eq_u32 s{S_N}, 31
    s_cbranch_scc1 LA_sel1
    s_cmp_gt_u32 s{S_N}, s{S_A}
    s_cbranch_scc1 LA_O0
    s_cmp_eq_u32 s{S_N}, s{S_A}
    s_cbranch_scc1 LA_T0
    s_branch LA_S0""")
    e1 = Blk(); e1(f"v_mov_b32 v{VT}, v{CA}"); mask_c(e1, CA, [VT, CA+8])
    ool("LA_e1:"); ool.ext(e1); ool("s_branch LA_e1r")
    fa = Blk(); fin_tile(fa, OA, LA, True, None)
    ool("LA_fa:"); ool.ext(fa); ool("s_branch LA_far")
    e4 = Blk(); e4(f"v_mov_b32 v{VT}, v{CB}"); mask_c(e4, CB, [VT, CB+8]); acts[31] = e4
    w2 = Blk(); wt2(w2); w2("s_waitcnt lgkmcnt(0)")
    for pre, d, tag in wt_stores(): w2.ext(pre); w2(d)
    acts[N_WT2] = w2
    w3 = Blk(); w3(f"s_lshl_b32 s{T}, s2, 3\ns_add_u32 s{T}, s{T}, {F_WT}"); flag_store(w3, T, "LA_wf")
    acts[N_WTF] = w3
    if "noct2" not in cx.opts:
        w4 = Blk(); su, ld = code_touch("b", "LA_fin", T, 8, 1)
        for x in su + ld: w4.ext([x] if isinstance(x, str) else x)
        acts[N_CT] = w4
    else: acts[N_CT] = Blk()
    ool("LA_act:")
    keys = sorted(acts)
    for n in keys[:-1]: ool(f"s_cmp_eq_u32 s{S_N}, {n}\ns_cbranch_scc1 LA_act{n}")
    for n in reversed(keys):
        ool(f"LA_act{n}:"); ool.ext(acts[n]); ool("s_branch LA_sel")
    return e1.l, fa.l, {n: a.l for n, a in acts.items()}

def fin_tile(b, O, L, isA, hook):
    T = S_T
    if isA:
        b(f"""s_lshl_b32 s{T}, s{S_H}, 12
        s_add_u32 s{T}, s{T}, {WS_CTX}
        s_mul_i32 s{T+1}, s{S_A}, {2*STA}
        s_add_u32 s{T}, s{T}, s{T+1}""")
    for qs in range(2): b(f"v_rcp_f32 v{VT+8+2*qs}, v{L+4*qs}")
    for qs in range(2): b(f"v_mov_b32 v{VT+9+2*qs}, v{VT+8+2*qs}")
    for qs in range(2):
        if qs and isA: b(f"s_add_u32 s{T}, s{T}, {STA}")
        for s in range(4):
            t = O + (qs*4 + s)*4
            r = O + (qs*8 + 2*s)*4
            for k in range(4): b(f"v_pk_mul_f32 v[{r+2*k}:{r+2*k+1}], v[{r+2*k}:{r+2*k+1}], v[{VT+8+2*qs}:{VT+9+2*qs}]")
            if hook: hook()
            for k in range(4): b(f"v_cvt_pk_bf16_f32 v{t+k}, v{r+2*k}, v{r+2*k+1}")
            if hook: hook()
            if isA: b(f"buffer_store_dwordx4 {vr(t)}, v{V_L16}, {sr(SRD_WS)}, s{T} offen offset:{s*1024}{SC}")
def ctxb_stores():
    return [([f"s_add_u32 s{S_WO2}, s{S_WO2}, {STA}"] if k == 4 else [],
             f"buffer_store_dwordx4 {vr(OB + 4*k)}, v{V_L16}, {sr(SRD_WS)}, s{S_WO2} offen offset:{(k&3)*1024}{SC}", "ctx") for k in range(8)]

def slow_tile(b, lab, O, L, Q, isA):
    T = S_T; M0, AL, X = VT, VT + 2, VT + 4
    b(f"{lab}:")
    b(f"s_mov_b32 s{S_EV}, s{S_A}" if isA else f"s_sub_u32 s{S_EV}, 63, s{S_A}")
    b(f"""s_waitcnt vmcnt(0) lgkmcnt(0)
    s_mul_i32 s{S_SRC}, s{S_H}, {KV_HS}
    s_mov_b32 s{S_N}, 0
    s_nop 7
    v_mov_b32 v{M0}, v{VT+15}
    v_mov_b32 v{M0+1}, v{VT+15}""")
    for r in list(range(O, O + 64)) + list(range(L, L + 8)) + list(range(CA, CA + 16)): b(f"v_mov_b32 v{r}, 0")
    b(f"{lab}_l:")
    for f in range(8):
        if f % 2 == 0: b(f"s_add_u32 s{T}, s{S_SRC}, {(f>>1)*4096}\ns_add_u32 s{T+1}, s{T}, 32768")
        b(f"buffer_load_dwordx4 {ar(KF + 4*f)}, v{V_L16}, {sr(SRD_WS)}, s{T} offen offset:{(f&1)*1024} sc1")
        b(f"buffer_load_dwordx4 {ar(VF + 4*f)}, v{V_L16}, {sr(SRD_WS)}, s{T+1} offen offset:{2048 + (f&1)*1024} sc1")
    b(f"s_cmp_lg_u32 s{S_N}, s{S_EV}\ns_cbranch_scc1 {lab}_nm\nv_mov_b32 v{X}, 0")
    mask_c(b, CA, [X, X])
    b(f"{lab}_nm:\ns_waitcnt vmcnt(0)")
    b.ext(qk(SX, Q, CA))
    b("s_nop 7")
    for qs in range(2):
        r = SX + qs*8; m = X + 2*qs
        b(f"""v_max3_f32 v{m}, v{r}, v{r+1}, v{r+2}
        v_max3_f32 v{m+1}, v{r+3}, v{r+4}, v{r+5}
        v_max3_f32 v{m}, v{m}, v{r+6}, v{r+7}
        v_max3_f32 v{m}, v{m}, v{m+1}, v{M0+qs}
        v_mov_b32 v{m+1}, v{m}""")
    for sw in ("v_permlane32_swap_b32", "v_permlane16_swap_b32"):
        b("s_nop 1")
        for qs in range(2): b(f"{sw} v{X+2*qs}, v{X+2*qs+1}")
        for qs in range(2): b(f"v_max_f32 v{X+2*qs}, v{X+2*qs}, v{X+2*qs+1}\nv_mov_b32 v{X+2*qs+1}, v{X+2*qs}")
    for qs in range(2):
        b(f"v_sub_f32 v{X+4+2*qs}, v{M0+qs}, v{X+2*qs}\nv_mov_b32 v{M0+qs}, v{X+2*qs}\nv_exp_f32 v{X+4+2*qs}, v{X+4+2*qs}")
        for k in range(8): b(f"v_sub_f32 v{SX+qs*8+k}, v{SX+qs*8+k}, v{M0+qs}")
    e, c = softmax_ops(SX, PX)
    b.ext(e); b.ext(c)
    for qs in range(2):
        for r in list(range(O + qs*32, O + qs*32 + 32)) + list(range(L + 4*qs, L + 4*qs + 4)): b(f"v_mul_f32 v{r}, v{r}, v{X+4+2*qs}")
    b("s_nop 1")
    b.ext(pv(O, L, PX))
    b(f"""s_add_u32 s{S_SRC}, s{S_SRC}, 16384
    s_add_u32 s{S_N}, s{S_N}, 1
    s_cmp_le_u32 s{S_N}, s{S_EV}
    s_nop 7
    s_cbranch_scc1 {lab}_l""")
    if isA: fin_tile(b, OA, LA, True, None)
    b(f"s_branch {lab}_ret")

def finalize(cx, b, vm, ool):
    T = S_T
    b("LA_fin:")
    cx.stamp(b)
    b("s_waitcnt lgkmcnt(0)\ns_barrier")
    b(f"s_cmp_lg_u32 s{S_RT}, 7\ns_cbranch_scc1 LA_fin2")
    fin_tile(b, OA, LA, True, None)
    b("LA_fin2:")
    b.ext(pv(OB, LB, PX))
    b(f"""    v_add_f32 v{VT+1}, v{LA}, v{LA+4}
    v_mov_b32 v{VT+2}, 0x5d800000
    v_cmp_nle_f32 vcc, v{VT+1}, v{VT+2}
    s_nop 1
    s_cbranch_vccnz LA_slowA
    LA_slowA_ret:
    v_mov_b32 v{VT+2}, 0x5d800000
    s_nop 0
    v_add_f32 v{VT+1}, v{LB}, v{LB+4}
    v_cmp_nle_f32 vcc, v{VT+1}, v{VT+2}
    s_nop 1
    s_cbranch_vccnz LA_slowB
    LA_slowB_ret:""")
    sa = Blk(); slow_tile(sa, "LA_slowA", OA, LA, QA, True); sb = Blk(); slow_tile(sb, "LA_slowB", OB, LB, QB, False)
    ool.ext(sa); ool.ext(sb)
    cx.slow = sa.l + sb.l
    b.ext(B.setup_s())
    dm = [x + (("B", st),) for st in range(2) for x in B.dma_stage(st)]
    b(f"""s_lshl_b32 s{T}, s{S_H}, 12
    s_add_u32 s{T}, s{T}, {WS_CTX}
    s_mul_i32 s{T+1}, s{S_A}, {2*STA}
    s_sub_u32 s{T+1}, {126*STA}, s{T+1}
    s_add_u32 s{S_WO2}, s{T}, s{T+1}""")
    def emit_dma(n=1):
        for _ in range(n):
            if dm:
                pre, d, tag = dm.pop(0)
                b.ext(pre)
                if pre: b("s_nop 0")
                b(d); vm.issue(tag)
    emit_dma(8)
    fin_tile(b, OB, LB, False, emit_dma)
    return dm

def build_attn(cx, b, ool):
    hb = Blk(); e1, fa, acts = handler(cx, hb, ool); b.ext(hb)
    bodies = {}
    for nm in ("S1", "S2", "T2", "O2", "S0", "T0", "O0", "T0L", "O0L"):
        raw = body(nm[0], int(nm[1]), nm.endswith("L"))
        import re
        if "a_novm" in cx.opts: raw = [re.sub(r"vmcnt\(\d+\) ", "", x) for x in raw]
        if "a_nodma" in cx.opts: raw = [x for x in raw if not x.startswith("buffer_load")]
        if "a_nobar" in cx.opts: raw = [x for x in raw if x != "s_barrier"]
        if "a_nods" in cx.opts: raw = [x for x in raw if not x.startswith("ds_read")]
        if "a_noexp" in cx.opts: raw = [x for x in raw if not x.startswith("v_exp")]
        if "a_nosc1" in cx.opts: raw = [x.replace(" sc1", "") for x in raw]
        bodies[nm] = loop_waits(raw)
        b(f".p2align 6\nLA_{nm}:")
        b.ext(bodies[nm])
        b(f"s_cbranch_scc1 LA_{nm}\ns_branch LA_H")
    def trace(i, w):
        a0 = 4*i; a = a0 + w
        tr = []
        for n in range(32):
            if n + 1 == a: tr += e1
            if n == a0 + 5: tr += fa
            tr += acts.get(n, [])
            tr += ["s_nop 0"] * 3
            mode = "S" if n < a else ("T" if n == a else "O")
            nb = 0 if n >= 30 else (2 if n + 2 > a0 else 1)
            tr += bodies[mode + str(nb) + ('L' if n == 31 else '')]
        return tr
    return trace
```

```python
from g_common import *
S_R0, S_MX, S_MW, S_OX, S_OW, T = 48, 49, 51, 52, 53, 54
STG = 49152
V_XD, V_WD, V_XA, V_WA = 200, 203, 212, 214
HI = [16, 17, 18, 19, 20, 21]
TV = (184, 185, 186, 187, 188)
ACC = 112
XF, WF = [0, 36], [20, 56]
RS = 520
def touch():
    b = Blk()
    srd(b, SRD_X, 16, SZ['B_x']); srd(b, SRD_A, 18, SZ['B_wqkv'])
    b(f"""s_lshl_b32 s{T}, s{S_Q}, 2
    s_add_u32 s{T}, s{T}, s{S_W}
    s_and_b32 s{T+1}, s2, 6
    s_mul_i32 s{T+1}, s{T+1}, {256*1280}
    s_max_u32 s{T+1}, s{T+1}, {16*1280}
    s_sub_u32 s{T+1}, s{T+1}, {16*1280}
    s_mul_i32 s{T+2}, s{T}, 5376
    s_add_u32 s{T+2}, s{T+2}, s{T+1}
    v_lshlrev_b32 v0, 7, v1""")
    b.ext(oob_mask(0, 42, 2))
    b(f"""buffer_load_dword a248, v0, {sr(SRD_X)}, s{T+2} offen
    s_and_b32 s{T+1}, s2, 1
    s_mul_i32 s{T+1}, s{T+1}, 640
    s_mul_i32 s{T+2}, s{T}, {5*3840}
    s_add_u32 s{T+2}, s{T+2}, s{T+1}
    s_add_u32 s{T+1}, s{T+2}, {4*3840}
    v_mul_u32_u24 v2, 4370, v1
    v_lshrrev_b32 v2, 16, v2
    v_mul_u32_u24 v3, 15, v2
    v_sub_u32 v3, v1, v3
    v_mul_u32_u24 v0, 52, v3
    v_lshrrev_b32 v0, 8, v0
    v_mul_u32_u24 v0, 640, v0
    v_lshl_add_u32 v0, v3, 7, v0
    v_mul_u32_u24 v2, 3840, v2
    v_add_u32 v0, v0, v2
    v_mov_b32 v6, v0""")
    b.ext(oob_mask(0, 60, 2)); b.ext(oob_mask(6, 15, 2))
    b(f"""buffer_load_dword a249, v0, {sr(SRD_A)}, s{T+2} offen
    buffer_load_dword a250, v6, {sr(SRD_A)}, s{T+1} offen""")
    return b.l
def setup_early(V_XD=32, V_WD=35, V_XA=44, V_WA=46, TV=(50, 51, 52, 53, 54)):
    b = Blk()
    t0, t2, t3, t4, t5 = TV
    b(f"""s_lshl_b32 s{T+1}, s{S_RB}, 6
    s_mul_i32 s{T}, s{S_W}, 24
    s_add_u32 s{T}, s{T}, s{T+1}
    s_sub_u32 s{T}, s{T}, 16
    s_and_b32 s{T+1}, s{S_W}, 1
    s_lshl_b32 s{T+1}, s{T+1}, 2
    v_lshrrev_b32 v{t2}, 3, v1
    v_add_u32 v{t2}, s{T}, v{t2}
    v_lshrrev_b32 v{t3}, 4, v1
    v_and_b32 v{t0}, 7, v1
    v_xor_b32 v{t3}, v{t3}, v{t0}
    v_xor_b32 v{t3}, s{T+1}, v{t3}""")
    for q in range(3):
        b(f"""v_add_u32 v{t0}, {8*q}, v{t2}
        v_max_i32 v{t0}, 0, v{t0}
        v_mul_u32_u24 v{t0}, 1280, v{t0}
        v_xor_b32 v{t4}, {4*(q&1)}, v{t3}
        v_lshl_add_u32 v{V_XD+q}, v{t4}, 4, v{t0}""")
    b(f"""s_mul_i32 s{T}, s{S_W}, {16*3840}
    s_mul_i32 s{T+1}, s{S_CG}, 160
    s_and_b32 s{T+1}, s{T+1}, 0xffffffc0
    s_add_u32 s{T}, s{T}, s{T+1}
    v_lshrrev_b32 v{t2}, 2, v1
    v_and_b32 v{t3}, 3, v1""")
    for p in range(9):
        d = V_WD + p
        b(f"""v_add_u32 v{t0}, {16*p}, v{t2}
        v_mul_u32_u24 v{t4}, 57, v{t0}
        v_lshrrev_b32 v{t4}, 9, v{t4}
        v_mul_u32_u24 v{d}, 9, v{t4}
        v_sub_u32 v{t0}, v{t0}, v{d}
        v_mul_u32_u24 v{d}, 86, v{t0}
        v_lshrrev_b32 v{d}, 8, v{d}
        v_mul_u32_u24 v{d}, {1280 - 192}, v{d}
        v_lshl_add_u32 v{d}, v{t0}, 6, v{d}
        v_lshrrev_b32 v{t5}, 2, v{t4}
        v_and_b32 v{t5}, 2, v{t5}
        v_xor_b32 v{t5}, v{t5}, v{t3}
        v_lshl_add_u32 v{d}, v{t5}, 4, v{d}
        v_mul_u32_u24 v{t4}, 3840, v{t4}
        v_add3_u32 v{d}, v{d}, v{t4}, s{T}""")
        if p & 3: b(f"v_subrev_u32 v{d}, {(p&3)*1024}, v{d}")
    row_addr(b, V_XA, V_XA+1, None, TV[:3])
    t0, t2, t3 = TV[:3]
    b(f"""v_lshrrev_b32 v{t0}, 4, v1
    v_lshrrev_b32 v{t2}, 2, v1
    v_and_b32 v{t2}, 3, v{t2}
    v_lshl_add_u32 v{t2}, v{t0}, 3, v{t2}
    v_mul_u32_u24 v{t2}, 576, v{t2}
    v_and_b32 v{t3}, 3, v1
    v_lshl_add_u32 v{t2}, v{t3}, 3, v{t2}
    v_add_u32 v{t2}, 12288, v{t2}
    v_and_b32 v{t0}, 1, v{t0}
    v_lshlrev_b32 v{t0}, 5, v{t0}
    s_and_b32 s{T+2}, s{S_CG}, 1
    s_lshl_b32 s{T+2}, s{T+2}, 5""")
    for j in range(4):
        b(f"""s_lshl_b32 s{T}, s{S_W}, 2
        s_add_u32 s{T}, s{T}, {j}
        s_min_u32 s{T}, s{T}, 14
        s_mul_i32 s{T+1}, s{T}, 52
        s_lshr_b32 s{T+1}, s{T+1}, 8
        s_add_u32 s{T}, s{T}, s{T+1}
        s_lshl_b32 s{T}, s{T}, 5
        s_add_u32 s{T}, s{T}, s{T+2}
        v_xor_b32 v{t3}, s{T}, v{t0}
        v_add_u32 v{V_WA+j}, v{t3}, v{t2}""")
    for k in range(18): b(f"v_accvgpr_write_b32 a{A_SAVE+k}, v{V_XD+k}")
    return b.l
def setup_s():
    b = Blk()
    srd(b, SRD_A, 16, SZ['B_x']); srd(b, SRD_B, 18, SZ['B_wqkv'])
    b(f"""s_lshl_b32 s{S_R0}, s{S_RB}, 6
    s_mul_i32 s{S_MX}, s{S_W}, 3072
    s_mul_i32 s{S_MW}, s{S_W}, 9216
    s_add_u32 s{S_MW}, s{S_MW}, 12288""")
    for k in range(12): b(f"v_accvgpr_read_b32 v{V_XD+k}, a{A_SAVE+k}")
    return b.l
def setup_rd(b):
    for k in range(6): b(f"v_accvgpr_read_b32 v{V_XA+k}, a{A_SAVE+12+k}")
    for k in range(6): b(f"v_add_u32 v{HI[k]}, {STG}, v{V_XA+k}\nv_add_u32 v{HI2[k]}, {2*STG}, v{V_XA+k}")
A_SAVE = 228
def dma_stage(st):
    items = []
    sl = (st % 3) * STG
    for q in range(3):
        pre = ([f"s_mov_b32 s{S_OX}, {st*128}"] if q == 0 else []) + [f"s_add_u32 m0, s{S_MX}, {sl + q*1024}"]
        items.append((pre, f"buffer_load_dwordx4 v{V_XD+q}, {sr(SRD_A)}, s{S_OX} offen lds"))
    for q in range(9):
        pre = []
        if q == 0: pre.append(f"s_mov_b32 s{S_OW}, {st*64*3840}")
        if q % 4 == 0: pre.append(f"s_add_u32 m0, s{S_MW}, {sl + (q>>2)*4096}")
        items.append((pre, f"buffer_load_dwordx4 v{V_WD+q}, {sr(SRD_B)}, s{S_OW} offen offset:{(q&3)*1024} lds"))
    return items
HI2 = [22, 23, 24, 25, 26, 27]
def areg(k, st): return [V_XA + k, HI[k], HI2[k]][st % 3]
def aoff(st): return 0
def rdX(kk, rs): return f"ds_read_b128 {ar(XF[kk&1] + 4*rs)}, v{areg(kk&1, kk//2)} offset:{aoff(kk//2) + rs*2048}"
def rdW(kk, j, u): return f"ds_read_b64_tr_b16 {ar(WF[kk&1] + 4*j + 2*u, 2)}, v{areg(2 + j, kk//2)} offset:{aoff(kk//2) + (32*(kk&1) + 4*u)*576}"
def reads(kk):
    r = [rdW(kk, 0, 0), rdW(kk, 0, 1)] + [rdX(kk, rs) for rs in range(5)]
    for j in range(1, 4): r += [rdW(kk, j, 0), rdW(kk, j, 1)]
    return r

CF_KK = 7
PK = 13
def gemm(cx, b, vm, extra, polls, rest, cst, chk, pref):
    setup_rd(b)
    for pre, d, tag in rest:
        b.ext(pre)
        if pre: b("s_nop 0")
        b(d); vm.issue(tag)
    b(f"""s_lshl_b32 s{T}, s{S_RT}, 8
    s_lshl_b32 s{T+1}, s{S_H}, 3
    s_add_u32 s50, s{T}, s{T+1}
    s_add_u32 s50, s50, {F_CTX}
    s_waitcnt vmcnt({vm.need(('B', 0))}) lgkmcnt(0)
    s_barrier""")
    first = reads(0); b.ext(first)
    code = []
    ssu = side_setup(); swr = side_write()
    for kk in range(20):
        st = kk // 2; ks = kk & 1
        mf = []
        for j in range(4):
            for rs in range(5):
                d = vr(ACC + (j*5 + rs)*4)
                mf.append(mfma16(d, ar(WF[ks] + 4*j), ar(XF[ks] + 4*rs), d if kk else "0"))
        f = Fill()
        if 'ost' in cx.opts and kk in (5, 10, 15):
            sb = Blk(); cx.stamp(sb); f.put(0, sb.l)
        if ks == 1 and kk + 1 < 20:
            need = [('B', st+1)] + (['ctx'] if kk == CF_KK else [])
            if kk == PK + 1 + (PK & 1): need += ['p1', 'p2']
            f.put(1, [f"s_waitcnt vmcnt({vm.need(*need)}) lgkmcnt(0)"] + (chk if kk == PK + 1 + (PK & 1) else []) + ["s_barrier"])
            if kk == CF_KK:
                sg = Blk(); flag_store(sg, 50, "LB_cf"); f.put(1, sg.l)
        if kk + 1 < 20:
            for k, r in enumerate(reads(kk+1)): f.put(2 + k, r)
        ev = []
        sn = (kk - 1) // 2 + 3
        if kk >= 1 and sn < 10:
            it = dma_stage(sn)
            sel = it[:7] if ks == 1 else [([f"s_add_u32 m0, s{S_MW}, {(sn%3)*STG + 4096}"], it[7][1])] + it[8:]
            for k, (pre, d) in enumerate(sel): ev.append((3 + 2*k, pre, d, ("B", sn)))
        if kk == 0:
            for k, (pre, d) in enumerate(dma_stage(2)): ev.append((1 + (3*k+1)//2, pre, d, ("B", 2)))
        if 1 <= kk <= 4:
            ev.append((16,) + cst[2*kk-2]); ev.append((18,) + cst[2*kk-1])
        if 0 <= kk < 13:
            n8 = (len(extra) + 12) // 13
            f.spread(extra[kk*n8:(kk+1)*n8], 2, 20)
        if kk == PK:
            for k, (pre, d, tag) in enumerate(polls): ev.append((16 + 2*k, pre, d, tag))
        if 15 <= kk < 19:
            n4 = (len(ssu) + 3) // 4
            f.spread(ssu[(kk-15)*n4:(kk-14)*n4], 2, 20)
        if kk == 19:
            f.put(1, ["s_waitcnt lgkmcnt(0)", "s_barrier"])
            for k in range(8): f.put(12 + k, swr[k])
        sel = pref[(kk-15)*5:(kk-15)*5 + 5 - (kk-15)] if kk in (15, 16) else (pref[9 + (kk-17)*6:15 + (kk-17)*6] if kk >= 17 else [])
        for k, (pre, d, tag) in enumerate(sel): ev.append((3 + 3*k, pre, d, tag))
        for g, pre, d, tag in sorted(ev, key=lambda e: e[0]):
            if pre: f.put(g - 1, pre)
            f.put(g, d); vm.issue(tag)
        code += interleave(mf, f)
    b.ext(add_lgkm_waits(code, first))
    for g_ in swr[8:]: b.ext(g_)

V_OB, S_OB = 220, 52
S_LM = 60
M = [4, 6, 8, 10, 12, 14, 16, 18]
M0 = [20, 32, 34, 36]
S_SC = 58
def side_setup():
    b = Blk()
    b(f"""v_and_b32 v2, 15, v1
    v_mul_u32_u24 v8, {RS}, v2
    v_lshrrev_b32 v3, 4, v1
    v_lshl_add_u32 v8, v3, 3, v8
    s_lshl_b32 s{T}, s{S_W}, 7
    v_add_u32 v8, s{T}, v8
""")
    b(f"""s_mul_i32 s{T}, s{S_W}, 40
    v_mul_u32_u24 v4, {2*RS}, v2
    v_lshl_add_u32 v4, v3, 4, v4
    v_add_u32 v4, s{T}, v4
    v_min_u32 v5, 7, v2
    v_mul_u32_u24 v5, {2*RS}, v5
    v_lshl_add_u32 v5, v3, 4, v5
    v_add_u32 v5, s{T}, v5
    v_lshrrev_b32 v6, 2, v1
    v_min_u32 v7, 7, v6
    v_mul_u32_u24 v6, {2*RS}, v6
    v_mul_u32_u24 v7, {2*RS}, v7
    v_and_b32 v11, 3, v1
    v_lshlrev_b32 v11, 3, v11
    v_add3_u32 v6, v6, v11, s{T}
    v_add3_u32 v7, v7, v11, s{T}
    v_mul_u32_u24 v9, {2*RS}, v2
    v_add_u32 v10, 512, v9
    v_add_u32 v11, s{T}, v9
    v_lshl_add_u32 v9, v3, 3, v11
    v_add_u32 v11, 32, v11
    v_cmp_eq_u32 vcc, 0, v3
    v_lshlrev_b32 v12, 2, v3
    v_sub_u32 v13, v12, v2
    v_cndmask_b32 v10, v10, v11, vcc
    v_cmp_gt_u32 s[38:39], 3, v3
    v_cmp_gt_u32 s[50:51], 2, v3
    s_min_u32 s{T}, s{S_RB}, 1
    s_lshl_b32 s{T}, s{T}, 3
    s_sub_u32 s{T}, 8, s{T}""")
    for t in range(2):
        for j in range(4):
            b(f"v_add_u32 v11, {16*t + j - 1 & 0xffffffff}, v13\nv_cmp_gt_u32 s[{M[4*t+j]}:{M[4*t+j]+1}], 8, v11")
    for j in range(4):
        b(f"v_add_u32 v11, {j}, v12\nv_cmp_le_u32 vcc, s{T}, v11\ns_nop 0")
        b(f"s_and_b64 s[{M0[j]}:{M0[j]+1}], vcc, s[{M[j]}:{M[j]+1}]")
    sc = (20 ** -0.5) * 1.4426950408889634
    b(f"""v_mov_b32 v14, 0xf149f2ca
    v_mov_b32 v28, 0x3f803f80
    v_mov_b32 v29, 0x3f803f80
    v_mov_b32 v30, 0x3f803f80
    v_mov_b32 v31, 0x3f803f80
    s_mov_b32 s{S_SC}, {f2u(sc)}""")
    b(f"""v_mul_u32_u24 v15, {RS}, v1
    s_lshl_b32 s{T}, s{S_W}, 4
    s_add_u32 s{T}, s{T}, {16*RS}
    v_add_u32 v15, s{T}, v15
    v_add_u32 v2, s{S_R0}, v1
    v_lshrrev_b32 v2, 4, v2
    v_mul_u32_u24 v2, {STB}, v2
    v_and_b32 v3, 15, v1
    v_lshl_add_u32 v255, v3, 4, v2
    s_mul_i32 s{T}, s{S_CG}, 10
    s_add_u32 s{T}, s{T}, s{S_W}
    s_lshl_b32 s{S_OB}, s{T}, 8
    s_add_u32 s{S_OB}, s{S_OB}, {WS_OB}
    s_lshr_b32 s{T}, s{S_W}, 1
    s_mul_i32 s{T}, s{T}, {WS_SIZE}
    s_add_u32 s{S_OB+1}, s{S_OB}, 2048
    s_max_u32 s{S_OB+1}, s{S_OB+1}, s{T}
""")
    return b.l
def side_write():
    o = []
    for j in range(4):
        for rs in range(5):
            r = ACC + (j*5 + rs)*4
            o.append([f"v_cvt_pk_bf16_f32 v{r}, v{r}, v{r+1}", f"v_cvt_pk_bf16_f32 v{r+1}, v{r+2}, v{r+3}", f"ds_write_b64 v8, v[{r}:{r+1}] offset:{rs*16*RS + j*32}"])
    return o
def side_core():
    b = Blk()
    U = []
    for u in range(4):
        par, A = u >> 1, u & 1
        base = 112 + 26*u
        q, k, S, v = base, base + 4, base + 12, base + 20 - 2
        U.append(dict(par=par, A=A, q=112 + 28*u, k=116 + 28*u, S=124 + 28*u, v=132 + 28*u))
    ph = [[], [], [], [], []]
    for d in U:
        par, A, q, k, S, v = d["par"], d["A"], d["q"], d["k"], d["S"], d["v"]
        ro = (par + 32*A) * RS
        ph[0] += [f"ds_read_b64 v[{q+2*h}:{q+2*h+1}], v4 offset:{ro + 16*RS + 8*h}" for h in range(2)]
        for t in range(2):
            va = 5 if (A and t) else 4
            ph[0] += [f"ds_read_b64 v[{k+4*t+2*h}:{k+4*t+2*h+1}], v{va} offset:{ro + 32*t*RS + 160 + 8*h}" for h in range(2)]
        for D in range(2):
            for t in range(2):
                va = 7 if (A and t) else 6
                ph[0].append(f"ds_read_b64_tr_b16 v[{v+4*D+2*t}:{v+4*D+2*t+1}], v{va} offset:{ro + 32*t*RS + 320 + 32*D}")
        ph[1] += [f"v_cndmask_b32 v{q+h}, 0, v{q+h}, s[{38 if h < 2 else 50}:{39 if h < 2 else 51}]" for h in range(4)]
    for d in U:
        q, k, S = d["q"], d["k"], d["S"]
        ph[2] += [mfma16(vr(S + 4*t), vr(k + 4*t), vr(q), "0") for t in range(2)]
    for d in U:
        q, k, S, A = d["q"], d["k"], d["S"], d["A"]
        o = []
        for t in range(2):
            for j in range(4):
                m = M0[j] if (t == 0 and A == 0) else M[4*t+j]
                o.append(f"v_cndmask_b32 v{S+4*t+j}, v14, v{S+4*t+j}, s[{m}:{m+1}]")
        o += [f"v_max3_f32 v{q}, v{S}, v{S+1}, v{S+2}", f"v_max3_f32 v{q+1}, v{S+3}, v{S+4}, v{S+5}", f"v_max3_f32 v{q}, v{q}, v{S+6}, v{S+7}",
              f"v_max_f32 v{q}, v{q}, v{q+1}", f"v_mov_b32 v{q+1}, v{q}"]
        ph[3] += o
    for sw in ("v_permlane32_swap_b32", "v_permlane16_swap_b32"):
        ph[3].append("s_nop 0")
        for d in U: ph[3].append(f"{sw} v{d['q']}, v{d['q']+1}")
        for d in U: ph[3] += [f"v_max_f32 v{d['q']}, v{d['q']}, v{d['q']+1}", f"v_mov_b32 v{d['q']+1}, v{d['q']}"]
    for d in U:
        q, k, S, v = d["q"], d["k"], d["S"], d["v"]
        ph[3].append(f"v_mul_f32 v{q}, s{S_SC}, v{q}")
        ph[3] += [f"v_fma_f32 v{S+x}, v{S+x}, s{S_SC}, -v{q}" for x in range(8)]
        ph[3] += [f"v_exp_f32 v{S+x}, v{S+x}" for x in range(8)]
        ph[3] += ["s_nop 0"] + [f"v_cvt_pk_bf16_f32 v{q+x}, v{S+2*x}, v{S+2*x+1}" for x in range(4)]
    ph[3].append("s_nop 0")
    for d in U:
        q, k, S, v = d["q"], d["k"], d["S"], d["v"]
        ph[4] += [mfma16(vr(S), vr(28), vr(q), "0"), mfma16(vr(k), vr(v), vr(q), "0"), mfma16(vr(k + 4), vr(v + 4), vr(q), "0")]
    fin = ["s_nop 1"]
    for d in U:
        q, k, S, v = d["q"], d["k"], d["S"], d["v"]
        ro = (d["par"] + 32*d["A"] + 16) * RS
        fin += [f"v_rcp_f32 v{S}, v{S}", "s_nop 0"] + [f"v_mul_f32 v{k+x}, v{k+x}, v{S}" for x in range(8)]
        fin += [f"v_cvt_pk_bf16_f32 v{k+x}, v{k+2*x}, v{k+2*x+1}" for x in range(4)]
        fin += [f"ds_write_b64 v9, v[{k}:{k+1}] offset:{ro}", f"ds_write_b64 v10, v[{k+2}:{k+3}] offset:{ro}"]
    b.ext(ph[0]); b.ext(ph[1]); b("s_nop 1"); b.ext(ph[2]); b("s_nop 1")
    return b.l, ph[3] + ph[4] + fin
def side_gather():
    b = Blk()
    for k in range(3):
        for u in range(2): b(f"ds_read_b64 v[{112+4*k+2*u}:{113+4*k+2*u}], v15 offset:{64*k + 8*u}")
    b("s_waitcnt lgkmcnt(0)")
    b(f"buffer_store_dwordx4 {vr(112)}, v255, {sr(SRD_WS)}, s{S_OB} offen{SC}")
    b(f"buffer_store_dwordx4 {vr(116)}, v255, {sr(SRD_WS)}, s{S_OB} offen offset:1024{SC}")
    b(f"buffer_store_dwordx4 {vr(120)}, v255, {sr(SRD_WS)}, s{S_OB+1} offen{SC}")
    return b.l
```

```python
from common import *
from sched import *
import struct
def f2u(x): return struct.unpack("<I", struct.pack("<f", x))[0]
S_W, S_H, S_RT = 28, 29, 30
S_Q = 31
SRD_A, SRD_B, SRD_WS, SRD_X = 32, 36, 40, 44
S_RB, S_CG = 100, 101
WS_FLAG = 67 << 20
F_CTX = WS_FLAG
F_KV = WS_FLAG + 4096
F_WT = WS_FLAG + 8192 + 4096
F_OB = WS_FLAG + 16384
S_NC = 0
WS_SIZE = 76 << 20
WS_STAMP = 200 << 20
SC = " sc1"
class Ctx:
    def __init__(self, dev, opts): self.dev = dev; self.opts = opts; self.nst = 0; self.cnt = 0
    def stamp(self, b, wait=True):
        if not self.dev: return
        k = self.nst; self.nst += 1
        if 'only' in self.opts and not ((self.opts['only'] >> self.cnt) & 1):
            self.nst -= 1; self.cnt += 1; return
        self.cnt += 1
        assert k < 14, k
        b(f"s_memrealtime s[88:89]\ns_memtime s[90:91]\ns_waitcnt lgkmcnt(0)\ns_mov_b32 s{60+k}, s88\ns_mov_b32 s{74+k}, s90")
    def stamp_store(self, b, pfx):
        if not self.dev: return
        b(f"""s_waitcnt lgkmcnt(0)
        s_cmp_lg_u32 s{S_W}, {self.opts.get('sw', 0)}
        s_cbranch_scc1 {pfx}_nost
        s_mov_b32 s{SRD_WS+2}, {SZ['ws']}
        s_lshl_b32 s48, s2, 7
        s_add_u32 s48, s48, {WS_STAMP}
        v_mov_b32 v2, 0""")
        for k in range(self.nst):
            b(f"v_mov_b32 v3, s{60+k}\nbuffer_store_dword v3, v2, {sr(SRD_WS)}, s48 offen offset:{4*k}")
            b(f"v_mov_b32 v3, s{74+k}\nbuffer_store_dword v3, v2, {sr(SRD_WS)}, s48 offen offset:{64+4*k}")
        b(f"{pfx}_nost:")
class Fill(dict):
    def put(self, g, x):
        self.setdefault(g, []).extend([x] if isinstance(x, str) else list(x))
    def spread(self, items, lo, hi):
        n = len(items)
        for k, it in enumerate(items): self.put(lo + (k * (hi - lo)) // max(n, 1), it)
def lines(s): return [x.strip() for x in s.split("\n") if x.strip()]

def flag_store(b, s_off, lab, vt=(0, 2), s_off2=None):
    b(f"""s_cmp_lg_u32 s{S_W}, 0
    s_cbranch_scc1 {lab}
    v_mov_b32 v{vt[1]}, s{S_NC}
    v_mov_b32 v{vt[1]+1}, s{S_NC+1}
    v_mov_b32 v{vt[0]}, 0
    s_mov_b64 exec, 1
    buffer_store_dwordx2 v[{vt[1]}:{vt[1]+1}], v{vt[0]}, {sr(SRD_WS)}, s{s_off} offen sc1""")
    if s_off2 is not None: b(f"buffer_store_dwordx2 v[{vt[1]}:{vt[1]+1}], v{vt[0]}, {sr(SRD_WS)}, s{s_off2} offen sc1")
    b(f"""s_mov_b64 exec, -1
    {lab}:""")
def flag_load(vdat, voff, s_off):
    return f"buffer_load_dwordx2 v[{vdat}:{vdat+1}], v{voff}, {sr(SRD_WS)}, s{s_off} offen sc1"
def flag_check(lab, vdat):
    return [f"v_cmp_ne_u64 vcc, s[{S_NC}:{S_NC+1}], v[{vdat}:{vdat+1}]", "s_nop 1", f"s_cbranch_vccnz {lab}", f"{lab}_ret:"]
def flag_spin(lab, vdat, voff, s_off, st, sleep=8):
    b = Blk()
    b(f"""{lab}:
    s_mov_b32 s{st}, 0x10000
    {lab}_l:
    s_sleep {sleep}
    {flag_load(vdat, voff, s_off)}
    s_sub_u32 s{st}, s{st}, 1
    s_cmp_eq_u32 s{st}, 0
    s_waitcnt vmcnt(0)
    s_cbranch_scc1 {lab}_ret
    v_cmp_ne_u64 vcc, s[{S_NC}:{S_NC+1}], v[{vdat}:{vdat+1}]
    s_nop 1
    s_cbranch_vccnz {lab}_l
    s_branch {lab}_ret""")
    return b

def tr_addr(b, dsts, base, rowshift, vt, xor_s=None):
    a, c, d = vt
    b(f"""v_lshrrev_b32 v{a}, 4, v1
    v_lshrrev_b32 v{c}, 2, v1
    v_and_b32 v{c}, 3, v{c}
    v_lshl_add_u32 v{d}, v{a}, 3, v{c}
    v_lshlrev_b32 v{d}, {rowshift}, v{d}
    v_add_u32 v{d}, {base}, v{d}
    v_and_b32 v{a}, 1, v{a}
    v_lshlrev_b32 v{a}, 1, v{a}
    v_lshl_or_b32 v{a}, v{c}, 2, v{a}
    v_and_b32 v{c}, 1, v1
    v_lshl_add_u32 v{d}, v{c}, 3, v{d}
    v_lshrrev_b32 v{c}, 1, v1
    v_and_b32 v{c}, 1, v{c}
    v_xor_b32 v{a}, v{a}, v{c}""")
    if xor_s is not None: b(f"v_xor_b32 v{a}, s{xor_s}, v{a}")
    for ct, r in enumerate(dsts): b(f"v_xor_b32 v{c}, {2*ct}, v{a}\nv_lshl_add_u32 v{r}, v{c}, 4, v{d}")
def row_addr(b, d0, d1, base, vt):
    a, c, d = vt
    b(f"""v_and_b32 v{a}, 15, v1
    v_lshrrev_b32 v{c}, 1, v{a}
    v_lshlrev_b32 v{a}, 7, v{a}""")
    if base is not None: b(f"v_add_u32 v{a}, {base}, v{a}")
    b(f"""v_lshrrev_b32 v{d}, 4, v1
    v_xor_b32 v{c}, v{c}, v{d}
    v_lshl_add_u32 v{d0}, v{c}, 4, v{a}
    v_xor_b32 v{c}, 4, v{c}
    v_lshl_add_u32 v{d1}, v{c}, 4, v{a}""")
def oob_mask(v, n, vt):
    return [f"v_cmp_gt_u32 vcc, {n}, v1", f"v_mov_b32 v{vt}, 0x40000000", "s_nop 0", f"v_cndmask_b32 v{v}, v{vt}, v{v}, vcc"]

def code_touch(tag, start, sp, v, n=1):
    su = [[f"s_getpc_b64 s[{sp}:{sp+1}]", f"L_ct{tag}:"], f"s_lshl_b32 s{sp+2}, s{S_W}, 13", f"s_add_u32 s{sp+2}, s{sp+2}, {start} - L_ct{tag}",
          f"v_lshlrev_b32 v{v}, 7, v1", f"v_add_u32 v{v}, s{sp+2}, v{v}", f"s_mov_b32 s{sp+2}, L_codeend - L_ct{tag} - 4"]
    ld = []
    for k in range(n):
        ld.append(([f"v_add_u32 v{v}, 0x8000, v{v}"] if k else []) + [f"v_min_u32 v{v+1}, s{sp+2}, v{v}", f"global_load_dword a{252+k}, v{v+1}, s[{sp}:{sp+1}]"])
    return su, ld
```

```python
from g_common import *
import g_q as Q
S_OFFA, S_OFFB, S_CNT, S_M0, S_CC, S_CO, T = 48, 49, 50, 51, 52, 53, 54
V_C, V_W, V_RA, V_WA, V_RB = 4, 12, 20, 22, 30
A_WF = [32, 96]; A_RF = 160; A_WT = 224
CS = {0: 65536, 1: 131072, 2: 0}
WP = [32768, 98304]
S_KVST = 58
def acc(r, c):
    t = r * 8 + c
    return vr(32 + 4 * t) if t < 56 else ar(4 * (t - 56))
def wf(s, ct, ks): return A_WF[s] + (ct * 2 + ks) * 4
def rf(r, ks): return A_RF + (r * 2 + ks) * 4
def rd_R(r, ks): return f"ds_read_b128 {ar(rf(r, ks))}, v{V_RA+ks} offset:{r*2048}"
def rd_W(s, ct, ks, u): return f"ds_read_b64_tr_b16 {ar(wf(s, ct, ks) + 2*u, 2)}, v{V_WA+ct} offset:{(32*ks + 4*u)*256}"
def dC(p): return f"buffer_load_dwordx4 v{V_C+p}, {sr(SRD_A)}, s{S_OFFA} offen offset:{(p&3)*1024} lds"
def dW(p): return f"buffer_load_dwordx4 v{V_W+p}, {sr(SRD_B)}, s{S_OFFB} offen offset:{(p&3)*1024} nt lds"
def flatC(base):
    o = []
    for p in range(8):
        if p % 4 == 0: o += [f"s_add_u32 m0, s{S_M0}, {base + (p>>2)*4096}", "s_nop 0"]
        o.append(dC(p))
    return o + [f"s_add_u32 s{S_OFFA}, s{S_OFFA}, 128"]
def flatW(base):
    o = []
    for p in range(8):
        if p % 4 == 0: o += [f"s_add_u32 m0, s{S_M0}, {base + (p>>2)*4096}", "s_nop 0"]
        o.append(dW(p))
    return o + [f"s_add_u32 s{S_OFFB}, s{S_OFFB}, {64*8192}"]

def cvt_frag(dst, s0, s1):
    return [f"v_cvt_pk_bf16_f32 v{dst}, v{s0}, v{s0+1}", f"v_cvt_pk_bf16_f32 v{dst+1}, v{s0+2}, v{s0+3}",
            f"v_cvt_pk_bf16_f32 v{dst+2}, v{s1}, v{s1+1}", f"v_cvt_pk_bf16_f32 v{dst+3}, v{s1+2}, v{s1+3}"]


S_TA, S_TB = 92, 93
XL = 54
def tinit(cx):
    b = Blk()
    srd(b, SRD_X, 4, SZ['A_x']); srd(b, 96, 8, SZ['A_wq'])
    b(f"""s_lshl_b32 s94, s{S_Q}, 2
    s_add_u32 s94, s94, s{S_W}
    s_mul_i32 s{S_TA}, s94, {160*128}
    s_mul_i32 s{S_TB}, s94, {5*8192}
    s_and_b32 s{T}, s2, 7
    s_lshl_b32 s{T}, s{T}, 10
    s_add_u32 s{S_TB}, s{S_TB}, s{T}
    s_sub_u32 s{S_TB}, s{S_TB}, {2*8192}
    v_lshlrev_b32 v0, 7, v1
    v_lshrrev_b32 v2, 3, v1
    v_lshlrev_b32 v2, 13, v2
    v_and_b32 v3, 7, v1
    v_lshl_add_u32 v2, v3, 7, v2""")
    if "xl" not in cx.opts: b(f"s_lshl_b32 s{S_TA}, s2, 2\ns_add_u32 s{S_TA}, s{S_TA}, s{S_W}\ns_mul_i32 s{S_TA}, s{S_TA}, {21*128}")
    global XL; XL = 7 if 'xl' not in cx.opts else 54
    b(f"""s_cmp_eq_u32 s{S_W}, 2
    s_cselect_b32 s{SRD_WS}, s16, s14
    s_cselect_b32 s{SRD_WS+1}, s17, s15
    s_lshl_b32 s{T}, s2, 1
    s_add_u32 s{T}, s{T}, s{S_W}
    s_cmp_eq_u32 s{S_W}, 2
    s_cselect_b32 s{T}, s2, s{T}
    s_mul_i32 s95, s{T}, 10240
    s_mul_i32 s{T}, s2, 9600
    s_mov_b32 s{T+1}, 10240
    s_cmp_eq_u32 s{S_W}, 3
    s_cselect_b32 s{SRD_WS}, s18, s{SRD_WS}
    s_cselect_b32 s{SRD_WS+1}, s19, s{SRD_WS+1}
    s_cselect_b32 s95, s{T}, s95
    s_cselect_b32 s{T}, 9600, s{T+1}
    s_add_u32 s{SRD_WS+2}, s95, s{T}""")
    b(f"s_mov_b32 s{SRD_WS+2}, 0")
    b.ext(oob_mask(0, XL, 3)); b.ext(oob_mask(2, 0 if 'wn' in cx.opts else 16, 3))
    return b.l
def tlb_warm(b, cx):
    if "tlb" not in cx.opts: return
    R = 96
    b(f"""s_mov_b32 s{R}, s26
    s_mov_b32 s{R+1}, s27
    s_mov_b32 s{R+2}, {WS_SIZE}
    s_mov_b32 s{R+3}, 0x20000
    s_lshl_b32 s{T}, s94, 22""")
    k = 20
    for nm, p in (('A_wo', 14), ('B_x', 16), ('B_wqkv', 18), ('B_wo', 20), ('out', 22), ('A_x', 4), ('A_wq', 8)):
        for half in range((SZ[nm] + (4 << 20) - 1) // (4 << 20)):
            b(f"""s_cmp_eq_u32 s94, {k}
            s_cselect_b32 s{R}, s{p}, s{R}
            s_cselect_b32 s{R+1}, s{p+1}, s{R+1}
            s_cselect_b32 s{R+2}, {SZ[nm]}, s{R+2}
            s_cselect_b32 s{T}, {half << 22}, s{T}""")
            k += 1
    b(f"""v_lshlrev_b32 v3, 16, v1
    buffer_load_dword a252, v3, s[{R}:{R+3}], s{T} offen""")

def tnext(): return [f"s_add_u32 s{S_TA}, s{S_TA}, {XL*128}", f"s_add_u32 s{S_TB}, s{S_TB}, {2*8192}"]

def stage(isV, par, kind, vm=None, touch=True):
    mf = []
    for r in range(8):
        for c in range(8):
            for ks in range(2):
                A, Bq = ar(rf(r, ks)), ar(wf(par, c, ks))
                mf.append(mfma16(acc(r, c), A, Bq) if isV else mfma16(acc(r, c), Bq, A))
    f = Fill()
    if kind == 'loop':
        f.put(6, ["s_waitcnt lgkmcnt(0)", "s_barrier"])
        f.put(9, f"s_add_u32 m0, s{S_M0}, {WP[par]}"); f.put(36, f"s_add_u32 m0, s{S_M0}, {WP[par] + 4096}")
        for p, g in enumerate([10, 14, 21, 27, 37, 43, 53, 59]): f.put(g, dW(p))
        f.put(61, f"s_add_u32 s{S_OFFB}, s{S_OFFB}, {64*8192}")
    for r in range(4):
        g0, g1 = (8, 12) if r == 0 else (2, 8)
        f.put(r*16 + g0, rd_R(r+4, 0)); f.put(r*16 + g1, rd_R(r+4, 1))
    if kind != 's7':
        for ct, g in enumerate([33, 35, 39, 41, 45, 47, 51, 55]): f.put(g, f"v_xor_b32 v{V_WA+ct}, 0x10000, v{V_WA+ct}")
        f.put(63, [f"s_waitcnt vmcnt({(17 if touch else 16) if kind == 'loop' else 0}) lgkmcnt(0)", "s_barrier"])
        f.put(64, [f"s_add_u32 s{S_CO}, s{S_CC}, s{S_M0}", f"s_add_u32 s{S_CC}, s{S_CC}, 0x10000"])
        f.put(65, [f"s_cmp_eq_u32 s{S_CC}, 0x30000", f"s_cselect_b32 s{S_CC}, 0, s{S_CC}"])
        f.put(69, [f"v_add_u32 v{V_RA}, s{S_CC}, v{V_RB}", f"v_add_u32 v{V_RA+1}, s{S_CC}, v{V_RB+1}"])
        for r in range(4, 8):
            base = r * 16
            reads = []
            for ct in (2*(r-4), 2*(r-4)+1):
                for ks in range(2):
                    for u in range(2): reads.append(rd_W(1-par, ct, ks, u))
            reads.insert(4, rd_R(r-4, 0)); reads.append(rd_R(r-4, 1))
            for k, g in enumerate([2, 3, 4, 6, 7, 8, 10, 11, 12, 14]): f.put(base + g, reads[k])
    if kind == 'loop':
        if par == 1: f.put(65, [f"s_cmp_eq_u32 s{S_CNT}, 1", f"s_cselect_b32 s{SRD_A+2}, 0, s{SRD_A+2}"])
        f.put(69, f"s_mov_b32 m0, s{S_CO}"); f.put(100, f"s_add_u32 m0, s{S_CO}, 4096")
        for p, g in enumerate([73, 77, 85, 93, 101, 109, 117, 125]): f.put(g, dC(p))
        f.put(127, f"s_add_u32 s{S_OFFA}, s{S_OFFA}, 128")
        if touch and par == 1: f.put(126, tnext()[0])
        if touch and par == 0: f.put(20, tnext()[1])
        if False: f.put(121, f"buffer_load_dword a250, v3, {sr(SRD_WS)}, s95 offen"); f.put(123, f"s_add_u32 s95, s95, {14*128}")
        if touch: f.put(127, f"buffer_load_dword a{248+par}, v{2*par}, {sr(SRD_X) if par == 0 else 's[96:99]'}, s{S_TA+par} offen")
    def place(items, gs):
        for (pre, d, tag), g in zip(items, gs):
            if pre: f.put(g - 1, pre)
            f.put(g, d); vm.issue(tag)
    if kind == 's6':
        sw = Blk(); srd(sw, SRD_WS, 26, WS_SIZE)
        f.spread(sw.l + Q.setup_dma(), 0, 62)
        place(Q.dmaX(0), [69, 77, 85, 93, 101, 109, 117, 125])
    if kind == 's7':
        f.put(4, ["s_waitcnt lgkmcnt(0)", "s_barrier"])
        st = [Q.kv_store(fr) + ("kvst",) for fr in range(8)]
        place(Q.dmaW(0) + Q.dmaX(1) + Q.dmaW(1), [6, 9, 13, 16, 20, 23, 27, 30, 35, 38, 42, 45, 49, 53, 58, 62])
        if not isV:
            for r in range(7):
                ops = []
                for s in range(4):
                    fr = 4*r + s
                    ops += cvt_frag(Q.kvreg(fr), 32 + 8*fr, 36 + 8*fr)
                f.spread(ops, (r+1)*16 + 6, min((r+2)*16 + 6, 128))
        else:
            for j in range(3):
                ops = []
                for dt in range(8):
                    ops += cvt_frag(32 + 4*(8*j + dt), 32 + 64*j + 4*dt, 64 + 64*j + 4*dt)
                f.spread(ops, (2*j+2)*16 + 6, min((2*j+4)*16 + 4, 128))
        f.put(66, ["s_waitcnt lgkmcnt(0)", "s_barrier"])
        f.spread(Q.setup_rd(), 58, 98)
        x2 = Q.dmaX(2); w2 = Q.dmaW(2)
        seq = [x2[0], st[0], x2[1], st[1], x2[2], st[2], x2[3], st[3], x2[4], st[4], x2[5], st[5]]
        place(seq, [68, 71, 74, 77, 80, 83, 86, 89, 92, 95, 98, 100])
        f.put(102, [f"s_waitcnt vmcnt({vm.need(('W', 0), ('x', 0))}) lgkmcnt(0)", "s_barrier"])
        place([x2[6], st[6], x2[7], st[7]] + w2, [104, 107, 110, 113, 116, 119, 123, 126])
        f.spread(Q.first_reads(), 103, 128)
    return interleave(mf, f)

def post(isV):
    b = Blk()
    b("s_nop 5")
    for q in range(32): b(f"v_accvgpr_read_b32 v{192+q}, a{q}")
    if not isV:
        for s in range(4): b.ext(cvt_frag(Q.kvreg(28 + s), 192 + 8*s, 196 + 8*s))
    else:
        for dt in range(8): b.ext(cvt_frag(Q.kvreg(24 + dt), 224 + 4*dt, 192 + 4*dt))
    return b.l

def prologue(cx, b, vm):
    b("s_cmp_ge_u32 s2, 256\ns_cbranch_scc1 L_end")
    cx.stamp(b, wait=False)
    b("s_load_dwordx16 s[4:19], s[0:1], 0\ns_load_dwordx8 s[20:27], s[0:1], 64")
    if "noct" not in cx.opts:
        b("""s_getpc_b64 s[94:95]
        L_pc:
        v_lshlrev_b32 v2, 7, v0
        s_mov_b32 s93, L_codeend - L_pc - 4
        v_min_u32 v3, s93, v2
        global_load_dword a253, v3, s[94:95]
        v_add_u32 v2, 0x8000, v2
        v_min_u32 v3, s93, v2
        global_load_dword a254, v3, s[94:95]
        v_add_u32 v2, 0x8000, v2
        v_min_u32 v3, s93, v2
        global_load_dword a255, v3, s[94:95]""")
    b(f"""v_and_b32 v1, 63, v0
    v_lshrrev_b32 v2, 6, v0
    s_and_b32 s{T}, s2, 7
    v_readfirstlane_b32 s{S_W}, v2
    s_lshl_b32 s{S_H}, s{T}, 2
    s_lshr_b32 s{S_Q}, s2, 3
    s_and_b32 s{T+1}, s{S_Q}, 3
    s_add_u32 s{S_H}, s{S_H}, s{T+1}
    s_lshr_b32 s{S_RT}, s2, 5
    s_lshl_b32 s{S_M0}, s{S_W}, 13
    s_mov_b32 s{S_OFFA}, 0
    s_mov_b32 s{S_OFFB}, 0""")
    b(f"""s_lshl_b32 s{T}, s{S_RT}, 8
    s_lshl_b32 s{T+1}, s{S_W}, 6
    s_add_u32 s{T}, s{T}, s{T+1}
    v_lshrrev_b32 v2, 3, v1
    v_add_u32 v2, s{T}, v2
    v_lshlrev_b32 v2, 10, v2
    v_lshrrev_b32 v3, 4, v1
    v_and_b32 v30, 7, v1
    v_xor_b32 v3, v3, v30
    v_lshl_add_u32 v30, v3, 4, v2
    v_xor_b32 v3, 4, v3
    v_lshl_add_u32 v31, v3, 4, v2""")
    for p in range(8): b(f"v_add_u32 v{V_C+p}, {p*8192 - (p&3)*1024}, v{30 + (p&1)}")
    b(f"""s_and_b32 s{T}, s{S_W}, 1
    s_lshl_b32 s{T}, s{T}, 18
    s_lshl_b32 s{T+1}, s{S_H}, 8
    s_add_u32 s{T}, s{T}, s{T+1}
    v_lshrrev_b32 v2, 4, v1
    v_lshlrev_b32 v3, 2, v2
    v_lshlrev_b32 v2, 13, v2
    v_add_u32 v2, s{T}, v2
    v_and_b32 v30, 15, v1
    v_xor_b32 v3, v3, v30
    v_lshl_add_u32 v30, v3, 4, v2
    v_xor_b32 v3, 2, v3
    v_lshl_add_u32 v31, v3, 4, v2""")
    for p in range(8): b(f"v_add_u32 v{V_W+p}, {p*4*8192 - (p&3)*1024}, v{30 + ((p>>1)&1)}")
    b("s_waitcnt lgkmcnt(0)")
    srd(b, SRD_A, 6, SZ['A_c'])
    b(f"""s_cmp_lt_u32 s{S_W}, 2
    s_cselect_b32 s{SRD_B}, s10, s12
    s_cselect_b32 s{SRD_B+1}, s11, s13
    s_mov_b32 s{SRD_B+2}, {SZ['A_wuk']}
    s_mov_b32 s{SRD_B+3}, 0x20000""")
    b.ext(flatW(WP[0])); b.ext(flatC(CS[0]))
    for _ in range(16): vm.issue("s0")
    wsb = cx.opts.get("wsb", 0)
    if wsb: b(f"s_add_u32 s26, s26, {wsb << 20}\ns_addc_u32 s27, s27, 0")
    srd(b, SRD_WS, 26, WS_SIZE)
    b(f"""s_lshl_b32 s{T}, s2, 2
    s_add_u32 s{T}, s{T}, s{S_W}
    s_cmp_lg_u32 s{T}, 0
    s_cbranch_scc1 L_nonce
    s_memrealtime s[{T}:{T+1}]
    s_waitcnt lgkmcnt(0)
    s_or_b32 s{T}, s{T}, 1
    v_mov_b32 v2, s{T}
    v_mov_b32 v3, s{T+1}
    v_mov_b32 v0, 0
    s_mov_b64 exec, 1
    global_store_dwordx2 v0, v[2:3], s[24:25] sc1
    s_mov_b64 exec, -1
    L_nonce:""")
    b(f"""s_lshr_b32 s{T}, s2, 2
    s_and_b32 s{T}, s{T}, 1
    s_lshl_b32 s{T+1}, s{S_RT}, 2
    s_sub_u32 s{T+1}, 30, s{T+1}
    s_mul_i32 s{T+1}, s{T+1}, s{T}
    s_lshl_b32 s{S_RB}, s{S_RT}, 1
    s_add_u32 s{S_RB}, s{S_RB}, s{T+1}
    s_lshr_b32 s{T}, s2, 1
    s_and_b32 s{T}, s{T}, 1
    s_add_u32 s{S_RB}, s{S_RB}, s{T}
    s_and_b32 s{S_CG}, s2, 1
    s_lshl_b32 s{S_CG}, s{S_CG}, 2
    s_and_b32 s{T}, s{S_Q}, 3
    s_add_u32 s{S_CG}, s{S_CG}, s{T}""")
    b(f"""s_mul_i32 s{S_KVST}, s{S_H}, {KV_HS}
    s_lshl_b32 s{T+1}, s{S_RT}, 17
    s_add_u32 s{S_KVST}, s{S_KVST}, s{T+1}
    s_lshr_b32 s{T+1}, s{S_W}, 1
    s_lshl_b32 s{T+1}, s{T+1}, 16
    s_add_u32 s{S_KVST}, s{S_KVST}, s{T+1}
    s_and_b32 s{T+1}, s{S_W}, 1
    s_mul_i32 s{T+1}, s{T+1}, {32768 + 2048}
    s_add_u32 s{S_KVST}, s{S_KVST}, s{T+1}""")
    b(f"""s_lshr_b32 s{T}, s{S_W}, 1
    s_lshl_b32 s{T}, s{T}, 14
    v_and_b32 v2, 15, v1
    v_lshrrev_b32 v3, 1, v2
    v_lshlrev_b32 v2, 7, v2
    v_add_u32 v2, s{T}, v2
    v_lshrrev_b32 v0, 4, v1
    v_xor_b32 v3, v3, v0
    v_lshl_add_u32 v{V_RB}, v3, 4, v2
    v_xor_b32 v3, 4, v3
    v_lshl_add_u32 v{V_RB+1}, v3, 4, v2
    s_mov_b32 s{S_CC}, {CS[0]}
    v_add_u32 v{V_RA}, {CS[0]}, v{V_RB}
    v_add_u32 v{V_RA+1}, {CS[0]}, v{V_RB+1}
    s_and_b32 s{T}, s{S_W}, 1
    s_lshl_b32 s{T}, s{T}, 14
    s_add_u32 s{T}, s{T}, {WP[0]}
    v_lshrrev_b32 v2, 4, v1
    v_lshrrev_b32 v3, 2, v1
    v_and_b32 v3, 3, v3
    v_lshl_add_u32 v0, v2, 3, v3
    v_lshlrev_b32 v0, 8, v0
    v_add_u32 v0, s{T}, v0
    v_and_b32 v32, 1, v1
    v_lshl_add_u32 v0, v32, 3, v0
    v_and_b32 v2, 1, v2
    v_lshlrev_b32 v2, 1, v2
    v_lshl_or_b32 v2, v3, 2, v2
    v_lshrrev_b32 v3, 1, v1
    v_and_b32 v3, 1, v3
    v_xor_b32 v2, v2, v3""")
    for ct in range(8): b(f"v_xor_b32 v3, {2*ct}, v2\nv_lshl_add_u32 v{V_WA+ct}, v3, 4, v0")
    b(f"s_lshl_b32 s94, s{S_Q}, 2\ns_add_u32 s94, s94, s{S_W}")
    tlb_warm(b, cx)
    b.ext(tinit(cx))
    for r in range(32, 256): b(f"v_mov_b32 v{r}, 0")
    for q in range(32): b(f"v_accvgpr_write_b32 a{q}, 0")
    b.ext(flatC(CS[1])); b.ext(flatW(WP[1])); b.ext(flatC(CS[2]))
    for _ in range(24): vm.issue("s1")
    if 'notouch' not in cx.opts:
        b(f"buffer_load_dword a249, v2, s[96:99], s{S_TA} offen"); vm.issue("s1")
    b(f"s_waitcnt vmcnt({vm.need('s0')})\ns_barrier")
    for ct in range(8):
        for ks in range(2):
            for u in range(2): b(rd_W(0, ct, ks, u))
    for r in range(4):
        for ks in range(2): b(rd_R(r, ks))
    b(f"s_mov_b32 s{S_CNT}, 3")
    cx.stamp(b, wait=False)
    b(f"s_waitcnt lgkmcnt(0)\ns_bitcmp1_b32 s{S_W}, 0\ns_cbranch_scc1 LKV_V")

def build(cx, b, ool):
    pro = Blk(); vm0 = VM()
    prologue(cx, pro, vm0)
    b.ext(pro)
    tr = []
    tch = 'notouch' not in cx.opts
    for isV in (False, True):
        nm = "V" if isV else "K"
        vm = VM()
        body = loop_waits(stage(isV, 0, 'loop', touch=tch) + stage(isV, 1, 'loop', touch=tch) + [f"s_sub_u32 s{S_CNT}, s{S_CNT}, 1", f"s_cmp_lg_u32 s{S_CNT}, 0", f"s_cbranch_scc1 LKV_{nm}"])
        n0 = cx.nst; c0 = cx.cnt
        sa = Blk(); cx.stamp(sa); sb = Blk(); cx.stamp(sb)
        if not isV: cx.nst = n0; cx.cnt = c0
        tail = add_lgkm_waits(sa.l + stage(isV, 0, 's6', vm, tch) + sb.l + stage(isV, 1, 's7', vm, tch), body) + post(isV)
        b(f".p2align 6\nLKV_{nm}:")
        b.ext(body); b.ext(tail)
        if not isV: b("s_branch LKV_done")
        tr.append(pro.l + body*3 + tail)
    b("LKV_done:")
    return tr, vm
```

```python
from g_common import *
T = 54
S_OA, S_OB_, S_P1, S_P2, S_P3, S_SIG, S_MA, S_PX = 92, 93, 94, 95, 96, 97, 98, 99
SRD_O = SRD_X
ACC_A, ACC_B = 32, 112
VD, VL, VB = 224, 233, 237
V_P1, V_P2, V_D1, V_D2 = 246, 247, 248, 250
FR = [180, 216]
ASLOT = [49152, 86016, 122880]
WS_X = WS_FLAG + (1 << 20)
F_X = WS_FLAG + 24576
LD = " sc1"
def setup():
    b = Blk()
    t = 252
    b(f"""v_lshlrev_b32 v{t}, 4, v1
    s_and_b32 s{T+2}, s2, 1
    s_lshl_b32 s{T+3}, s{S_RT}, 1
    s_sub_u32 s{T+3}, 15, s{T+3}
    s_mul_i32 s{T+3}, s{T+3}, s{T+2}
    s_add_u32 s{S_P3}, s{T+3}, s{S_RT}
    s_lshr_b32 s{S_SIG}, s2, 1
    s_and_b32 s{S_SIG}, s{S_SIG}, 3
    s_and_b32 s{S_PX}, s{S_Q}, 3""")
    x0, x1, x2, x3 = VB, VB + 1, VB + 2, VB + 3
    b(f"""s_mul_i32 s{T+2}, s{S_W}, 9
    v_add_u32 v{x0}, s{T+2}, v1
    v_lshrrev_b32 v{x1}, 1, v{x0}
    v_and_b32 v{x0}, 1, v{x0}
    v_and_b32 v{x2}, 3, v1
    v_sub_u32 v{x0}, v{x0}, v{x2}
    v_lshlrev_b32 v{x0}, 10, v{x0}
    v_add_u32 v{x2}, s{S_SIG}, v{x1}
    v_and_b32 v{x2}, 3, v{x2}
    v_and_b32 v{x3}, 4, v{x1}
    s_lshl_b32 s{T+2}, s{S_P3}, 3
    v_add3_u32 v{x2}, v{x2}, v{x3}, s{T+2}
    s_mul_i32 s{T+2}, s{S_PX}, 10
    s_add_u32 s{T+2}, s{T+2}, {(WS_WOT - WS_CTX) // STA - 8}
    v_add_u32 v{x3}, s{T+2}, v{x1}
    v_cmp_gt_u32 vcc, 8, v{x1}
    s_mov_b32 s{T+3}, {STA}
    s_nop 0
    v_cndmask_b32 v{x2}, v{x3}, v{x2}, vcc
    v_mul_lo_u32 v{x2}, v{x2}, s{T+3}
    v_add_u32 v{x0}, {WS_CTX}, v{x0}
    v_add_u32 v{x2}, v{x2}, v{x0}""")
    for j in range(9): b(f"v_readlane_b32 s{T+2+(j&1)}, v{x2}, {j}\ns_nop 0") if False else b.l.append([f"v_readlane_b32 s{T+2}, v{x2}, {j}", "s_nop 1", f"v_add_u32 v{VD+j}, s{T+2}, v{t}"])
    b(f"""s_lshr_b32 s{T+2}, s{S_W}, 1
    s_lshl_b32 s{T+2}, s{T+2}, 13
    s_add_u32 s{T+2}, s{T+2}, {ASLOT[0]}
    v_add_u32 v{VL}, s{T+2}, v{t}
    s_and_b32 s{T+2}, s{S_W}, 1
    s_mul_i32 s{T+2}, s{T+2}, 10240
    s_add_u32 s{T+2}, s{T+2}, {ASLOT[0] + 16384}
    v_add_u32 v{VL+1}, s{T+2}, v{t}
    v_add_u32 v{VL+2}, {ASLOT[2] - ASLOT[0]}, v{VL}
    v_add_u32 v{VL+3}, {ASLOT[2] - ASLOT[0]}, v{VL+1}
    s_mul_i32 s{S_MA}, s{S_W}, 9216
    s_lshl_b32 s{S_OA}, s{S_SIG}, 15""")
    b(f"s_mul_i32 s{T+2}, s{S_RB}, {4*STB}\ns_add_u32 s{T+2}, s{T+2}, {WS_OB}")
    for i in range(4):
        b(f"""s_add_u32 s{T+3}, s{S_W}, {i}
        s_and_b32 s{T+3}, s{T+3}, 3
        s_mul_i32 s{T+3}, s{T+3}, {STB}
        s_add_u32 s{T+3}, s{T+3}, s{T+2}
        v_add_u32 v{VB+i}, s{T+3}, v{t}""")
    b(f"s_mul_i32 s{T+3}, s{S_CG}, {5*STB}\ns_add_u32 s{T+3}, s{T+3}, {WS_WOBT}\nv_add_u32 v{VB+4}, s{T+3}, v{t}")
    for j in range(1, 5): b(f"v_add_u32 v{VB+4+j}, {j*STB}, v{VB+4}")
    b(f"""s_lshl_b32 s{T+2}, s{S_P3}, 7
    s_lshr_b32 s{T+3}, s{S_W}, 1
    s_lshl_b32 s{T+3}, s{T+3}, 6
    s_add_u32 s{T+2}, s{T+2}, s{T+3}
    s_lshl_b32 s{T+3}, s{S_SIG}, 4
    s_add_u32 s{T+2}, s{T+2}, s{T+3}
    v_and_b32 v253, 15, v1
    v_add_u32 v253, s{T+2}, v253
    v_mul_u32_u24 v253, 2560, v253
    v_lshrrev_b32 v254, 4, v1
    v_lshl_add_u32 v253, v254, 3, v253
    s_mul_i32 s{T+2}, s{S_PX}, 320
    s_and_b32 s{T+3}, s{S_W}, 1
    s_mul_i32 s{T+3}, s{T+3}, 160
    s_add_u32 s{T+2}, s{T+2}, s{T+3}
    v_add_u32 v253, s{T+2}, v253""")
    b(f"""s_mul_i32 s{S_OB_}, s{S_W}, 5120
    v_lshlrev_b32 v{V_P1}, 3, v1
    s_lshl_b32 s{S_P1}, s{S_W}, 9
    s_add_u32 s{S_P1}, s{S_P1}, {F_WT}
    s_lshl_b32 s{S_P2}, s{S_RT}, 8
    s_lshl_b32 s{T+2}, s{S_SIG}, 6
    s_add_u32 s{S_P2}, s{S_P2}, s{T+2}
    s_add_u32 s{S_P2}, s{S_P2}, {F_CTX}
    v_and_b32 v{V_P2}, 7, v1
    v_lshlrev_b32 v{V_P2}, 3, v{V_P2}
    s_lshl_b32 s{S_PX}, s{S_Q}, 1
    s_and_b32 s{T+2}, s2, 1
    s_add_u32 s{S_PX}, s{S_PX}, s{T+2}
    s_lshl_b32 s{S_PX}, s{S_PX}, 7
    s_add_u32 s{S_PX}, s{S_PX}, {F_X}
    s_lshl_b32 s{S_P3}, s{S_RB}, 7
    s_add_u32 s{S_P3}, s{S_P3}, {F_OB}
    s_lshl_b32 s{S_SIG}, s{S_CG}, 3
    s_add_u32 s{S_SIG}, s{S_SIG}, s{S_P3}""")
    srd(b, SRD_O, 22, SZ['out'])
    return b.l
def polls(): return [([], flag_load(V_D1, V_P1, S_P1), "p1"), ([], flag_load(V_D2, V_P2, S_P2), "p2")]
def check(ool):
    ool.ext(flag_spin("LO_s1", V_D1, V_P1, S_P1, 3)); ool.ext(flag_spin("LO_s2", V_D2, V_P2, S_P2, 3, sleep=2))
    return flag_check("LO_s1", V_D1) + flag_check("LO_s2", V_D2)
def dmaA(st):
    it = []
    so, V = (S_OA, VD) if st < 16 else (S_OB_, VB)
    for j in range(9):
        pre = [f"s_add_u32 m0, s{S_MA}, {ASLOT[st%3] + (j>>2)*4096}"] if j % 4 == 0 else []
        if j == 0 and st not in (0, 16): pre = [f"s_add_u32 s{so}, s{so}, 2048"] + pre
        it.append((pre, f"buffer_load_dwordx4 v{V+j}, {sr(SRD_WS)}, s{so} offen offset:{(j&3)*1024} sc1 lds", ("A", st)))
    return it
def rdA(kk):
    st, ks = kk // 2, kk & 1
    hi = 2 if st % 3 == 2 else 0; off = (ASLOT[1] - ASLOT[0]) if st % 3 == 1 else 0
    a = [f"ds_read_b128 {ar(FR[ks] + 4*i)}, v{VL+hi} offset:{off + i*2048 + ks*1024}" for i in range(4)]
    w = [f"ds_read_b128 {ar(FR[ks] + 16 + 4*j)}, v{VL+1+hi} offset:{off + j*2048 + ks*1024}" for j in range(5)]
    return [w[0]] + a + w[1:]
def loadsB(k):
    out = []
    for c, q in enumerate([4, 0, 1, 2, 3, 5, 6, 7, 8]):
        pre = [f"s_add_u32 s{S_OB_}, s{S_OB_}, 4096"] if (c == 0 and k == 4) else []
        out.append((pre, f"buffer_load_dwordx4 {ar(36*k + 4*q)}, v{VB+q}, {sr(SRD_WS)}, s{S_OB_} offen offset:{(k%4)*1024}{LD}", ("Bo", k)))
    return out
XB = 2560
def build(cx, b, vm, ool, B):
    c1, c2 = B.side_core()
    b.ext(add_lgkm_waits(["s_waitcnt lgkmcnt(0)", "s_barrier"] + c1 + c2 + ["s_waitcnt lgkmcnt(0)", f"s_waitcnt vmcnt({vm.need(('A', 0))})", "s_barrier"]))
    first = rdA(0); b.ext(first)
    b.ext(B.side_gather())
    for _ in range(3): vm.issue("ob")
    cx.stamp(b)
    post = Blk()
    for i in range(1, 4):
        post(f"""s_add_u32 s{T+2}, s{S_W}, {i}
        s_and_b32 s{T+2}, s{T+2}, 3
        s_mul_i32 s{T+2}, s{T+2}, 15360
        s_add_u32 s{T+2}, s{T+2}, {(i-1)*5120}
        v_add_u32 v{16+i}, s{T+2}, v252""")
    post(f"""s_mul_i32 s{T+2}, s{S_W}, 15360
    v_add_u32 v16, s{T+2}, v252
    s_lshl_b32 s{T+2}, s{S_RB}, 6
    s_lshl_b32 s{T+3}, s{S_W}, 4
    s_add_u32 s{T+2}, s{T+2}, s{T+3}
    v_and_b32 v20, 15, v1
    v_add_u32 v20, s{T+2}, v20
    v_mul_u32_u24 v20, 2560, v20
    v_lshrrev_b32 v21, 4, v1
    v_lshl_add_u32 v20, v21, 3, v20
    s_mul_i32 s{T+2}, s{S_CG}, 160
    v_add_u32 v20, s{T+2}, v20
    v_lshlrev_b32 v21, 3, v1
    v_and_b32 v{V_P1}, 3, v1
    v_lshlrev_b32 v{V_P1}, 3, v{V_P1}
    s_lshr_b32 s{T}, s2, 1
    s_and_b32 s{T}, s{T}, 3
    s_and_b32 s{T+1}, s2, 0xfffffff9
    s_lshl_b32 s{S_P2}, s{T}, 3
    s_add_u32 s{S_P2}, s{S_P2}, s{S_PX}
    s_mul_i32 s59, s2, 12
    s_add_u32 s59, s59, s{S_W}
    s_mul_i32 s59, s59, {XB}
    s_add_u32 s59, s59, {WS_X}""")
    XS = [48, 49, 50]
    for i in range(1, 4):
        post(f"""s_add_u32 s{T+2}, s{T}, {i}
        s_and_b32 s{T+2}, s{T+2}, 3
        s_lshl_b32 s{T+2}, s{T+2}, 1
        s_add_u32 s{T+2}, s{T+2}, s{T+1}
        s_mul_i32 s{T+2}, s{T+2}, 12
        s_add_u32 s{T+2}, s{T+2}, s{S_W}
        s_mul_i32 s{T+2}, s{T+2}, {XB}
        s_add_u32 s{XS[i-1]}, s{T+2}, {WS_X + (i-1)*4*XB}""")
    lb = [x for k in range(5) for x in loadsB(k)]
    KC = cx.opts.get("kc", 21)
    code = []
    for kk in range(32):
        st, ks = kk // 2, kk & 1
        mf = []
        order = [(i, j) for j in range(5) for i in range(4)] if kk < 31 else [(i, j) for i in (1, 2, 3, 0) for j in range(5)]
        for i, j in order:
            d = vr(ACC_A + (i*5 + j)*4)
            mf.append(mfma16(d, ar(FR[ks] + 16 + 4*j), ar(FR[ks] + 4*i), d if kk else "0"))
        f = Fill()
        if ks == 1 and kk < 31:
            need = [('A', st+1)] + (['ob'] if kk == 3 else []) + (['p3'] if kk == KC else [])
            f.put(1, [f"s_waitcnt vmcnt({vm.need(*need)}) lgkmcnt(0)"] + (flag_check("LO_s3", V_D1) if kk == KC else []) + ["s_barrier"])
            if kk == 3:
                sg = Blk(); flag_store(sg, S_SIG, "LO_of"); f.put(1, sg.l)
        if kk + 1 < 32:
            for g, r in zip([2, 4, 6, 8, 10, 12, 13, 14, 15], rdA(kk+1)): f.put(g, r)
        sn = (kk - 1) // 2 + 3
        if kk >= 1 and sn < 16:
            it = dmaA(sn)
            sel = it[:5] if ks == 1 else [([f"s_add_u32 m0, s{S_MA}, {ASLOT[sn%3] + 4096}"],) + it[5][1:]] + it[6:]
            for k, (pre, d, tag) in enumerate(sel):
                if pre: f.put(2 + 4*k, pre)
                f.put(3 + 4*k, d)
        if kk == KC - 3: f.put(18, flag_load(V_D1, V_P2, S_P3))
        if kk >= KC:
            n = min(len(lb), 2 if kk < 27 else 7)
            for k in range(n):
                pre, d, tag = lb.pop(0); f.put(5 + (12*k)//n, pre + [d])
        if 5 <= kk < 13:
            n8 = (len(post.l) + 7) // 8
            f.spread(post.l[(kk-5)*n8:(kk-4)*n8], 2, 20)
        body = interleave(mf, f)
        for l in body:
            if l.startswith("buffer_load_dwordx4"): vm.issue(("A", sn) if l.endswith("lds") else ("Bo", int(re.search(r"a\[(\d+)", l).group(1)) // 36))
            elif l.startswith("buffer_load_dwordx2"): vm.issue("p3")
        code += body
    assert not lb
    ool.ext(flag_spin("LO_s3", V_D1, V_P2, S_P3, 3, sleep=2))
    b.ext(add_lgkm_waits(code, first))
    cx.stamp(b)
    sA = []
    for i in range(1, 4):
        r = ACC_A + 20*i
        sA += [f"v_cvt_pk_bf16_f32 v{r+k}, v{r+2*k}, v{r+2*k+1}" for k in range(10)]
        sA += [f"buffer_store_dwordx4 {vr(r)}, v252, {sr(SRD_WS)}, s{XS[i-1]} offen{SC}",
               f"buffer_store_dwordx4 {vr(r+4)}, v252, {sr(SRD_WS)}, s{XS[i-1]} offen offset:1024{SC}",
               f"buffer_store_dwordx2 {vr(r+8, 2)}, v21, {sr(SRD_WS)}, s{XS[i-1]} offen offset:2048{SC}"]
    def mfB(k):
        order = [(i, j) for j in range(5) for i in range(4)] if k < 4 else [(i, j) for i in (1, 2, 3, 0) for j in range(5)]
        return [mfma16(vr(ACC_B + (i*5 + j)*4), ar(36*k + 16 + 4*j), ar(36*k + 4*i), vr(ACC_B + (i*5 + j)*4) if k else "0") for i, j in order]
    b(f"s_waitcnt vmcnt({vm.need(('Bo', 0))})")
    f = Fill(); f.spread(sA, 0, 20); b.ext(interleave(mfB(0), f))
    b("s_waitcnt vmcnt(9)")
    b.ext(mfB(1)); b.ext(mfB(2))
    b("s_waitcnt vmcnt(0)\ns_barrier")
    flag_store(b, S_P2, "LO_xf")
    b.ext(mfB(3)); b.ext(mfB(4))
    code = [f"ds_write_b128 v{16+i}, {vr(ACC_B + (i*5 + j)*4)} offset:{j*1024}" for i in range(1, 4) for j in range(5)]
    code += [flag_load(V_D1, V_P1, S_PX), "s_waitcnt lgkmcnt(0)", "s_barrier"]
    code += [f"ds_read_b128 {vr(132 + (c*5 + j)*4)}, v16 offset:{c*5120 + j*1024}" for j in range(5) for c in range(3)]
    b.ext(code)
    cx.stamp(b)
    b("s_waitcnt vmcnt(0)")
    b.ext(flag_check("LO_s4", V_D1)); ool.ext(flag_spin("LO_s4", V_D1, V_P1, S_PX, T, sleep=1))
    cx.stamp(b)
    for c in range(3):
        r = 52 + 12*c
        if c: b(f"s_add_u32 s59, s59, {4*XB}")
        b(f"""buffer_load_dwordx4 {vr(r)}, v252, {sr(SRD_WS)}, s59 offen sc1
        buffer_load_dwordx4 {vr(r+4)}, v252, {sr(SRD_WS)}, s59 offen offset:1024 sc1
        buffer_load_dwordx2 {vr(r+8, 2)}, v21, {sr(SRD_WS)}, s59 offen offset:2048 sc1""")
    b("s_waitcnt lgkmcnt(0)")
    for j in range(5):
        r = ACC_B + 4*j
        x = [132 + (c*5 + j)*4 for c in range(3)]
        for q in (0, 2):
            b(f"v_pk_add_f32 v[{r+q}:{r+q+1}], v[{r+q}:{r+q+1}], v[{x[0]+q}:{x[0]+q+1}]")
            b(f"v_pk_add_f32 v[{x[1]+q}:{x[1]+q+1}], v[{x[1]+q}:{x[1]+q+1}], v[{x[2]+q}:{x[2]+q+1}]")
        for q in (0, 2): b(f"v_pk_add_f32 v[{r+q}:{r+q+1}], v[{r+q}:{r+q+1}], v[{x[1]+q}:{x[1]+q+1}]")
        b(f"v_cvt_pk_bf16_f32 v{r}, v{r}, v{r+1}\nv_cvt_pk_bf16_f32 v{r+1}, v{r+2}, v{r+3}")
        b(f"buffer_store_dwordx2 v[{r}:{r+1}], v20, {sr(SRD_O)}, 0 offen offset:{1280 + j*32}")
    for c in range(3):
        r = 52 + 12*c
        b(f"s_waitcnt vmcnt({5 + 3*(2-c)})")
        for k in range(10):
            b(f"v_lshlrev_b32 v{90+2*k}, 16, v{r+k}\nv_and_b32 v{91+2*k}, 0xffff0000, v{r+k}")
        for k in range(10): b(f"v_pk_add_f32 v[{ACC_A+2*k}:{ACC_A+2*k+1}], v[{ACC_A+2*k}:{ACC_A+2*k+1}], v[{90+2*k}:{91+2*k}]")
    for j in range(5):
        r = ACC_A + 4*j
        b(f"v_cvt_pk_bf16_f32 v{r}, v{r}, v{r+1}\nv_cvt_pk_bf16_f32 v{r+1}, v{r+2}, v{r+3}")
        b(f"buffer_store_dwordx2 v[{r}:{r+1}], v253, {sr(SRD_O)}, 0 offen offset:{j*32}")
    cx.stamp(b)
import re
```

```python
from g_common import *
T = 54
S_MW, S_MX, S_OW, S_OX = 48, 49, 50, 51
S_KVST, S_ST, S_SRC, S_POLL, S_SIG, S_C = 58, 57, 53, 52, 59, 58
V_XD, V_WQ, V_L16 = 4, 12, 16
V_WA = [22, 23, 24, 25, 26, 27, 28, 29]
V_XA = [18, 19, 30, 31]
V_PO, V_PD = 17, 20
ACC = 128
WFR = [64, 96]; XFR = [32, 128]
LQ = 98304
XSLOT = [65536, 0, 32768]
CSCALE = (128 ** -0.5) * 1.4426950408889634
def kvreg(fr): return 32 + 4*fr if fr < 24 else 32 + 4*(fr - 24)
def kv_store(fr):
    return ([f"s_add_u32 s{S_ST}, s{S_KVST}, {(fr>>3)*16384 + ((fr&7)>>1)*4096}"],
            f"buffer_store_dwordx4 {vr(kvreg(fr))}, v{V_L16}, {sr(SRD_WS)}, s{S_ST} offen offset:{(fr&1)*1024}{SC}")
def dmaW(st):
    return [([f"s_add_u32 m0, s{S_MW}, {(st%4)*16384}", f"s_mov_b32 s{S_OW}, {st*64*8192}"] if p in (0, 2) else [],
             f"buffer_load_dwordx4 v{V_WQ+p}, {sr(SRD_B)}, s{S_OW} offen offset:{p*1024} lds", ("W", st)) for p in range(4)]
def dmaX(st):
    return [([f"s_add_u32 m0, s{S_MX}, {XSLOT[st%3] + (p>>2)*4096}", f"s_mov_b32 s{S_OX}, {st*128}"] if p % 4 == 0 else [],
             f"buffer_load_dwordx4 v{V_XD+p}, {sr(SRD_A)}, s{S_OX} offen offset:{(p&3)*1024} lds", ("x", st)) for p in range(8)]
def setup_dma():
    b = Blk()
    srd(b, SRD_A, 4, SZ['A_x']); srd(b, SRD_B, 8, SZ['A_wq'])
    b(f"""s_lshl_b32 s{T}, s{S_W}, 17
    s_lshl_b32 s{T+1}, s{S_H}, 8
    s_add_u32 s{T}, s{T}, s{T+1}
    v_lshlrev_b32 v{V_L16}, 4, v1
    v_lshrrev_b32 v2, 4, v1
    v_lshlrev_b32 v3, 2, v2
    v_lshlrev_b32 v2, 13, v2
    v_add_u32 v2, s{T}, v2
    v_and_b32 v0, 15, v1
    v_xor_b32 v3, v3, v0
    v_lshl_add_u32 v0, v3, 4, v2
    v_xor_b32 v3, 2, v3
    v_lshl_add_u32 v3, v3, 4, v2""")
    for p in range(4): b(f"v_add_u32 v{V_WQ+p}, {p*4*8192 - p*1024}, v{3 if (p>>1)&1 else 0}")
    b(f"""s_lshl_b32 s{S_MW}, s{S_W}, 12
    s_add_u32 s{S_MW}, s{S_MW}, {LQ}
    s_lshl_b32 s{S_MX}, s{S_W}, 13
    s_lshl_b32 s{T}, s{S_RT}, 2
    s_add_u32 s{T}, s{T}, s{S_W}
    s_mul_i32 s{T}, s{T}, {32*1280}
    s_sub_u32 s{T+1}, {63*32*1280}, s{T}
    v_lshrrev_b32 v2, 3, v1
    v_mul_u32_u24 v2, 1280, v2
    v_lshrrev_b32 v3, 4, v1
    v_and_b32 v0, 7, v1
    v_xor_b32 v3, v3, v0
    v_lshl_add_u32 v0, v3, 4, v2
    v_xor_b32 v3, 4, v3
    v_lshl_add_u32 v3, v3, 4, v2""")
    for p in range(8):
        b(f"v_add_u32 v{V_XD+p}, {(p&3)*(8*1280 - 1024)}, v{3 if p&1 else 0}")
        b(f"v_add_u32 v{V_XD+p}, s{T if p < 4 else T+1}, v{V_XD+p}")
    return b.l
def setup_rd():
    b = Blk()
    tr_addr(b, V_WA, LQ, 8, (0, 2, 3))
    row_addr(b, V_XA[0], V_XA[1], f"s{S_MX}", (0, 2, 3))
    b(f"""v_add_u32 v{V_XA[2]}, 0x10000, v{V_XA[0]}
    v_add_u32 v{V_XA[3]}, 0x10000, v{V_XA[1]}
    v_mov_b32 v{V_PO}, 0""")
    return b.l
def wf(kk, dt): return WFR[kk & 1] + 4*dt
def rdW(kk, dt, u):
    return f"ds_read_b64_tr_b16 {ar(wf(kk, dt) + 2*u, 2)}, v{V_WA[dt]} offset:{((kk>>1)%4)*16384 + (32*(kk&1) + 4*u)*256}"
def xf(st, ks, qs): return XFR[st & 1] + (ks*4 + qs)*4
def rdX(st, ks, qs):
    sl = XSLOT[st % 3]; hi = sl >= 65536
    return f"ds_read_b128 {ar(xf(st, ks, qs))}, v{V_XA[ks + 2*hi]} offset:{sl - 65536*hi + qs*2048}"
def first_reads():
    return [rdW(0, 0, 0), rdW(0, 0, 1)] + [rdX(0, 0, qs) for qs in range(4)] + [rdW(0, dt, u) for dt in range(1, 8) for u in range(2)] + [rdX(0, 1, qs) for qs in range(4)]
def dma_blk(vl):
    return ([f"s_and_b32 m0, s{S_SRC}, 0x1ffff"],
            [f"buffer_load_dwordx4 v{vl}, {sr(SRD_WS)}, s{S_SRC} offen offset:{p*1024} sc1 lds" for p in range(4)],
            [f"s_add_u32 s{S_SRC}, s{S_SRC}, 16384"])

def build(cx, b, vm, ool, extra):
    order = list(range(24, 32)) + list(range(8, 24))
    last_kk = cx.opts.get("stk", 15)
    sched_st = {}
    for k in range(24): sched_st.setdefault((k * (last_kk + 1)) // 24, []).append(order[k])
    sig_kk = last_kk + 2 if last_kk % 2 else last_kk + 3
    pk = cx.opts.get('pk', 19); nkv = 0
    code = []
    for kk in range(20):
        st = kk // 2; ks = kk % 2
        mf = []
        for dt in range(8):
            for qs in range(4):
                d = vr(ACC + (dt*4 + qs)*4)
                mf.append(mfma16(d, ar(wf(kk, dt)), ar(xf(st, ks, qs)), d if kk else "0"))
        f = Fill(); put = f.put
        if kk in (4, 8, 12, 16) and 'qst' in cx.opts:
            sb = Blk(); cx.stamp(sb); put(0, sb.l)
        if ks == 1:
            need = ([('W', st+1)] if kk < 19 else []) + (['kvst'] if kk == sig_kk else []) + (['nonce'] if kk == 5 else [])
            put(1, [f"s_waitcnt vmcnt({vm.need(*need)}) lgkmcnt(0)" if need else "s_waitcnt lgkmcnt(0)", "s_barrier"])
            if kk == 5:
                put(2, [f"v_readfirstlane_b32 s{S_NC}, v{V_PD}", f"v_readfirstlane_b32 s{S_NC+1}, v{V_PD+1}"])
                put(3, [f"s_cmp_eq_u32 s{S_NC}, 0", "s_cbranch_scc1 LQ_nspin", "LQ_nspin_ret:"])
            if kk == sig_kk:
                sg = Blk(); flag_store(sg, S_SIG, "LQ_sig"); put(1, sg.l)
        if ks == 0 and st + 1 < 10:
            put(1, f"s_waitcnt vmcnt({vm.need(('x', st+1))}) lgkmcnt(0)")
        if kk + 1 < 20:
            rs = [rdW(kk+1, dt, u) for dt in range(8) for u in range(2)]
            for g, r in zip([2, 3, 5, 6, 8, 9, 11, 12, 14, 15, 17, 18, 20, 21, 23, 24], rs): put(g, r)
        if st + 1 < 10:
            for g, qs in zip([22, 25, 26, 27], range(4)): put(g, rdX(st+1, ks, qs))
        ev = []
        if st + 3 < 10:
            for g, it in zip([4, 7, 10, 13], dmaX(st+3)[ks*4:ks*4+4]): ev.append((g,) + it)
            for g, it in zip([16, 19], dmaW(st+3)[ks*2:ks*2+2]): ev.append((g,) + it)
        if kk == 1: ev.append((29, [], f"global_load_dwordx2 v[{V_PD}:{V_PD+1}], v{V_PO}, s[24:25] sc1", "nonce"))
        for g, fr in zip([23, 30], sched_st.get(kk, [])):
            pre, d = kv_store(fr); ev.append((g, pre, d, "kvst"))
        if kk == 7 and "noct2" not in cx.opts:
            su, ld = code_touch("a", "L_qe", 92, 58, 2)
            f.spread(su, 2, 20)
            for k, g in enumerate(ld): ev.append((26 + 2*k, g[:-1], g[-1], "ct"))
        if kk == 6:
            f.spread(lines(f"""s_mul_i32 s{S_SRC}, s{S_H}, {KV_HS}
            s_lshl_b32 s{T}, s{S_W}, 12
            s_add_u32 s{S_SRC}, s{S_SRC}, s{T}
            s_lshl_b32 s{S_POLL}, s{S_H}, 7
            s_add_u32 s{S_POLL}, s{S_POLL}, {F_KV}
            s_lshl_b32 s{S_SIG}, s{S_RT}, 3
            s_add_u32 s{S_SIG}, s{S_SIG}, s{S_POLL}
            v_and_b32 v{V_PO}, 7, v1
            v_lshlrev_b32 v{V_PO}, 3, v{V_PO}"""), 26, 32)
        if 9 <= kk < 19:
            n10 = (len(extra) + 9) // 10
            f.spread(extra[(kk-9)*n10:(kk-8)*n10], 2, 32)
        if kk == pk: ev.append((16 if pk == 19 else 2, [], flag_load(V_PD, V_PO, S_POLL), "poll"))
        if pk < 19 and kk == pk + 1:
            put(0, [f"s_waitcnt vmcnt({vm.need('poll')})"] + flag_check("LQ_spin", V_PD))
        if pk < 19 and kk > pk:
            for hb in range(2):
                if nkv < (2 if kk < 17 else 4 if kk < 19 else 5):
                    pr, d, post = dma_blk(V_L16)
                    for q, g in enumerate([4, 7, 10, 13]): ev.append((g + 13*hb, pr if q == 0 else [], d[q], ("KV", nkv)))
                    put(15 + 13*hb, post); nkv += 1
        for g, pre, d, tag in sorted(ev, key=lambda e: e[0]):
            if pre: put(g - 1, pre)
            put(g, d); vm.issue(tag)
        code += interleave(mf, f)
    b.ext(add_lgkm_waits(code, first_reads()))
    ool(f"""LQ_nspin:
    s_mov_b32 s{T}, 0x10000
    LQ_nspin_l:
    s_sleep 8
    global_load_dwordx2 v[{V_PD}:{V_PD+1}], v{V_PO}, s[24:25] sc1
    s_sub_u32 s{T}, s{T}, 1
    s_waitcnt vmcnt(0)
    v_readfirstlane_b32 s{S_NC}, v{V_PD}
    v_readfirstlane_b32 s{S_NC+1}, v{V_PD+1}
    s_cmp_eq_u32 s{T}, 0
    s_cbranch_scc1 LQ_nspin_ret
    s_cmp_eq_u32 s{S_NC}, 0
    s_cbranch_scc1 LQ_nspin_l
    s_branch LQ_nspin_ret""")
    b('L_qe:')
    cx.stamp(b)
    if pk == 19:
        b("s_waitcnt vmcnt(0)")
        b.ext(flag_check("LQ_spin", V_PD))
    ool.ext(flag_spin("LQ_spin", V_PD, V_PO, S_POLL, 95, sleep=2))
    cx.stamp(b)
    ep = []
    ep.append(f"s_mov_b32 s{S_C}, {f2u(CSCALE)}"); ep.append(f"s_mov_b32 s{S_C+1}, {f2u(CSCALE)}")
    groups = []
    for qs in range(4):
        for s in range(4):
            g = []
            r0 = ACC + ((2*s)*4 + qs)*4; r1 = ACC + ((2*s + 1)*4 + qs)*4
            for r in (r0, r1):
                g.append(f"v_pk_mul_f32 v[{r}:{r+1}], v[{r}:{r+1}], s[{S_C}:{S_C+1}]")
                g.append(f"v_pk_mul_f32 v[{r+2}:{r+3}], v[{r+2}:{r+3}], s[{S_C}:{S_C+1}]")
            g += [f"v_cvt_pk_bf16_f32 v{r0}, v{r0}, v{r0+1}", f"v_cvt_pk_bf16_f32 v{r0+1}, v{r0+2}, v{r0+3}",
                  f"v_cvt_pk_bf16_f32 v{r0+2}, v{r1}, v{r1+1}", f"v_cvt_pk_bf16_f32 v{r0+3}, v{r1+2}, v{r1+3}"]
            for k in range(4): g.append(f"v_accvgpr_write_b32 a{(qs*4+s)*4 + k}, v{r0+k}")
            groups.append(g)
    dm = []
    for blk in range(5 - nkv):
        pr, d, post = dma_blk(V_L16)
        dm += [pr + ["s_nop 0", d[0]], [d[1]], [d[2]], [d[3]] + post]
    for x in dm[:8]: ep += x
    for k, g in enumerate(groups):
        ep += g
        if 8 + k < len(dm): ep += dm[8 + k]
    b.ext(ep)
    pre, d, post = dma_blk(V_L16)
    b(f"s_cmp_lg_u32 s{S_RT}, 0\ns_cbranch_scc1 LA_nob5")
    b.ext(pre); b("s_nop 0"); b.ext(d); b.ext(post); b("LA_nob5:")
```

```python
import sys
from g_common import *
import g_kv as KV, g_q as Q, g_b as B, g_a as A, g_p as O
from lint import lint
HDR = open("cdna_kernels/" + NAME + ".s.ref").read().split("; Override launch")[0]
def build(dev=False, opts=None):
    cx = Ctx(dev, opts or {})
    lab = NAME + "_kernel"
    b = Blk(); ool = Blk()
    b(f"{lab}:")
    trs, vm = KV.build(cx, b, ool)
    mid = Blk()
    cx.stamp(mid)
    Q.build(cx, mid, vm, ool, A.early() + B.setup_early())
    A.attn_prologue(mid)
    cx.stamp(mid)
    b.ext(mid)
    ool1 = ool; ool = Blk()
    trace = A.build_attn(cx, b, ool1)
    b.ext(ool1)
    fin = Blk(); vm = VM()
    rest = A.finalize(cx, fin, vm, ool)
    cx.stamp(fin)
    B.gemm(cx, fin, vm, O.setup(), O.polls(), rest, A.ctxb_stores(), O.check(ool), O.dmaA(0) + O.dmaA(1) + O.dmaA(2))
    cx.stamp(fin)
    O.build(cx, fin, vm, ool, B)
    if dev: fin("s_waitcnt vmcnt(0)")
    cx.stamp(fin)
    cx.stamp_store(fin, "LF")
    fin("L_end:\ns_endpgm")
    b.ext(fin); b.ext(ool); b('L_codeend:\ns_endpgm')
    out = [HDR.rstrip(), "; @launch grid=(256,1,1) block=(256,1,1) lds=163840",
           '.amdgcn_target "amdgcn-amd-amdhsa--gfx950"\n.text', f".globl {lab}\n.p2align 8\n.type {lab},@function", b.text(),
           '.section .rodata,"a"\n.p2align 6\n' + kdesc(lab, 512, 256)]
    nerr = 0
    for k, (i, w) in enumerate(((0, 0), (0, 1), (1, 2), (7, 3), (7, 2), (3, 0))):
        e = lint(trs[k & 1] + mid.l + trace(i, w) + fin.l, f"t{i}{w}")
        for x in e[:4]: print("LINT", x, file=sys.stderr)
        nerr += len(e)
    e = lint(cx.slow + cx.slow, 'slow')
    for x in e[:8]: print('LINT', x, file=sys.stderr)
    nerr += len(e)
    return "\n".join(out) + "\n", nerr
if __name__ == "__main__":
    opts = {}
    for a in sys.argv[2:]:
        if "=" in a: k, v = a.split("="); opts[k] = int(v, 0)
        else: opts[a] = True
    txt, nerr = build("dev" in opts, opts)
    import re
    def filt(pred, rep="  s_nop 0"):
        global txt
        txt = "\n".join((rep if pred(l) else l) for l in txt.split("\n"))
    if "nobdma" in opts: filt(lambda l: re.search(r"buffer_load_dwordx4 v2(0\d|1[01]),", l) and " lds" in l)
    if "nobw" in opts: filt(lambda l: re.search(r"buffer_load_dwordx4 v1(6[3-9]|7[01]),", l) and " lds" in l)
    if "noctxst" in opts: filt(lambda l: "buffer_store_dwordx4 v[24" in l)
    if "nokvst" in opts: filt(lambda l: "buffer_store_dwordx4" in l and "s57 offen" in l)
    open(sys.argv[1], "w").write(txt)
    print("lint errors:", nerr, "lines", txt.count("\n"))
```

```python
from common import *
from sched import *
import struct
def f2u(x): return struct.unpack("<I", struct.pack("<f", x))[0]
S_W, S_H, S_RT = 28, 29, 30
S_Q = 31
SRD_A, SRD_B, SRD_WS, SRD_X = 32, 36, 40, 44
S_RB, S_CG = 100, 101
WS_FLAG = 70 << 20
F_CTX = WS_FLAG
F_KV = WS_FLAG + 4096
F_WT = WS_FLAG + 8192 + 4096
F_W2 = WS_FLAG + 40960
F_OB = WS_FLAG + 16384
S_NC = 0
WS_SIZE = 79 << 20
WS_STAMP = 200 << 20
SC = " sc1"
class Ctx:
    def __init__(self, dev, opts): self.dev = dev; self.opts = opts; self.nst = 0; self.cnt = 0
    def stamp(self, b, wait=True):
        if not self.dev: return
        k = self.nst; self.nst += 1
        if 'only' in self.opts and not ((self.opts['only'] >> self.cnt) & 1):
            self.nst -= 1; self.cnt += 1; return
        self.cnt += 1
        assert k < 14, k
        b(f"s_memrealtime s[88:89]\ns_memtime s[90:91]\ns_waitcnt lgkmcnt(0)\ns_mov_b32 s{60+k}, s88\ns_mov_b32 s{74+k}, s90")
    def stamp_store(self, b, pfx):
        if not self.dev: return
        if "dbg" in self.opts:
            b(f"""s_load_dwordx2 s[24:25], s[88:89], 80
            s_waitcnt lgkmcnt(0)""".replace("s[88:89]", "s[90:91]")) if False else None
            b(f"s_lshl_b32 s48, s2, 2\ns_add_u32 s48, s48, s{S_W}\ns_cmp_lg_u32 s48, {4*self.opts['dbg']}\ns_cbranch_scc1 {pfx}_nost\nv_mov_b32 v2, 0")
            for k in range(1, self.nst):
                b(f"s_sub_u32 s49, s{60+k}, s60\nv_mov_b32 v3, s49\nglobal_store_dword v2, v3, s[24:25] offset:{4*(k+1)}")
            b(f"{pfx}_nost:")
            return
        b(f"""s_waitcnt lgkmcnt(0)
        s_cmp_lg_u32 s{S_W}, {self.opts.get('sw', 0)}
        s_cbranch_scc1 {pfx}_nost
        s_mov_b32 s{SRD_WS+2}, {SZ['ws']}
        s_lshl_b32 s48, s2, 7
        s_add_u32 s48, s48, {WS_STAMP}
        v_mov_b32 v2, 0""")
        for k in range(self.nst):
            b(f"v_mov_b32 v3, s{60+k}\nbuffer_store_dword v3, v2, {sr(SRD_WS)}, s48 offen offset:{4*k}")
            b(f"v_mov_b32 v3, s{74+k}\nbuffer_store_dword v3, v2, {sr(SRD_WS)}, s48 offen offset:{64+4*k}")
        b(f"{pfx}_nost:")
class Fill(dict):
    def put(self, g, x):
        self.setdefault(g, []).extend([x] if isinstance(x, str) else list(x))
    def spread(self, items, lo, hi):
        n = len(items)
        for k, it in enumerate(items): self.put(lo + (k * (hi - lo)) // max(n, 1), it)
def lines(s): return [x.strip() for x in s.split("\n") if x.strip()]

def flag_store(b, s_off, lab, vt=(0, 2), s_off2=None):
    b(f"""s_cmp_lg_u32 s{S_W}, 0
    s_cbranch_scc1 {lab}
    v_mov_b32 v{vt[1]}, s{S_NC}
    v_mov_b32 v{vt[1]+1}, s{S_NC+1}
    v_mov_b32 v{vt[0]}, 0
    s_mov_b64 exec, 1
    buffer_store_dwordx2 v[{vt[1]}:{vt[1]+1}], v{vt[0]}, {sr(SRD_WS)}, s{s_off} offen sc1""")
    if s_off2 is not None: b(f"buffer_store_dwordx2 v[{vt[1]}:{vt[1]+1}], v{vt[0]}, {sr(SRD_WS)}, s{s_off2} offen sc1")
    b(f"""s_mov_b64 exec, -1
    {lab}:""")
def flag_load(vdat, voff, s_off):
    return f"buffer_load_dwordx2 v[{vdat}:{vdat+1}], v{voff}, {sr(SRD_WS)}, s{s_off} offen sc1"
def flag_check(lab, vdat):
    return [f"v_cmp_ne_u64 vcc, s[{S_NC}:{S_NC+1}], v[{vdat}:{vdat+1}]", "s_nop 1", f"s_cbranch_vccnz {lab}", f"{lab}_ret:"]
def flag_spin(lab, vdat, voff, s_off, st, sleep=8):
    b = Blk()
    b(f"""{lab}:
    s_mov_b32 s{st}, 0x10000
    {lab}_l:
    s_sleep {sleep}
    {flag_load(vdat, voff, s_off)}
    s_sub_u32 s{st}, s{st}, 1
    s_cmp_eq_u32 s{st}, 0
    s_waitcnt vmcnt(0)
    s_cbranch_scc1 {lab}_ret
    v_cmp_ne_u64 vcc, s[{S_NC}:{S_NC+1}], v[{vdat}:{vdat+1}]
    s_nop 1
    s_cbranch_vccnz {lab}_l
    s_branch {lab}_ret""")
    return b

def tr_addr(b, dsts, base, rowshift, vt, xor_s=None):
    a, c, d = vt
    b(f"""v_lshrrev_b32 v{a}, 4, v1
    v_lshrrev_b32 v{c}, 2, v1
    v_and_b32 v{c}, 3, v{c}
    v_lshl_add_u32 v{d}, v{a}, 3, v{c}
    v_lshlrev_b32 v{d}, {rowshift}, v{d}
    v_add_u32 v{d}, {base}, v{d}
    v_and_b32 v{a}, 1, v{a}
    v_lshlrev_b32 v{a}, 1, v{a}
    v_lshl_or_b32 v{a}, v{c}, 2, v{a}
    v_and_b32 v{c}, 1, v1
    v_lshl_add_u32 v{d}, v{c}, 3, v{d}
    v_lshrrev_b32 v{c}, 1, v1
    v_and_b32 v{c}, 1, v{c}
    v_xor_b32 v{a}, v{a}, v{c}""")
    if xor_s is not None: b(f"v_xor_b32 v{a}, s{xor_s}, v{a}")
    for ct, r in enumerate(dsts): b(f"v_xor_b32 v{c}, {2*ct}, v{a}\nv_lshl_add_u32 v{r}, v{c}, 4, v{d}")
def row_addr(b, d0, d1, base, vt):
    a, c, d = vt
    b(f"""v_and_b32 v{a}, 15, v1
    v_lshrrev_b32 v{c}, 1, v{a}
    v_lshlrev_b32 v{a}, 7, v{a}""")
    if base is not None: b(f"v_add_u32 v{a}, {base}, v{a}")
    b(f"""v_lshrrev_b32 v{d}, 4, v1
    v_xor_b32 v{c}, v{c}, v{d}
    v_lshl_add_u32 v{d0}, v{c}, 4, v{a}
    v_xor_b32 v{c}, 4, v{c}
    v_lshl_add_u32 v{d1}, v{c}, 4, v{a}""")
def oob_mask(v, n, vt):
    return [f"v_cmp_gt_u32 vcc, {n}, v1", f"v_mov_b32 v{vt}, 0x40000000", "s_nop 0", f"v_cndmask_b32 v{v}, v{vt}, v{v}, vcc"]

def code_touch(tag, start, sp, v, n=1):
    su = [[f"s_getpc_b64 s[{sp}:{sp+1}]", f"L_ct{tag}:"], f"s_lshl_b32 s{sp+2}, s{S_W}, 13", f"s_add_u32 s{sp+2}, s{sp+2}, {start} - L_ct{tag}",
          f"v_lshlrev_b32 v{v}, 7, v1", f"v_add_u32 v{v}, s{sp+2}, v{v}", f"s_mov_b32 s{sp+2}, L_codeend - L_ct{tag} - 4"]
    ld = []
    for k in range(n):
        ld.append(([f"v_add_u32 v{v}, 0x8000, v{v}"] if k else []) + [f"v_min_u32 v{v+1}, s{sp+2}, v{v}", f"global_load_dword a{252+k}, v{v+1}, s[{sp}:{sp+1}]"])
    return su, ld
```

```python
from g_common import *
import g_b as B
import g_q as Q
S_N, S_EV, S_A, S_A0, S_SRC, S_T, S_C = 48, 49, 50, 51, 53, 54, 58
S_MASK = 92
S_NEG = 57
V_L16, V_P = 4, 5
OA, OB, LA, LB, SX, SY, PX, PY, CA, CB = 16, 80, 144, 152, 160, 176, 192, 200, 208, 224
VT = 240
QA, QB, KF, VF, ONES = 0, 32, 64, 96, 128
XR = 132
LQ = 98304
V_WA, V_WQ = 144, 244
CSCALE = (128 ** -0.5) * 1.4426950408889634
import struct
def f2u(x): return struct.unpack("<I", struct.pack("<f", x))[0]

def koff(f): return (f >> 1) * 4096 + (f & 1) * 1024
def rdK(f): return f"ds_read_b128 {ar(KF + 4*f)}, v{V_P} offset:{koff(f)}"
def rdV(f): return f"ds_read_b128 {ar(VF + 4*f)}, v{V_P} offset:{koff(f) + 2048}"
def dma_blk():
    return ([f"s_and_b32 m0, s{S_SRC}, 0x1ffff"],
            [f"buffer_load_dwordx4 v{V_L16}, {sr(SRD_WS)}, s{S_SRC} offen offset:{p*1024} sc1 lds" for p in range(4)],
            [f"s_add_u32 s{S_SRC}, s{S_SRC}, 16384"])
ADV = [f"v_add_u32 v{V_P}, 0x4000, v{V_P}", f"v_and_b32 v{V_P}, 0x1ffff, v{V_P}"]

def qk(S, Q, C, czero=False):
    m = []
    for ks in range(2):
        for qs in range(2):
            d = vr(S + (qs*2 + ks)*4)
            for s in range(4):
                c = d if s else ("0" if czero else vr(C + (qs*2 + ks)*4))
                m.append(mfma16(d, ar(KF + (ks*4 + s)*4), ar(Q + (qs*4 + s)*4), c))
    return m
def pv(O, L, P):
    m = []
    for dt in range(8):
        for qs in range(2):
            m.append(mfma16(vr(O + (qs*8 + dt)*4), ar(VF + 4*dt), vr(P + 4*qs)))
    for qs in range(2):
        m.append(mfma16(vr(L + 4*qs), ar(ONES), vr(P + 4*qs)))
    return m
def softmax_ops(S, P):
    order = []
    for ks in range(2):
        for qs in range(2):
            for j in range(4): order.append((qs, ks, j))
    exps = [f"v_exp_f32 v{S+(qs*2+ks)*4+j}, v{S+(qs*2+ks)*4+j}" for qs, ks, j in order]
    cvts = []
    for k in range(8):
        qs, ks, j = order[2*k]
        r = S + (qs*2 + ks)*4 + j
        cvts.append(f"v_cvt_pk_bf16_f32 v{P + 4*qs + 2*ks + j//2}, v{r}, v{r+1}")
    return exps, cvts

def half(fill, base, S, P, K, V, vmw, dma, adv_first, adv_mid):
    e, c = softmax_ops(S, P)
    put = lambda g, x: fill.put(base + g, x)
    for k in range(16): put(2*k, e[k])
    if adv_first: put(1, ADV[0]); put(3, ADV[1])
    for k, g in enumerate([5, 7, 7, 9, 13, 15, 15, 17]):
        if K: put(g, K[k])
    if vmw is not None: put(11, [f"s_waitcnt vmcnt({vmw}) lgkmcnt({4 if K else 0})", "s_barrier"])
    if adv_mid: put(17, ADV[0]); put(19, ADV[1])
    for k, g in enumerate([19, 21, 23, 25, 27, 29, 31, 32]):
        if V: put(g, V[k])
    for k, g in enumerate([5, 9, 13, 17, 21, 25, 29, 33]): put(g, c[k])
    if dma:
        pre, d, post = dma_blk()
        put(12 if not K else 16, pre[0])
        for g, x in zip([19, 23, 27, 31] if K else [15, 19, 23, 27], d): put(g, x)
        put(32, post[0])

V_AUX, SRD_AUX, S_AUX, S_AUXS = 12, 44, 57, 38
A_SV = 220
import sys
CT30 = 2 if 'noct2' in sys.argv else 3
AUXF = ' nt' if 'auxnt' in sys.argv else ''
WTQ = False
AUX = True
NX30 = 0
def body(mode, nb, last=False, stores=()):
    QX = QA if mode == "S" else QB
    CX = CA if mode == "S" else CB
    OX, LX = (OA, LA) if mode in "ST" else (OB, LB)
    mf = qk(SX, QX, CX) + pv(OX, LX, PX) + qk(SY, QB, CB) + pv(OB, LB, PY)
    fill = Fill()
    K = [rdK(f) for f in range(8)]; V = [rdV(f) for f in range(8)]
    if nb == 1: w0, w1 = None, 4
    elif nb == 2: w0, w1 = (4 if mode == "S" else 8), 8
    else:
        w0, w1 = (5, 3) if not last else (63, 63)
        if not last: w0, w1 = w0 + CT30, w1 + CT30
        for g in (3, 21, 37, 55):
            fill.put(g, [f"buffer_load_dword a251, v{V_AUX}, {sr(SRD_AUX)}, s{S_AUX} offen{AUXF}"])
            fill.put(g + 4, [f"s_add_u32 s{S_AUX}, s{S_AUX}, s{S_AUXS}"])
    if mode == "S":
        half(fill, 0, SY, PY, [], [], w0, nb >= 1, False, False)
        half(fill, 34, SX, PX, K, V, w1, nb == 2, False, True)
    else:
        half(fill, 0, SY, PY, K, V, w0, nb >= 1, mode == "O", False)
        half(fill, 34, SX, PX, K, V, w1, nb == 2, True, False)
    for g, (pre, d) in zip((47, 53, 57, 61), stores): fill.put(g - 1, pre); fill.put(g, d)
    fill.put(33, f"s_add_u32 s{S_N}, s{S_N}, 1")
    if mode != "S": fill.put(33, "s_waitcnt lgkmcnt(8)")
    fill.put(66, f"s_cmp_lg_u32 s{S_N}, s{S_EV}")
    fill.put(67, "s_waitcnt lgkmcnt(8)")
    return interleave(mf, fill)

def mask_c(b, C, src):
    for j in range(4):
        b(f"v_cndmask_b32 v{C+j}, v{src[0]}, v{VT+15}, {sr(S_MASK+2*j, 2)}")
        b(f"v_cndmask_b32 v{C+12+j}, v{src[1]}, v{VT+15}, {sr(S_MASK+2*j, 2)}")
        b(f"v_mov_b32 v{C+4+j}, v{VT+15}")

LSCR = 131072
WT_V = [8, 9, 10, 11, 13, 14]
S_WTA, S_WTB, A_WT, T = 52, 3, 132, 54
S_WO1, S_WO2 = 58, 59
SRD_Y = SRD_A
S_EVM = 36
def early(d=56, t=(2, 3, 0)):
    b = Blk()
    a, c, e = t
    b(f"s_mul_i32 s95, s{S_W}, 320\nv_add_u32 v{a}, s95, v1")
    for p in range(5):
        b(f"""v_add_u32 v{c}, {64*p}, v{a}
        v_mul_u32_u24 v{d}, 1639, v{c}
        v_lshrrev_b32 v{d}, 16, v{d}
        v_mul_u32_u24 v{d}, {1280 - 640}, v{d}
        v_lshl_add_u32 v{d}, v{c}, 4, v{d}
        v_accvgpr_write_b32 a{A_SV+p}, v{d}""")
    b(f"""s_lshl_b32 s95, s{S_W}, 3
    v_lshrrev_b32 v{a}, 3, v1
    v_add_u32 v{a}, s95, v{a}
    v_mul_u32_u24 v{a}, 1280, v{a}
    v_and_b32 v{c}, 7, v1
    v_lshl_add_u32 v{d}, v{c}, 4, v{a}
    v_accvgpr_write_b32 a{A_SV+5}, v{d}
    v_lshrrev_b32 v{a}, 4, v1
    v_lshrrev_b32 v{c}, 2, v1
    v_and_b32 v{c}, 3, v{c}
    v_and_b32 v{e}, 3, v1
    v_lshlrev_b32 v{e}, 3, v{e}
    v_lshl_add_u32 v{d}, v{a}, 2, v{c}
    v_mul_u32_u24 v{d}, 640, v{d}
    s_mul_i32 s95, s{S_W}, 160
    s_add_u32 s95, s95, {LSCR}
    v_add3_u32 v{d}, v{d}, v{e}, s95
    v_accvgpr_write_b32 a{A_SV+6}, v{d}
    v_lshl_add_u32 v{d}, v{a}, 3, v{c}
    v_lshlrev_b32 v{d}, 7, v{d}
    s_lshl_b32 s95, s{S_W}, 5
    s_add_u32 s95, s95, {LSCR}
    v_add3_u32 v{d}, v{d}, v{e}, s95
    v_accvgpr_write_b32 a{A_SV+7}, v{d}
    v_lshlrev_b32 v{d}, 7, v1
    v_cmp_gt_u32 vcc, 7, v1
    v_mov_b32 v{a}, 0x40000000
    s_nop 0
    v_cndmask_b32 v{d}, v{a}, v{d}, vcc
    v_accvgpr_write_b32 a{A_SV+8}, v{d}
    s_mul_i32 s95, s{S_W}, 192
    v_add_u32 v{a}, s95, v1""")
    for p in range(3):
        b(f"""v_add_u32 v{c}, {64*p}, v{a}
        v_mul_u32_u24 v{d}, 2731, v{c}
        v_lshrrev_b32 v{d}, 16, v{d}
        v_mul_u32_u24 v{d}, {3840 - 384}, v{d}
        v_lshl_add_u32 v{d}, v{c}, 4, v{d}
        v_accvgpr_write_b32 a{A_SV+9+p}, v{d}""")
    b(f"""v_lshrrev_b32 v{a}, 4, v1
    v_lshrrev_b32 v{c}, 2, v1
    v_and_b32 v{c}, 3, v{c}
    v_lshl_add_u32 v{d}, v{a}, 3, v{c}
    v_mul_u32_u24 v{d}, 384, v{d}
    s_mul_i32 s95, s{S_W}, 96
    s_add_u32 s95, s95, {LSCR + 20480}
    v_add3_u32 v{d}, v{d}, v{e}, s95
    v_accvgpr_write_b32 a{A_SV+12}, v{d}""")
    return b.l

def wq1(b):
    srd(b, SRD_A, 18, SZ['B_wqkv'])
    for p in range(3): b(f"v_accvgpr_read_b32 v{WT_V[p]}, a{A_SV+9+p}")
    b(f"""s_mul_i32 s{T+1}, s2, 205
    s_lshr_b32 s{T+1}, s{T+1}, 11
    s_mul_i32 s{T+2}, s{T+1}, {32*3840 - 3840}
    s_mul_i32 s{T}, s2, 384
    s_add_u32 s{S_WO1}, s{T+2}, s{T}
    s_mul_i32 s{T}, s{S_W}, 3072""")
    for p in range(3):
        b(f"s_add_u32 m0, s{T}, {LSCR + 20480 + p*1024}\ns_nop 0\nbuffer_load_dwordx4 v{WT_V[p]}, {sr(SRD_A)}, s{S_WO1} offen nt lds")
def wq2(b):
    b(f"v_accvgpr_read_b32 v10, a{A_SV+12}\ns_nop 0")
    for fr in range(3):
        for u in range(2): b(f"ds_read_b64_tr_b16 {ar(A_WT + 4*fr + 2*u, 2)}, v10 offset:{fr*32 + u*1536}")
    b(f"""s_mul_i32 s{T+1}, s2, 205
    s_lshr_b32 s{T+1}, s{T+1}, 11
    s_mul_i32 s{T+2}, s{T+1}, 10
    s_sub_u32 s{T+2}, s2, s{T+2}
    s_lshl_b32 s{T+2}, s{T+2}, 2
    s_add_u32 s{T+2}, s{T+2}, s{S_W}
    s_mul_i32 s{S_WO1}, s{T+2}, {3*STB}
    s_lshl_b32 s{T+1}, s{T+1}, 10
    s_add_u32 s{S_WO1}, s{S_WO1}, s{T+1}
    s_add_u32 s{S_WO1}, s{S_WO1}, {WS_WQT}
    s_cmp_lt_u32 s2, 200
    s_cselect_b32 s{S_WO1}, s{S_WO1}, {WS_SIZE}
    s_waitcnt lgkmcnt(0)""")
    for k in range(3):
        b(f"buffer_store_dwordx4 {ar(A_WT + 4*k)}, v{V_L16}, {sr(SRD_WS)}, s{S_WO1} offen{SC}")
        if k < 2: b(f"s_add_u32 s{S_WO1}, s{S_WO1}, {STB}")

def wt1(b):
    srd(b, SRD_A, 14, SZ['A_wo'])
    for p in range(5): b(f"v_accvgpr_read_b32 v{WT_V[p]}, a{A_SV+p}")
    b(f"""s_and_b32 s{T}, s2, 1
    s_lshr_b32 s{T+1}, s2, 1
    s_mul_i32 s{S_WO1}, s{T+1}, {32*1280}
    s_mul_i32 s{T}, s{T}, 640
    s_add_u32 s{S_WO1}, s{S_WO1}, s{T}
    s_mul_i32 s{T}, s{S_W}, 5120""")
    for p in range(5):
        b(f"s_add_u32 m0, s{T}, {LSCR + p*1024}\ns_nop 0\nbuffer_load_dwordx4 v{WT_V[p]}, {sr(SRD_A)}, s{S_WO1} offen nt lds")
def wt2(b):
    b(f"v_accvgpr_read_b32 v11, a{A_SV+6}\ns_nop 0")
    for fr in range(5):
        for u in range(2): b(f"ds_read_b64_tr_b16 {ar(A_WT + 12 + 4*fr + 2*u, 2)}, v11 offset:{fr*32 + u*10240}")
    b(f"""s_and_b32 s{T}, s2, 1
    s_mul_i32 s{T}, s{T}, 20
    s_mul_i32 s{T+2}, s{S_W}, 5
    s_add_u32 s{T}, s{T}, s{T+2}
    s_mul_i32 s{S_WO2}, s{T}, {STA}
    s_lshr_b32 s{T+1}, s2, 1
    s_lshl_b32 s{T+1}, s{T+1}, 10
    s_add_u32 s{S_WO2}, s{S_WO2}, s{T+1}
    s_add_u32 s{S_WO2}, s{S_WO2}, {WS_WOT}""")
    wq2(b)
    for k in range(5):
        b(f"buffer_store_dwordx4 {ar(A_WT + 12 + 4*k)}, v{V_L16}, {sr(SRD_WS)}, s{S_WO2} offen{SC}")
        if k < 4: b(f"s_add_u32 s{S_WO2}, s{S_WO2}, {STA}")
def wb1(b):
    srd(b, SRD_A, 20, SZ['B_wo'])
    b(f"""v_accvgpr_read_b32 v14, a{A_SV+5}
    s_mul_i32 s{T+1}, s2, 205
    s_lshr_b32 s{T+1}, s{T+1}, 11
    s_mul_i32 s{T+2}, s{T+1}, {32*1280 - 1280}
    s_lshl_b32 s{T}, s2, 7
    s_add_u32 s{T+2}, s{T+2}, s{T}
    s_lshl_b32 s{T}, s{S_W}, 10
    s_add_u32 m0, s{T}, {LSCR}
    s_nop 0
    buffer_load_dwordx4 v14, {sr(SRD_A)}, s{T+2} offen nt lds""")
def wb2(b):
    b(f"v_accvgpr_read_b32 v11, a{A_SV+7}\ns_nop 0")
    for u in range(2): b(f"ds_read_b64_tr_b16 {ar(244 + 2*u, 2)}, v11 offset:{u*512}")
    b(f"""s_mul_i32 s{T+1}, s2, 205
    s_lshr_b32 s{T+1}, s{T+1}, 11
    s_mul_i32 s{T+2}, s{T+1}, 10
    s_sub_u32 s{T+2}, s2, s{T+2}
    s_lshl_b32 s{T+2}, s{T+2}, 2
    s_add_u32 s{T+2}, s{T+2}, s{S_W}
    s_mul_i32 s{S_WO1}, s{T+2}, {STB}
    s_lshl_b32 s{T+1}, s{T+1}, 10
    s_add_u32 s{S_WO1}, s{S_WO1}, s{T+1}
    s_add_u32 s{S_WO1}, s{S_WO1}, {WS_WOBT}
    s_cmp_lt_u32 s2, 200
    s_cselect_b32 s{S_WO1}, s{S_WO1}, {WS_SIZE}""")
def aux_on(b):
    srd(b, SRD_AUX, 16, SZ['B_x'])
    b(f"""s_lshl_b32 s{T+1}, s{S_RB}, 6
    s_and_b32 s{T}, s{S_Q}, 3
    s_lshl_b32 s{T}, s{T}, 2
    s_add_u32 s{T}, s{T}, s{S_W}
    s_mul_i32 s{T}, s{T}, 5
    s_add_u32 s{T+1}, s{T+1}, s{T}
    s_max_u32 s{T+1}, s{T+1}, 16
    s_sub_u32 s{T+1}, s{T+1}, 16
    s_mul_i32 s{S_AUX}, s{T+1}, 1280
    s_mov_b32 s{S_AUXS}, {7*128}""")

WARM = ["LA_S1", "LA_S2", "LA_T2", "LA_O2", "LA_SK", "LA_e1", "LA_fa", "LA_act", "LA_O0", "LA_O0L", "LA_T0", "LA_S0"]
def warm(b):
    if 'warm' not in sys.argv: return
    for w in range(4):
        if w < 3: b(f"s_cmp_lg_u32 s{S_W}, {w}\ns_cbranch_scc1 LW_w{w+1}")
        for t in WARM[w::4]: b(f"s_branch {t}_w\n{t}_wr:")
        if w < 3: b(f"s_branch LW_done\nLW_w{w+1}:")
    b("LW_done:")
def target(b, t):
    if t in WARM and 'warm' in sys.argv: b(f".p2align 6\n{t}_w:\ns_branch {t}_wr\ns_nop 0\n{t}:")
    else: b(f".p2align 6\n{t}:")
def late_setup(b):
    T = S_T
    b(f"v_accvgpr_read_b32 v{V_AUX}, a{A_SV+8}")
    aux_on(b)
    fixed = sum(1 << n for n in FIXED)
    b(f"""s_lshl_b64 s[{S_EVM}:{S_EVM+1}], 7, s{S_A}
    s_lshl_b64 s[{T}:{T+1}], 1, s{S_A0}
    s_or_b64 s[{S_EVM}:{S_EVM+1}], s[{S_EVM}:{S_EVM+1}], s[{T}:{T+1}]
    s_lshr_b64 s[{S_EVM}:{S_EVM+1}], s[{S_EVM}:{S_EVM+1}], 1
    s_lshl_b64 s[{T}:{T+1}], 32, s{S_A0}
    s_or_b32 s{S_EVM}, s{S_EVM}, s{T}
    s_or_b32 s{S_EVM}, s{S_EVM}, {fixed & 0xffffffff}
    s_or_b32 s{S_EVM+1}, s{S_EVM+1}, 1""")

def attn_prologue(b):
    T = S_T
    b(f"""s_lshl_b32 s{S_A0}, s{S_RT}, 2
    s_add_u32 s{S_A}, s{S_A0}, s{S_W}
    v_lshlrev_b32 v{V_L16}, 4, v1
    v_lshrrev_b32 v2, 4, v1
    v_lshlrev_b32 v2, 2, v2
    v_and_b32 v3, 15, v1
    v_mov_b32 v{VT+15}, 0xf149f2ca
    v_mov_b32 v{V_P}, v{V_L16}
    v_mov_b32 v6, 0x3f803f80""")
    for j in range(4):
        b(f"v_add_u32 v7, {j}, v2\nv_cmp_gt_u32 {sr(S_MASK+2*j, 2)}, v7, v3\nv_accvgpr_write_b32 a{ONES+j}, v6")
    if not WTQ: wt1(b); wq1(b)
    for r in list(range(OA, 64)) + list(range(128, LB+8)) + list(range(CA, CA+16)): b(f"v_mov_b32 v{r}, 0")
    b(f"v_mov_b32 v6, 0\ns_cmp_lg_u32 s{S_A}, 0\ns_cbranch_scc1 LA_nomask0")
    mask_c(b, CA, [6, 6])
    b("LA_nomask0:")
    late_setup(b)
    warm(b)
    b("s_waitcnt vmcnt(24)\ns_barrier")
    for f in range(8): b(rdK(f))
    b("s_waitcnt vmcnt(16)\ns_barrier\ns_waitcnt lgkmcnt(0)")
    b.ext(qk(SX, QA, CA)); b.ext(qk(SY, QB, 0, czero=True))
    b.ext(ADV)
    for f in range(8): b(rdK(f))
    b.ext(ADV)
    for f in range(8): b(rdV(f))
    for (S, C, tb) in ((SX, CA, VT), (SY, CB, VT+4)):
        for qs in range(2):
            r = S + qs*8; m = tb + 2*qs
            b(f"""v_max3_f32 v{m}, v{r}, v{r+1}, v{r+2}
            v_max3_f32 v{m+1}, v{r+3}, v{r+4}, v{r+5}
            v_max3_f32 v{m}, v{m}, v{r+6}, v{r+7}
            v_max_f32 v{m}, v{m}, v{m+1}
            v_mov_b32 v{m+1}, v{m}""")
    b("s_nop 1")
    for m in (VT, VT+2, VT+4, VT+6): b(f"v_permlane32_swap_b32 v{m}, v{m+1}")
    for m in (VT, VT+2, VT+4, VT+6): b(f"v_max_f32 v{m}, v{m}, v{m+1}\nv_mov_b32 v{m+1}, v{m}")
    b("s_nop 1")
    for m in (VT, VT+2, VT+4, VT+6): b(f"v_permlane16_swap_b32 v{m}, v{m+1}")
    for m in (VT, VT+2, VT+4, VT+6): b(f"v_max_f32 v{m}, v{m}, v{m+1}\nv_sub_f32 v{m}, 0, v{m}")
    for (S, C, tb) in ((SX, CA, VT), (SY, CB, VT+4)):
        for qs in range(2):
            for k in range(8):
                b(f"v_add_f32 v{S+qs*8+k}, v{S+qs*8+k}, v{tb+2*qs}")
                b(f"v_mov_b32 v{C+qs*8+k}, v{tb+2*qs}")
    e, c = softmax_ops(SX, PX)
    b.ext(e); b.ext(c)
    if WTQ:
        b("s_waitcnt vmcnt(0)\ns_barrier")
        wt2(b)
        b(f"s_mov_b32 s{S_N}, 0\ns_mov_b32 s89, 0")
    else:
        b(f"""s_mov_b32 s{S_N}, 0
        s_mov_b32 s89, 0
        s_waitcnt vmcnt(12) lgkmcnt(0)
        s_barrier""")

N_WT2, N_PL, N_KC, N_CT = 7, 8, 9, 30
FIXED = (N_WT2, N_PL, N_KC, 30, 31)
ACT = sum(1 << n for n in (N_WT2, N_PL, N_KC, N_CT, 31))
def handler(cx, b, ool):
    T = S_T
    acts = {}
    b("LA_H:")
    if "evst" in cx.opts:
        b(f"""s_memtime s[90:91]
        s_waitcnt lgkmcnt(0)
        s_mov_b32 m0, s89
        s_nop 0
        s_movreld_b32 s74, s90
        s_movreld_b32 s60, s{S_N}
        s_add_u32 s89, s89, 1""")
        cx.nst = 14
    b(f"""s_cmp_eq_u32 s{S_N}, 32
    s_cbranch_scc1 LA_fin
    s_add_u32 s{T}, s{S_N}, 1
    s_lshr_b64 s[{T+4}:{T+5}], s[{S_EVM}:{S_EVM+1}], s{T}
    s_ff1_i32_b64 s{S_EV}, s[{T+4}:{T+5}]
    s_add_u32 s{S_EV}, s{S_EV}, s{T}
    s_cmp_eq_u32 s{T}, s{S_A}
    s_cbranch_scc1 LA_e1
    LA_e1r:
    s_sub_u32 s{T}, s{S_N}, 5
    s_cmp_eq_u32 s{T}, s{S_A0}
    s_cbranch_scc1 LA_fa
    LA_far:
    s_mov_b32 s{T}, {ACT}
    s_bitcmp1_b32 s{T}, s{S_N}
    s_cbranch_scc1 LA_act
    LA_sel:
    s_cmp_eq_u32 s{S_N}, 0
    s_cbranch_scc1 LA_sel00
    LA_selr:
    s_cmp_ge_u32 s{S_N}, 30
    s_cbranch_scc1 LA_sel0
    s_cmp_gt_u32 s{S_N}, s{S_A}
    s_cbranch_scc1 LA_O2
    s_cmp_eq_u32 s{S_N}, s{S_A}
    s_cbranch_scc1 LA_T2
    s_add_u32 s{T}, s{S_N}, 2
    s_cmp_gt_u32 s{T}, s{S_A0}
    s_cbranch_scc1 LA_S2
    s_branch LA_S1
    LA_sel00:
    s_cmp_lt_u32 s{S_RT}, {LATE}
    s_cbranch_scc1 LA_selr
    s_branch LA_SK
    LA_sel1:
    s_cmp_eq_u32 s{S_A}, 31
    s_cbranch_scc1 LA_T0L
    s_branch LA_O0L
    LA_sel0:
    s_cmp_eq_u32 s{S_N}, 31
    s_cbranch_scc1 LA_sel1
    s_cmp_gt_u32 s{S_N}, s{S_A}
    s_cbranch_scc1 LA_O0
    s_cmp_eq_u32 s{S_N}, s{S_A}
    s_cbranch_scc1 LA_T0
    s_branch LA_S0""")
    e1 = Blk(); e1(f"v_mov_b32 v{VT}, v{CA}"); mask_c(e1, CA, [VT, CA+8])
    target(ool, "LA_e1"); ool.ext(e1); ool("s_branch LA_e1r")
    fa = Blk(); fin_tile(fa, OA, LA, True, None)
    target(ool, "LA_fa"); ool.ext(fa); ool("s_branch LA_far")
    e4 = Blk(); e4(f"v_mov_b32 v{VT}, v{CB}"); mask_c(e4, CB, [VT, CB+8]); acts[31] = e4
    w2 = Blk()
    w2(f"""s_lshl_b32 s52, s{S_H}, 7
    s_add_u32 s52, s52, {F_KV}
    s_lshl_b32 s{T}, s{S_RT}, 3
    s_add_u32 s{T}, s{T}, s52""")
    flag_store(w2, T, "LA_kf")
    wp = Blk(); wp(f"v_and_b32 v8, 7, v1\nv_lshlrev_b32 v8, 3, v8\n" + flag_load(10, 8, 52)); acts[N_PL] = wp
    if not WTQ: wt2(w2)
    acts[N_WT2] = w2
    wk = Blk(); wk("s_waitcnt vmcnt(4)"); wk.ext(flag_check("LA_ks", 10)); ool.ext(flag_spin("LA_ks", 10, 8, 52, T, sleep=2))
    wk(f"s_lshl_b32 s{T}, s2, 3\ns_add_u32 s{T}, s{T}, {F_WT}"); flag_store(wk, T, "LA_wf")
    acts[N_KC] = wk
    if "noct2" not in cx.opts:
        w4 = Blk(); su, ld = code_touch("b", "LA_fin", T, 8, 1)
        for x in su + ld: w4.ext([x] if isinstance(x, str) else x)
    else: w4 = Blk()
    w4(f"v_lshlrev_b32 v13, 3, v1\ns_lshl_b32 s52, s{S_W}, 9\ns_add_u32 s52, s52, {F_WT}\n" + flag_load(10, 13, 52))
    wb1(w4)
    acts[N_CT] = w4
    target(ool, "LA_act")
    keys = sorted(acts)
    for n in keys[:-1]: ool(f"s_cmp_eq_u32 s{S_N}, {n}\ns_cbranch_scc1 LA_act{n}")
    for n in reversed(keys):
        ool(f"LA_act{n}:"); ool.ext(acts[n]); ool("s_branch LA_sel")
    return e1.l, fa.l, {n: a.l for n, a in acts.items()}

def fin_tile(b, O, L, isA, hook):
    T = S_T
    if isA:
        b(f"""s_lshl_b32 s{T}, s{S_H}, 12
        s_add_u32 s{T}, s{T}, {WS_CTX}
        s_mul_i32 s{T+1}, s{S_A}, {2*STA}
        s_add_u32 s{T}, s{T}, s{T+1}""")
    for qs in range(2): b(f"v_rcp_f32 v{VT+8+2*qs}, v{L+4*qs}")
    for qs in range(2): b(f"v_mov_b32 v{VT+9+2*qs}, v{VT+8+2*qs}")
    for qs in range(2):
        if qs and isA: b(f"s_add_u32 s{T}, s{T}, {STA}")
        for s in range(4):
            t = O + (qs*4 + s)*4
            r = O + (qs*8 + 2*s)*4
            for k in range(4): b(f"v_pk_mul_f32 v[{r+2*k}:{r+2*k+1}], v[{r+2*k}:{r+2*k+1}], v[{VT+8+2*qs}:{VT+9+2*qs}]")
            if hook: hook()
            for k in range(4): b(f"v_cvt_pk_bf16_f32 v{t+k}, v{r+2*k}, v{r+2*k+1}")
            if hook: hook()
            if isA: b(f"buffer_store_dwordx4 {vr(t)}, v{V_L16}, {sr(SRD_WS)}, s{T} offen offset:{s*1024}{SC}")
def ctxb_stores():
    return [([f"s_add_u32 s{S_WO2}, s{S_WO2}, {STA}"] if k == 4 else [],
             f"buffer_store_dwordx4 {vr(OB + 4*k)}, v{V_L16}, {sr(SRD_WS)}, s{S_WO2} offen offset:{(k&3)*1024}{SC}", "ctx") for k in range(8)] + [([], f"buffer_store_dwordx4 {ar(244)}, v{V_L16}, {sr(SRD_WS)}, s{S_WO1} offen{SC}", "ctx")]

def slow_tile(b, lab, O, L, Q, isA):
    T = S_T; M0, AL, X = VT, VT + 2, VT + 4
    b(f"{lab}:")
    b(f"s_mov_b32 s{S_EV}, s{S_A}" if isA else f"s_sub_u32 s{S_EV}, 63, s{S_A}")
    b(f"""s_waitcnt vmcnt(0) lgkmcnt(0)
    s_mul_i32 s{S_SRC}, s{S_H}, {KV_HS}
    s_mov_b32 s{S_N}, 0
    s_nop 7
    v_mov_b32 v{M0}, v{VT+15}
    v_mov_b32 v{M0+1}, v{VT+15}""")
    for r in list(range(O, O + 64)) + list(range(L, L + 8)) + list(range(CA, CA + 16)): b(f"v_mov_b32 v{r}, 0")
    b(f"{lab}_l:")
    for f in range(8):
        if f % 2 == 0: b(f"s_add_u32 s{T}, s{S_SRC}, {(f>>1)*4096}\ns_add_u32 s{T+1}, s{T}, 32768")
        b(f"buffer_load_dwordx4 {ar(KF + 4*f)}, v{V_L16}, {sr(SRD_WS)}, s{T} offen offset:{(f&1)*1024} sc1")
        b(f"buffer_load_dwordx4 {ar(VF + 4*f)}, v{V_L16}, {sr(SRD_WS)}, s{T+1} offen offset:{2048 + (f&1)*1024} sc1")
    b(f"s_cmp_lg_u32 s{S_N}, s{S_EV}\ns_cbranch_scc1 {lab}_nm\nv_mov_b32 v{X}, 0")
    mask_c(b, CA, [X, X])
    b(f"{lab}_nm:\ns_waitcnt vmcnt(0)")
    b.ext(qk(SX, Q, CA))
    b("s_nop 7")
    for qs in range(2):
        r = SX + qs*8; m = X + 2*qs
        b(f"""v_max3_f32 v{m}, v{r}, v{r+1}, v{r+2}
        v_max3_f32 v{m+1}, v{r+3}, v{r+4}, v{r+5}
        v_max3_f32 v{m}, v{m}, v{r+6}, v{r+7}
        v_max3_f32 v{m}, v{m}, v{m+1}, v{M0+qs}
        v_mov_b32 v{m+1}, v{m}""")
    for sw in ("v_permlane32_swap_b32", "v_permlane16_swap_b32"):
        b("s_nop 1")
        for qs in range(2): b(f"{sw} v{X+2*qs}, v{X+2*qs+1}")
        for qs in range(2): b(f"v_max_f32 v{X+2*qs}, v{X+2*qs}, v{X+2*qs+1}\nv_mov_b32 v{X+2*qs+1}, v{X+2*qs}")
    for qs in range(2):
        b(f"v_sub_f32 v{X+4+2*qs}, v{M0+qs}, v{X+2*qs}\nv_mov_b32 v{M0+qs}, v{X+2*qs}\nv_exp_f32 v{X+4+2*qs}, v{X+4+2*qs}")
        for k in range(8): b(f"v_sub_f32 v{SX+qs*8+k}, v{SX+qs*8+k}, v{M0+qs}")
    e, c = softmax_ops(SX, PX)
    b.ext(e); b.ext(c)
    for qs in range(2):
        for r in list(range(O + qs*32, O + qs*32 + 32)) + list(range(L + 4*qs, L + 4*qs + 4)): b(f"v_mul_f32 v{r}, v{r}, v{X+4+2*qs}")
    b("s_nop 1")
    b.ext(pv(O, L, PX))
    b(f"""s_add_u32 s{S_SRC}, s{S_SRC}, 16384
    s_add_u32 s{S_N}, s{S_N}, 1
    s_cmp_le_u32 s{S_N}, s{S_EV}
    s_nop 7
    s_cbranch_scc1 {lab}_l""")
    if isA: fin_tile(b, OA, LA, True, None)
    b(f"s_branch {lab}_ret")

def finalize(cx, b, vm, ool):
    T = S_T
    b("LA_fin:")
    cx.stamp(b)
    b("s_waitcnt vmcnt(8) lgkmcnt(0)")
    b.ext(flag_check("LA_ws", 10)); ool.ext(flag_spin("LA_ws", 10, 13, 52, T, sleep=2))
    b("s_barrier")
    wb2(b)
    b(f"s_cmp_lg_u32 s{S_RT}, 7\ns_cbranch_scc1 LA_fin2")
    fin_tile(b, OA, LA, True, None)
    b("LA_fin2:")
    b.ext(pv(OB, LB, PX))
    b(f"""    v_add_f32 v{VT+1}, v{LA}, v{LA+4}
    v_mov_b32 v{VT+2}, 0x5d800000
    v_cmp_nle_f32 vcc, v{VT+1}, v{VT+2}
    s_nop 1
    s_cbranch_vccnz LA_slowA
    LA_slowA_ret:
    v_mov_b32 v{VT+2}, 0x5d800000
    s_nop 0
    v_add_f32 v{VT+1}, v{LB}, v{LB+4}
    v_cmp_nle_f32 vcc, v{VT+1}, v{VT+2}
    s_nop 1
    s_cbranch_vccnz LA_slowB
    LA_slowB_ret:""")
    sa = Blk(); slow_tile(sa, "LA_slowA", OA, LA, QA, True); sb = Blk(); slow_tile(sb, "LA_slowB", OB, LB, QB, False)
    ool.ext(sa); ool.ext(sb)
    cx.slow = sa.l + sb.l
    b("s_waitcnt lgkmcnt(0)")
    b.ext(B.setup_s())
    dm = B.initial()
    b(f"""s_lshl_b32 s{T}, s{S_H}, 12
    s_add_u32 s{T}, s{T}, {WS_CTX}
    s_mul_i32 s{T+1}, s{S_A}, {2*STA}
    s_sub_u32 s{T+1}, {126*STA}, s{T+1}
    s_add_u32 s{S_WO2}, s{T}, s{T+1}""")
    def emit_dma(n=1):
        for _ in range(n):
            if dm:
                pre, d, tag = dm.pop(0)
                b.ext(pre)
                if pre: b("s_nop 0")
                b(d); vm.issue(tag)
    emit_dma(8)
    fin_tile(b, OB, LB, False, emit_dma)
    return dm

def build_attn(cx, b, ool):
    hb = Blk(); e1, fa, acts = handler(cx, hb, ool); b.ext(hb)
    bodies = {}
    for nm in ("S1", "S2", "T2", "O2", "S0", "T0", "O0", "T0L", "O0L"):
        raw = body(nm[0], int(nm[1]), nm.endswith("L"))
        import re
        if "a_novm" in cx.opts: raw = [re.sub(r"vmcnt\(\d+\) ", "", x) for x in raw]
        if "a_nodma" in cx.opts: raw = [x for x in raw if not x.startswith("buffer_load")]
        if "a_nobar" in cx.opts: raw = [x for x in raw if x != "s_barrier"]
        if "a_nods" in cx.opts: raw = [x for x in raw if not x.startswith("ds_read")]
        if "a_noexp" in cx.opts: raw = [x for x in raw if not x.startswith("v_exp")]
        if "a_nosc1" in cx.opts: raw = [x.replace(" sc1", "") for x in raw]
        bodies[nm] = loop_waits(raw)
        target(b, f"LA_{nm}")
        b.ext(bodies[nm])
        b(f"s_cbranch_scc1 LA_{nm}\ns_branch LA_H")
    ls = Q.late_stores(V_L16, 52)
    sk = []
    for k in range(6): sk += body("S", 1, stores=ls[4*k:4*k+4])
    sk = add_lgkm_waits(sk, bodies["S1"])
    target(b, "LA_SK"); b.ext(sk); b("s_cbranch_scc1 LA_S1\ns_branch LA_H")
    def trace(i, w):
        a0 = 4*i; a = a0 + w
        tr = []
        if i >= LATE: tr += sk
        for n in range(6 if i >= LATE else 0, 32):
            if n + 1 == a: tr += e1
            if n == a0 + 5: tr += fa
            tr += acts.get(n, [])
            tr += ["s_nop 0"] * 3
            mode = "S" if n < a else ("T" if n == a else "O")
            nb = 0 if n >= 30 else (2 if n + 2 > a0 else 1)
            tr += bodies[mode + str(nb) + ('L' if n == 31 else '')]
        return tr
    return trace
```

```python
from g_common import *
S_R0, S_MX, S_MW, S_OX, S_OW, T = 48, 49, 51, 52, 53, 54
import sys
BNT = ' nt' if 'bnt' in sys.argv else ''
STG = 49152
V_XD, V_WD, V_XA = 200, 203, 207
HI = [16, 17, 18, 19, 20, 21]
TV = (184, 185, 186, 187, 188)
ACC = 112
XF, WF = [0, 36], [20, 56]
RS = 520
XS = 12288
A_SAVE = 234
def setup_early(V_XD=32, V_WD=35, V_XA=39, TV=(50, 51, 52, 53)):
    b = Blk()
    t0, t2, t3, t4 = TV
    b(f"""s_lshl_b32 s{T+1}, s{S_RB}, 6
    s_mul_i32 s{T}, s{S_W}, 24
    s_add_u32 s{T}, s{T}, s{T+1}
    s_sub_u32 s{T}, s{T}, 16
    s_and_b32 s{T+1}, s{S_W}, 1
    s_lshl_b32 s{T+1}, s{T+1}, 2
    v_lshrrev_b32 v{t2}, 3, v1
    v_add_u32 v{t2}, s{T}, v{t2}
    v_lshrrev_b32 v{t3}, 4, v1
    v_and_b32 v{t0}, 7, v1
    v_xor_b32 v{t3}, v{t3}, v{t0}
    v_xor_b32 v{t3}, s{T+1}, v{t3}""")
    for q in range(3):
        b(f"""v_add_u32 v{t0}, {8*q}, v{t2}
        v_max_i32 v{t0}, 0, v{t0}
        v_mul_u32_u24 v{t0}, 1280, v{t0}
        v_xor_b32 v{t4}, {4*(q&1)}, v{t3}
        v_lshl_add_u32 v{V_XD+q}, v{t4}, 4, v{t0}""")
    b(f"v_lshlrev_b32 v{t0}, 4, v1\ns_mul_i32 s{T+2}, s{S_CG}, 5")
    for j in range(4):
        b(f"""s_lshl_b32 s{T}, s{S_W}, 2
        s_add_u32 s{T}, s{T}, {j}
        s_min_u32 s{T}, s{T}, 14
        s_mul_i32 s{T+1}, s{T}, 52
        s_lshr_b32 s{T+1}, s{T+1}, 8
        s_mul_i32 s{T+1}, s{T+1}, 35
        s_add_u32 s{T}, s{T}, s{T+1}
        s_add_u32 s{T}, s{T}, s{T+2}
        s_mul_i32 s{T}, s{T}, {STB}
        s_add_u32 s{T}, s{T}, {WS_WQT}
        v_add_u32 v{V_WD+j}, s{T}, v{t0}""")
    row_addr(b, V_XA, V_XA+1, None, TV[:3])
    for k in range(9): b(f"v_accvgpr_write_b32 a{A_SAVE+k}, v{V_XD+k}")
    return b.l
def setup_s():
    b = Blk()
    srd(b, SRD_A, 16, SZ['B_x'])
    b(f"s_lshl_b32 s{S_R0}, s{S_RB}, 6\ns_mul_i32 s{S_MX}, s{S_W}, 3072\ns_mov_b32 s{S_OW}, 0")
    for k in range(9): b(f"v_accvgpr_read_b32 v{V_XD+k}, a{A_SAVE+k}")
    return b.l
def dmaX(st):
    return [(([f"s_mov_b32 s{S_OX}, {st*128}"] if q == 0 else []) + [f"s_add_u32 m0, s{S_MX}, {(st%4)*XS + q*1024}"],
             f"buffer_load_dwordx4 v{V_XD+q}, {sr(SRD_A)}, s{S_OX} offen lds", ("x", st)) for q in range(3)]
def wreg(kk, j): return 72 + (kk % 6)*16 + 4*j
def ldW(kk):
    return [([f"s_add_u32 s{S_OW}, s{S_OW}, 4096"] if (j == 0 and kk % 4 == 0 and kk) else [],
             f"buffer_load_dwordx4 {ar(wreg(kk, j))}, v{V_WD+j}, {sr(SRD_WS)}, s{S_OW} offen offset:{(kk%4)*1024} sc1", ("w", kk)) for j in range(4)]
def initial():
    return dmaX(0) + ldW(0) + ldW(1) + dmaX(1) + ldW(2) + ldW(3) + dmaX(2) + ldW(4) + dmaX(3)
def reads(kk): return [f"ds_read_b128 {ar(20*(kk&1) + 4*rs)}, v{V_XA + (kk&1)} offset:{((kk//2)%4)*XS + rs*2048}" for rs in range(5)]

CF_KK = 5
PK = 10
def gemm(cx, b, vm, extra, polls, rest, cst, chk, pref):
    for pre, d, tag in rest:
        b.ext(pre)
        if pre: b("s_nop 0")
        b(d); vm.issue(tag)
    b(f"""s_lshl_b32 s{T}, s{S_RT}, 8
    s_lshl_b32 s{T+1}, s{S_H}, 3
    s_add_u32 s50, s{T}, s{T+1}
    s_add_u32 s50, s50, {F_CTX}
    s_lshl_b32 s51, s2, 3
    s_add_u32 s51, s51, {F_W2}
    s_waitcnt vmcnt({vm.need(('x', 0))})
    s_barrier""")
    first = reads(0); b.ext(first)
    code = []
    ssu = side_setup(); swr = side_write()
    KC = 13
    for kk in range(20):
        st = kk // 2; ks = kk & 1
        mf = []
        for j in range(4):
            for rs in range(5):
                d = vr(ACC + (j*5 + rs)*4)
                mf.append(mfma16(d, ar(wreg(kk, j)), ar(20*ks + 4*rs), d if kk else "0"))
        f = Fill()
        if 'ost' in cx.opts and kk in (5, 10, 15):
            sb = Blk(); cx.stamp(sb); f.put(0, sb.l)
        code.append(f"s_waitcnt vmcnt({vm.need(('w', kk))})")
        if ks == 1 and kk + 1 < 20:
            need = [('x', st+1)] + (['ctx'] if kk == CF_KK else []) + (['p2'] if kk == KC else [])
            f.put(1, [f"s_waitcnt vmcnt({vm.need(*need)}) lgkmcnt(0)"] + (chk if kk == KC else []) + ["s_barrier"])
            if kk == CF_KK:
                sg = Blk(); flag_store(sg, 50, "LB_cf", s_off2=51); f.put(1, sg.l)
        if kk + 1 < 20:
            for g, r in zip([2, 4, 6, 8, 10], reads(kk+1)): f.put(g, r)
        ev = []
        if kk + 5 < 20:
            for g, it in zip([3, 7, 11, 15], ldW(kk + 5)): ev.append((g,) + it)
        if ks == 1 and st + 4 < 10:
            for g, it in zip([5, 9, 13], dmaX(st + 4)): ev.append((g,) + it)
        if kk < 4:
            ev.append((12,) + cst[2*kk]); ev.append((18,) + cst[2*kk+1])
        if kk == 0: ev.append((9,) + cst[8])
        if kk < 10:
            n8 = (len(extra) + 9) // 10
            f.spread(extra[kk*n8:(kk+1)*n8], 2, 20)
        if kk == PK: ev.append((17,) + polls[0])
        if 12 <= kk < 19:
            n4 = (len(ssu) + 6) // 7
            f.spread(ssu[(kk-12)*n4:(kk-11)*n4], 2, 20)
        if kk == 19:
            f.put(1, ["s_waitcnt lgkmcnt(0)", "s_barrier"])
            for k in range(8): f.put(12 + k, swr[k])
        if kk >= KC:
            for k, it in enumerate(pref[(kk-KC)*4:(kk-KC)*4 + 4]): ev.append((5 + 4*k,) + it)
        for g, pre, d, tag in sorted(ev, key=lambda e: e[0]):
            if pre: f.put(g - 1, pre)
            f.put(g, d); vm.issue(tag)
        code += interleave(mf, f)
    b.ext(add_lgkm_waits(code, first))
    for g_ in swr[8:]: b.ext(g_)

V_OB, S_OB = 220, 52
S_LM = 60
M = [4, 6, 8, 10, 12, 14, 16, 18]
M0 = [20, 22, 36, 24]
S_SC = 58
def side_setup():
    b = Blk()
    b(f"""v_and_b32 v2, 15, v1
    v_mul_u32_u24 v8, {RS}, v2
    v_lshrrev_b32 v3, 4, v1
    v_lshl_add_u32 v8, v3, 3, v8
    s_lshl_b32 s{T}, s{S_W}, 7
    v_add_u32 v8, s{T}, v8
""")
    b(f"""s_mul_i32 s{T}, s{S_W}, 40
    v_mul_u32_u24 v4, {2*RS}, v2
    v_lshl_add_u32 v4, v3, 4, v4
    v_add_u32 v4, s{T}, v4
    v_min_u32 v5, 7, v2
    v_mul_u32_u24 v5, {2*RS}, v5
    v_lshl_add_u32 v5, v3, 4, v5
    v_add_u32 v5, s{T}, v5
    v_lshrrev_b32 v6, 2, v1
    v_min_u32 v7, 7, v6
    v_mul_u32_u24 v6, {2*RS}, v6
    v_mul_u32_u24 v7, {2*RS}, v7
    v_and_b32 v11, 3, v1
    v_lshlrev_b32 v11, 3, v11
    v_add3_u32 v6, v6, v11, s{T}
    v_add3_u32 v7, v7, v11, s{T}
    v_mul_u32_u24 v9, {2*RS}, v2
    v_add_u32 v10, 512, v9
    v_add_u32 v11, s{T}, v9
    v_lshl_add_u32 v9, v3, 3, v11
    v_add_u32 v11, 32, v11
    v_cmp_eq_u32 vcc, 0, v3
    v_lshlrev_b32 v12, 2, v3
    v_sub_u32 v13, v12, v2
    v_cndmask_b32 v10, v10, v11, vcc
    v_cmp_gt_u32 s[38:39], 3, v3
    v_cmp_gt_u32 s[50:51], 2, v3
    s_min_u32 s{T}, s{S_RB}, 1
    s_lshl_b32 s{T}, s{T}, 3
    s_sub_u32 s{T}, 8, s{T}""")
    for t in range(2):
        for j in range(4):
            b(f"v_add_u32 v11, {16*t + j - 1 & 0xffffffff}, v13\nv_cmp_gt_u32 s[{M[4*t+j]}:{M[4*t+j]+1}], 8, v11")
    for j in range(4):
        b(f"v_add_u32 v11, {j}, v12\nv_cmp_le_u32 vcc, s{T}, v11\ns_nop 0")
        b(f"s_and_b64 s[{M0[j]}:{M0[j]+1}], vcc, s[{M[j]}:{M[j]+1}]")
    sc = (20 ** -0.5) * 1.4426950408889634
    b(f"""v_mov_b32 v14, 0xf149f2ca
    v_mov_b32 v28, 0x3f803f80
    v_mov_b32 v29, 0x3f803f80
    v_mov_b32 v30, 0x3f803f80
    v_mov_b32 v31, 0x3f803f80
    s_mov_b32 s{S_SC}, {f2u(sc)}""")
    b(f"""v_mul_u32_u24 v15, {RS}, v1
    s_lshl_b32 s{T}, s{S_W}, 4
    s_add_u32 s{T}, s{T}, {16*RS}
    v_add_u32 v15, s{T}, v15
    v_add_u32 v2, s{S_R0}, v1
    v_lshrrev_b32 v2, 4, v2
    v_mul_u32_u24 v2, {STB}, v2
    v_and_b32 v3, 15, v1
    v_lshl_add_u32 v255, v3, 4, v2
    s_mul_i32 s{T}, s{S_CG}, 10
    s_add_u32 s{T}, s{T}, s{S_W}
    s_lshl_b32 s{S_OB}, s{T}, 8
    s_add_u32 s{S_OB}, s{S_OB}, {WS_OB}
    s_lshr_b32 s{T}, s{S_W}, 1
    s_mul_i32 s{T}, s{T}, {WS_SIZE}
    s_add_u32 s{S_OB+1}, s{S_OB}, 2048
    s_max_u32 s{S_OB+1}, s{S_OB+1}, s{T}
""")
    return b.l
def side_write():
    o = []
    for j in range(4):
        for rs in range(5):
            r = ACC + (j*5 + rs)*4
            o.append([f"v_cvt_pk_bf16_f32 v{r}, v{r}, v{r+1}", f"v_cvt_pk_bf16_f32 v{r+1}, v{r+2}, v{r+3}", f"ds_write_b64 v8, v[{r}:{r+1}] offset:{rs*16*RS + j*32}"])
    return o
def side_core():
    b = Blk()
    U = []
    for u in range(4):
        par, A = u >> 1, u & 1
        base = 112 + 26*u
        q, k, S, v = base, base + 4, base + 12, base + 20 - 2
        U.append(dict(par=par, A=A, q=112 + 28*u, k=116 + 28*u, S=124 + 28*u, v=132 + 28*u))
    ph = [[], [], [], [], []]
    for d in U:
        par, A, q, k, S, v = d["par"], d["A"], d["q"], d["k"], d["S"], d["v"]
        ro = (par + 32*A) * RS
        ph[0] += [f"ds_read_b64 v[{q+2*h}:{q+2*h+1}], v4 offset:{ro + 16*RS + 8*h}" for h in range(2)]
        for t in range(2):
            va = 5 if (A and t) else 4
            ph[0] += [f"ds_read_b64 v[{k+4*t+2*h}:{k+4*t+2*h+1}], v{va} offset:{ro + 32*t*RS + 160 + 8*h}" for h in range(2)]
        for D in range(2):
            for t in range(2):
                va = 7 if (A and t) else 6
                ph[0].append(f"ds_read_b64_tr_b16 v[{v+4*D+2*t}:{v+4*D+2*t+1}], v{va} offset:{ro + 32*t*RS + 320 + 32*D}")
        ph[1] += [f"v_cndmask_b32 v{q+h}, 0, v{q+h}, s[{38 if h < 2 else 50}:{39 if h < 2 else 51}]" for h in range(4)]
    for d in U:
        q, k, S = d["q"], d["k"], d["S"]
        ph[2] += [mfma16(vr(S + 4*t), vr(k + 4*t), vr(q), "0") for t in range(2)]
    for d in U:
        q, k, S, A = d["q"], d["k"], d["S"], d["A"]
        o = []
        for t in range(2):
            for j in range(4):
                m = M0[j] if (t == 0 and A == 0) else M[4*t+j]
                o.append(f"v_cndmask_b32 v{S+4*t+j}, v14, v{S+4*t+j}, s[{m}:{m+1}]")
        o += [f"v_max3_f32 v{q}, v{S}, v{S+1}, v{S+2}", f"v_max3_f32 v{q+1}, v{S+3}, v{S+4}, v{S+5}", f"v_max3_f32 v{q}, v{q}, v{S+6}, v{S+7}",
              f"v_max_f32 v{q}, v{q}, v{q+1}", f"v_mov_b32 v{q+1}, v{q}"]
        ph[3] += o
    for sw in ("v_permlane32_swap_b32", "v_permlane16_swap_b32"):
        ph[3].append("s_nop 0")
        for d in U: ph[3].append(f"{sw} v{d['q']}, v{d['q']+1}")
        for d in U: ph[3] += [f"v_max_f32 v{d['q']}, v{d['q']}, v{d['q']+1}", f"v_mov_b32 v{d['q']+1}, v{d['q']}"]
    for d in U:
        q, k, S, v = d["q"], d["k"], d["S"], d["v"]
        ph[3].append(f"v_mul_f32 v{q}, s{S_SC}, v{q}")
        ph[3] += [f"v_fma_f32 v{S+x}, v{S+x}, s{S_SC}, -v{q}" for x in range(8)]
        ph[3] += [f"v_exp_f32 v{S+x}, v{S+x}" for x in range(8)]
        ph[3] += ["s_nop 0"] + [f"v_cvt_pk_bf16_f32 v{q+x}, v{S+2*x}, v{S+2*x+1}" for x in range(4)]
    ph[3].append("s_nop 0")
    for d in U:
        q, k, S, v = d["q"], d["k"], d["S"], d["v"]
        ph[4] += [mfma16(vr(S), vr(28), vr(q), "0"), mfma16(vr(k), vr(v), vr(q), "0"), mfma16(vr(k + 4), vr(v + 4), vr(q), "0")]
    fin = ["s_nop 1"]
    for d in U:
        q, k, S, v = d["q"], d["k"], d["S"], d["v"]
        ro = (d["par"] + 32*d["A"] + 16) * RS
        fin += [f"v_rcp_f32 v{S}, v{S}", "s_nop 0"] + [f"v_mul_f32 v{k+x}, v{k+x}, v{S}" for x in range(8)]
        fin += [f"v_cvt_pk_bf16_f32 v{k+x}, v{k+2*x}, v{k+2*x+1}" for x in range(4)]
        fin += [f"ds_write_b64 v9, v[{k}:{k+1}] offset:{ro}", f"ds_write_b64 v10, v[{k+2}:{k+3}] offset:{ro}"]
    b.ext(ph[0]); b.ext(ph[1]); b("s_nop 1"); b.ext(ph[2]); b("s_nop 1")
    return b.l, ph[3] + ph[4] + fin
def side_gather():
    b = Blk()
    for k in range(3):
        for u in range(2): b(f"ds_read_b64 v[{112+4*k+2*u}:{113+4*k+2*u}], v15 offset:{64*k + 8*u}")
    b("s_waitcnt lgkmcnt(0)")
    b(f"buffer_store_dwordx4 {vr(112)}, v255, {sr(SRD_WS)}, s{S_OB} offen{SC}")
    b(f"buffer_store_dwordx4 {vr(116)}, v255, {sr(SRD_WS)}, s{S_OB} offen offset:1024{SC}")
    b(f"buffer_store_dwordx4 {vr(120)}, v255, {sr(SRD_WS)}, s{S_OB+1} offen{SC}")
    return b.l
```

```python
from g_common import *
import g_q as Q
S_OFFA, S_OFFB, S_CNT, S_M0, S_CC, S_CO, T = 48, 49, 50, 51, 52, 53, 54
V_C, V_W, V_RA, V_WA, V_RB = 4, 12, 20, 22, 30
A_WF = [32, 96]; A_RF = 160; A_WT = 224
CS = {0: 65536, 1: 131072, 2: 0}
WP = [32768, 98304]
S_KVST = 58
def acc(r, c):
    t = r * 8 + c
    return vr(32 + 4 * t) if t < 56 else ar(4 * (t - 56))
def wf(s, ct, ks): return A_WF[s] + (ct * 2 + ks) * 4
def rf(r, ks): return A_RF + (r * 2 + ks) * 4
def rd_R(r, ks): return f"ds_read_b128 {ar(rf(r, ks))}, v{V_RA+ks} offset:{r*2048}"
def rd_W(s, ct, ks, u): return f"ds_read_b64_tr_b16 {ar(wf(s, ct, ks) + 2*u, 2)}, v{V_WA+ct} offset:{(32*ks + 4*u)*256}"
def dC(p): return f"buffer_load_dwordx4 v{V_C+p}, {sr(SRD_A)}, s{S_OFFA} offen offset:{(p&3)*1024} lds"
def dW(p): return f"buffer_load_dwordx4 v{V_W+p}, {sr(SRD_B)}, s{S_OFFB} offen offset:{(p&3)*1024} nt lds"
def flatC(base):
    o = []
    for p in range(8):
        if p % 4 == 0: o += [f"s_add_u32 m0, s{S_M0}, {base + (p>>2)*4096}", "s_nop 0"]
        o.append(dC(p))
    return o + [f"s_add_u32 s{S_OFFA}, s{S_OFFA}, 128"]
def flatW(base):
    o = []
    for p in range(8):
        if p % 4 == 0: o += [f"s_add_u32 m0, s{S_M0}, {base + (p>>2)*4096}", "s_nop 0"]
        o.append(dW(p))
    return o + [f"s_add_u32 s{S_OFFB}, s{S_OFFB}, {64*8192}"]

def cvt_frag(dst, s0, s1):
    return [f"v_cvt_pk_bf16_f32 v{dst}, v{s0}, v{s0+1}", f"v_cvt_pk_bf16_f32 v{dst+1}, v{s0+2}, v{s0+3}",
            f"v_cvt_pk_bf16_f32 v{dst+2}, v{s1}, v{s1+1}", f"v_cvt_pk_bf16_f32 v{dst+3}, v{s1+2}, v{s1+3}"]


import sys
CTQ = 'noctq' not in sys.argv
LATE_CT = []
S_TA, S_TB = 92, 93
XL = 54
def tinit(cx):
    b = Blk()
    srd(b, SRD_X, 4, SZ['A_x']); srd(b, 96, 8, SZ['A_wq'])
    b(f"""s_lshl_b32 s94, s{S_Q}, 2
    s_add_u32 s94, s94, s{S_W}
    s_mul_i32 s{S_TA}, s94, {160*128}
    s_mul_i32 s{S_TB}, s94, {5*8192}
    s_and_b32 s{T}, s2, 7
    s_lshl_b32 s{T}, s{T}, 10
    s_add_u32 s{S_TB}, s{S_TB}, s{T}
    s_sub_u32 s{S_TB}, s{S_TB}, {2*8192}
    v_lshlrev_b32 v0, 7, v1
    v_lshrrev_b32 v2, 3, v1
    v_lshlrev_b32 v2, 13, v2
    v_and_b32 v3, 7, v1
    v_lshl_add_u32 v2, v3, 7, v2""")
    if "xl" not in cx.opts: b(f"s_lshl_b32 s{S_TA}, s2, 2\ns_add_u32 s{S_TA}, s{S_TA}, s{S_W}\ns_mul_i32 s{S_TA}, s{S_TA}, {21*128}")
    global XL; XL = 7 if 'xl' not in cx.opts else 54
    b.ext(oob_mask(0, XL, 3)); b.ext(oob_mask(2, 0 if 'wn' in cx.opts else 16, 3))
    return b.l
def tlb_warm(b, cx):
    if "tlb" not in cx.opts: return
    R = 96
    b(f"""s_mov_b32 s{R}, s26
    s_mov_b32 s{R+1}, s27
    s_mov_b32 s{R+2}, {WS_SIZE}
    s_mov_b32 s{R+3}, 0x20000
    s_lshl_b32 s{T}, s94, 22""")
    k = 20
    for nm, p in (('A_wo', 14), ('B_x', 16), ('B_wqkv', 18), ('B_wo', 20), ('out', 22), ('A_x', 4), ('A_wq', 8)):
        for half in range((SZ[nm] + (4 << 20) - 1) // (4 << 20)):
            b(f"""s_cmp_eq_u32 s94, {k}
            s_cselect_b32 s{R}, s{p}, s{R}
            s_cselect_b32 s{R+1}, s{p+1}, s{R+1}
            s_cselect_b32 s{R+2}, {SZ[nm]}, s{R+2}
            s_cselect_b32 s{T}, {half << 22}, s{T}""")
            k += 1
    b(f"""v_lshlrev_b32 v3, 16, v1
    buffer_load_dword a252, v3, s[{R}:{R+3}], s{T} offen""")

def tnext(): return [f"s_add_u32 s{S_TA}, s{S_TA}, {XL*128}", f"s_add_u32 s{S_TB}, s{S_TB}, {2*8192}"]

def stage(isV, par, kind, vm=None, touch=True):
    mf = []
    for r in range(8):
        for c in range(8):
            for ks in range(2):
                A, Bq = ar(rf(r, ks)), ar(wf(par, c, ks))
                mf.append(mfma16(acc(r, c), A, Bq) if isV else mfma16(acc(r, c), Bq, A))
    f = Fill()
    if kind == 'loop':
        f.put(6, ["s_waitcnt lgkmcnt(0)", "s_barrier"])
        f.put(9, f"s_add_u32 m0, s{S_M0}, {WP[par]}"); f.put(36, f"s_add_u32 m0, s{S_M0}, {WP[par] + 4096}")
        for p, g in enumerate([10, 14, 21, 27, 37, 43, 53, 59]): f.put(g, dW(p))
        f.put(61, f"s_add_u32 s{S_OFFB}, s{S_OFFB}, {64*8192}")
    for r in range(4):
        g0, g1 = (8, 12) if r == 0 else (2, 8)
        f.put(r*16 + g0, rd_R(r+4, 0)); f.put(r*16 + g1, rd_R(r+4, 1))
    if kind != 's7':
        for ct, g in enumerate([33, 35, 39, 41, 45, 47, 51, 55]): f.put(g, f"v_xor_b32 v{V_WA+ct}, 0x10000, v{V_WA+ct}")
        f.put(63, [f"s_waitcnt vmcnt({(17 if touch else 16) if kind == 'loop' else 0}) lgkmcnt(0)", "s_barrier"])
        f.put(64, [f"s_add_u32 s{S_CO}, s{S_CC}, s{S_M0}", f"s_add_u32 s{S_CC}, s{S_CC}, 0x10000"])
        f.put(65, [f"s_cmp_eq_u32 s{S_CC}, 0x30000", f"s_cselect_b32 s{S_CC}, 0, s{S_CC}"])
        f.put(69, [f"v_add_u32 v{V_RA}, s{S_CC}, v{V_RB}", f"v_add_u32 v{V_RA+1}, s{S_CC}, v{V_RB+1}"])
        for r in range(4, 8):
            base = r * 16
            reads = []
            for ct in (2*(r-4), 2*(r-4)+1):
                for ks in range(2):
                    for u in range(2): reads.append(rd_W(1-par, ct, ks, u))
            reads.insert(4, rd_R(r-4, 0)); reads.append(rd_R(r-4, 1))
            for k, g in enumerate([2, 3, 4, 6, 7, 8, 10, 11, 12, 14]): f.put(base + g, reads[k])
    if kind == 'loop':
        if par == 1: f.put(65, [f"s_cmp_eq_u32 s{S_CNT}, 1", f"s_cselect_b32 s{SRD_A+2}, 0, s{SRD_A+2}"])
        f.put(69, f"s_mov_b32 m0, s{S_CO}"); f.put(100, f"s_add_u32 m0, s{S_CO}, 4096")
        for p, g in enumerate([73, 77, 85, 93, 101, 109, 117, 125]): f.put(g, dC(p))
        f.put(127, f"s_add_u32 s{S_OFFA}, s{S_OFFA}, 128")
        if touch and par == 1: f.put(126, tnext()[0])
        if touch and par == 0: f.put(20, tnext()[1])
        if touch: f.put(127, f"buffer_load_dword a{248+par}, v{2*par}, {sr(SRD_X) if par == 0 else 's[96:99]'}, s{S_TA+par} offen")
    def place(items, gs):
        for (pre, d, tag), g in zip(items, gs):
            if pre: f.put(g - 1, pre)
            f.put(g, d); vm.issue(tag)
    if kind == 's6':
        f.spread(Q.setup_dma(), 0, 62)
        if CTQ:
            su, ld = code_touch("q" + str(isV), "LKV_done", 92, 17, 2)
            f.spread(su, 50, 62)
            place([(x[:-1], x[-1], "ct") for x in ld], [65, 73 - 1000][:1] + [])
            LATE_CT.append(ld[1])
        place(Q.dmaX(0), [69, 77, 85, 93, 101, 109, 117, 121])
        if CTQ: x = LATE_CT.pop(); place([(x[:-1], x[-1], 'ct')], [127])
    if kind == 's7':
        f.put(4, ["s_waitcnt lgkmcnt(0)", "s_barrier"])
        st = [Q.kv_store(fr) + ("kvst",) for fr in range(8)]
        place(Q.dmaW(0) + Q.dmaX(1) + Q.dmaW(1), [6, 9, 13, 16, 20, 23, 27, 30, 35, 38, 42, 45, 49, 53, 58, 62])
        if not isV:
            for r in range(7):
                ops = []
                for s in range(4):
                    fr = 4*r + s
                    ops += cvt_frag(Q.kvreg(fr), 32 + 8*fr, 36 + 8*fr)
                f.spread(ops, (r+1)*16 + 6, min((r+2)*16 + 6, 128))
        else:
            for j in range(3):
                ops = []
                for dt in range(8):
                    ops += cvt_frag(32 + 4*(8*j + dt), 32 + 64*j + 4*dt, 64 + 64*j + 4*dt)
                f.spread(ops, (2*j+2)*16 + 6, min((2*j+4)*16 + 4, 128))
        f.put(66, ["s_waitcnt lgkmcnt(0)", "s_barrier"])
        f.spread(Q.setup_rd(), 58, 98)
        x2 = Q.dmaX(2); w2 = Q.dmaW(2)
        seq = [x2[0], st[0], x2[1], st[1], x2[2], st[2], x2[3], st[3], x2[4], st[4], x2[5], st[5]]
        place(seq, [68, 71, 74, 77, 80, 83, 86, 89, 92, 95, 98, 100])
        f.put(102, [f"s_waitcnt vmcnt({vm.need(('W', 0), ('x', 0))}) lgkmcnt(0)", "s_barrier"])
        place([x2[6], st[6], x2[7], st[7]] + w2, [104, 107, 110, 113, 116, 119, 123, 126])
        f.spread(Q.first_reads(), 103, 128)
    return interleave(mf, f)

def post(isV):
    b = Blk()
    b("s_nop 5")
    for q in range(32): b(f"v_accvgpr_read_b32 v{192+q}, a{q}")
    if not isV:
        for s in range(4): b.ext(cvt_frag(Q.kvreg(28 + s), 192 + 8*s, 196 + 8*s))
    else:
        for dt in range(8): b.ext(cvt_frag(Q.kvreg(24 + dt), 224 + 4*dt, 192 + 4*dt))
    return b.l

def prologue(cx, b, vm):
    b("s_cmp_ge_u32 s2, 256\ns_cbranch_scc1 L_end")
    cx.stamp(b, wait=False)
    b("s_load_dwordx16 s[4:19], s[0:1], 0\ns_load_dwordx8 s[20:27], s[0:1], 64")
    if "noct" not in cx.opts:
        b("""s_getpc_b64 s[94:95]
        L_pc:
        v_lshlrev_b32 v2, 7, v0
        s_mov_b32 s93, L_codeend - L_pc - 4
        v_min_u32 v3, s93, v2
        global_load_dword a253, v3, s[94:95]
        v_add_u32 v2, 0x8000, v2
        v_min_u32 v3, s93, v2
        global_load_dword a254, v3, s[94:95]
        v_add_u32 v2, 0x8000, v2
        v_min_u32 v3, s93, v2
        global_load_dword a255, v3, s[94:95]""")
    b(f"""v_and_b32 v1, 63, v0
    v_lshrrev_b32 v2, 6, v0
    s_and_b32 s{T}, s2, 7
    v_readfirstlane_b32 s{S_W}, v2
    s_lshl_b32 s{S_H}, s{T}, 2
    s_lshr_b32 s{S_Q}, s2, 3
    s_and_b32 s{T+1}, s{S_Q}, 3
    s_add_u32 s{S_H}, s{S_H}, s{T+1}
    s_lshr_b32 s{S_RT}, s2, 5
    s_lshl_b32 s{S_M0}, s{S_W}, 13
    s_mov_b32 s{S_OFFA}, 0
    s_mov_b32 s{S_OFFB}, 0""")
    b(f"""s_lshl_b32 s{T}, s{S_RT}, 8
    s_lshl_b32 s{T+1}, s{S_W}, 6
    s_add_u32 s{T}, s{T}, s{T+1}
    v_lshrrev_b32 v2, 3, v1
    v_add_u32 v2, s{T}, v2
    v_lshlrev_b32 v2, 10, v2
    v_lshrrev_b32 v3, 4, v1
    v_and_b32 v30, 7, v1
    v_xor_b32 v3, v3, v30
    v_lshl_add_u32 v30, v3, 4, v2
    v_xor_b32 v3, 4, v3
    v_lshl_add_u32 v31, v3, 4, v2""")
    for p in range(8): b(f"v_add_u32 v{V_C+p}, {p*8192 - (p&3)*1024}, v{30 + (p&1)}")
    b(f"""s_and_b32 s{T}, s{S_W}, 1
    s_lshl_b32 s{T}, s{T}, 18
    s_lshl_b32 s{T+1}, s{S_H}, 8
    s_add_u32 s{T}, s{T}, s{T+1}
    v_lshrrev_b32 v2, 4, v1
    v_lshlrev_b32 v3, 2, v2
    v_lshlrev_b32 v2, 13, v2
    v_add_u32 v2, s{T}, v2
    v_and_b32 v30, 15, v1
    v_xor_b32 v3, v3, v30
    v_lshl_add_u32 v30, v3, 4, v2
    v_xor_b32 v3, 2, v3
    v_lshl_add_u32 v31, v3, 4, v2""")
    for p in range(8): b(f"v_add_u32 v{V_W+p}, {p*4*8192 - (p&3)*1024}, v{30 + ((p>>1)&1)}")
    b("s_waitcnt lgkmcnt(0)")
    if "pst" in cx.opts: cx.stamp(b)
    srd(b, SRD_A, 6, SZ['A_c'])
    b(f"""s_cmp_lt_u32 s{S_W}, 2
    s_cselect_b32 s{SRD_B}, s10, s12
    s_cselect_b32 s{SRD_B+1}, s11, s13
    s_mov_b32 s{SRD_B+2}, {SZ['A_wuk']}
    s_mov_b32 s{SRD_B+3}, 0x20000""")
    u = Blk()
    wsb = cx.opts.get("wsb", 0)
    if wsb: u(f"s_add_u32 s26, s26, {wsb << 20}\ns_addc_u32 s27, s27, 0")
    srd(u, SRD_WS, 26, WS_SIZE)
    u(f"""s_lshl_b32 s{T}, s2, 2
    s_add_u32 s{T}, s{T}, s{S_W}
    s_cmp_lg_u32 s{T}, 0
    s_cbranch_scc1 L_nonce
    s_memrealtime s[{T}:{T+1}]
    s_waitcnt lgkmcnt(0)
    s_or_b32 s{T}, s{T}, 1
    v_mov_b32 v2, s{T}
    v_mov_b32 v3, s{T+1}
    v_mov_b32 v0, 0
    s_mov_b64 exec, 1
    global_store_dwordx2 v0, v[2:3], s[24:25] sc1
    s_mov_b64 exec, -1
    L_nonce:""")
    u('@')
    u(f"""s_lshr_b32 s{T}, s2, 2
    s_and_b32 s{T}, s{T}, 1
    s_lshl_b32 s{T+1}, s{S_RT}, 2
    s_sub_u32 s{T+1}, 30, s{T+1}
    s_mul_i32 s{T+1}, s{T+1}, s{T}
    s_lshl_b32 s{S_RB}, s{S_RT}, 1
    s_add_u32 s{S_RB}, s{S_RB}, s{T+1}
    s_lshr_b32 s{T}, s2, 1
    s_and_b32 s{T}, s{T}, 1
    s_add_u32 s{S_RB}, s{S_RB}, s{T}
    s_and_b32 s{S_CG}, s2, 1
    s_lshl_b32 s{S_CG}, s{S_CG}, 2
    s_and_b32 s{T}, s{S_Q}, 3
    s_add_u32 s{S_CG}, s{S_CG}, s{T}""")
    u('@')
    u(f"""s_mul_i32 s{S_KVST}, s{S_H}, {KV_HS}
    s_lshl_b32 s{T+1}, s{S_RT}, 17
    s_add_u32 s{S_KVST}, s{S_KVST}, s{T+1}
    s_lshr_b32 s{T+1}, s{S_W}, 1
    s_lshl_b32 s{T+1}, s{T+1}, 16
    s_add_u32 s{S_KVST}, s{S_KVST}, s{T+1}
    s_and_b32 s{T+1}, s{S_W}, 1
    s_mul_i32 s{T+1}, s{T+1}, {32768 + 2048}
    s_add_u32 s{S_KVST}, s{S_KVST}, s{T+1}""")
    u('@')
    u(f"""s_lshr_b32 s{T}, s{S_W}, 1
    s_lshl_b32 s{T}, s{T}, 14
    v_and_b32 v2, 15, v1
    v_lshrrev_b32 v3, 1, v2
    v_lshlrev_b32 v2, 7, v2
    v_add_u32 v2, s{T}, v2
    v_lshrrev_b32 v0, 4, v1
    v_xor_b32 v3, v3, v0
    v_lshl_add_u32 v{V_RB}, v3, 4, v2
    v_xor_b32 v3, 4, v3
    v_lshl_add_u32 v{V_RB+1}, v3, 4, v2
    s_mov_b32 s{S_CC}, {CS[0]}
    v_add_u32 v{V_RA}, {CS[0]}, v{V_RB}
    v_add_u32 v{V_RA+1}, {CS[0]}, v{V_RB+1}
    s_and_b32 s{T}, s{S_W}, 1
    s_lshl_b32 s{T}, s{T}, 14
    s_add_u32 s{T}, s{T}, {WP[0]}
    v_lshrrev_b32 v2, 4, v1
    v_lshrrev_b32 v3, 2, v1
    v_and_b32 v3, 3, v3
    v_lshl_add_u32 v0, v2, 3, v3
    v_lshlrev_b32 v0, 8, v0
    v_add_u32 v0, s{T}, v0
    v_and_b32 v32, 1, v1
    v_lshl_add_u32 v0, v32, 3, v0
    v_and_b32 v2, 1, v2
    v_lshlrev_b32 v2, 1, v2
    v_lshl_or_b32 v2, v3, 2, v2
    v_lshrrev_b32 v3, 1, v1
    v_and_b32 v3, 1, v3
    v_xor_b32 v2, v2, v3""")
    for ct in range(8): u(f"v_xor_b32 v3, {2*ct}, v2\nv_lshl_add_u32 v{V_WA+ct}, v3, 4, v0")
    u('@')
    u(f"s_lshl_b32 s94, s{S_Q}, 2\ns_add_u32 s94, s94, s{S_W}")
    tlb_warm(u, cx)
    u.ext(tinit(cx))
    chunks = [[]]
    for l in u.l:
        if l == '@': chunks.append([])
        else: chunks[-1].append(l)
    zero = [f"v_mov_b32 v{r}, 0" for r in range(34, 256)] + [f"v_accvgpr_write_b32 a{q}, 0" for q in range(32)]
    dm = flatW(WP[0]) + flatC(CS[0]) + flatC(CS[1]) + flatW(WP[1]) + flatC(CS[2])
    nd = 0
    at = {2: 3, 8: 4, 16: 0, 18: 1, 20: 2}
    for l in dm:
        b(l)
        if l.startswith("buffer"):
            vm.issue("s0" if nd < 16 else "s1"); nd += 1
            if nd in at: b.ext(chunks[at[nd]])
            else:
                for _ in range(8):
                    if zero: b(zero.pop())
    b.ext(zero); b("v_mov_b32 v32, 0\nv_mov_b32 v33, 0")
    if 'notouch' not in cx.opts:
        for _ in range(1): b(f"buffer_load_dword a249, v2, s[96:99], s{S_TA} offen"); vm.issue("s1")
    if "pst" in cx.opts: cx.stamp(b)
    b(f"s_waitcnt vmcnt({vm.need('s0')})")
    if "pst" in cx.opts: cx.stamp(b)
    b("s_barrier")
    if "pst" in cx.opts: cx.stamp(b)
    for ct in range(8):
        for ks in range(2):
            for u in range(2): b(rd_W(0, ct, ks, u))
    for r in range(4):
        for ks in range(2): b(rd_R(r, ks))
    b(f"s_mov_b32 s{S_CNT}, 3")
    cx.stamp(b, wait=False)
    b(f"s_waitcnt lgkmcnt(0)\ns_bitcmp1_b32 s{S_W}, 0\ns_cbranch_scc1 LKV_V")

def build(cx, b, ool):
    pro = Blk(); vm0 = VM()
    prologue(cx, pro, vm0)
    b.ext(pro)
    tr = []
    tch = 'notouch' not in cx.opts
    for isV in (False, True):
        nm = "V" if isV else "K"
        vm = VM()
        body = loop_waits(stage(isV, 0, 'loop', touch=tch) + stage(isV, 1, 'loop', touch=tch) + [f"s_sub_u32 s{S_CNT}, s{S_CNT}, 1", f"s_cmp_lg_u32 s{S_CNT}, 0", f"s_cbranch_scc1 LKV_{nm}"])
        n0 = cx.nst; c0 = cx.cnt
        sa = Blk(); cx.stamp(sa); sb = Blk(); cx.stamp(sb)
        if not isV: cx.nst = n0; cx.cnt = c0
        tail = add_lgkm_waits(sa.l + stage(isV, 0, 's6', vm, tch) + sb.l + stage(isV, 1, 's7', vm, tch), body) + post(isV)
        b(f".p2align 6\nLKV_{nm}:")
        b.ext(body); b.ext(tail)
        if not isV: b("s_branch LKV_done")
        tr.append(pro.l + body*3 + tail)
    b("LKV_done:")
    return tr, vm
```

```python
from g_common import *
T = 54
S_OA, S_OB_, S_P1, S_P2, S_P3, S_SIG, S_MA, S_PX = 92, 93, 94, 95, 96, 97, 98, 99
SRD_O = SRD_X
ACC_A, ACC_B = 32, 112
VD, VL, VB = 224, 233, 237
V_P1, V_P2, V_D1, V_D2 = 246, 247, 248, 250
FR = [180, 216]
ASLOT = [49152, 86016, 122880]
WS_X = WS_FLAG + (1 << 20)
F_X = WS_FLAG + 24576
LD = " sc1"
def setup():
    b = Blk()
    t = 252
    b(f"""v_lshlrev_b32 v{t}, 4, v1
    s_and_b32 s{T+2}, s2, 1
    s_lshl_b32 s{T+3}, s{S_RT}, 1
    s_sub_u32 s{T+3}, 15, s{T+3}
    s_mul_i32 s{T+3}, s{T+3}, s{T+2}
    s_add_u32 s{S_P3}, s{T+3}, s{S_RT}
    s_lshr_b32 s{S_SIG}, s2, 1
    s_and_b32 s{S_SIG}, s{S_SIG}, 3
    s_and_b32 s{S_PX}, s{S_Q}, 3""")
    x0, x1, x2, x3 = VB, VB + 1, VB + 2, VB + 3
    b(f"""s_mul_i32 s{T+2}, s{S_W}, 9
    v_add_u32 v{x0}, s{T+2}, v1
    v_lshrrev_b32 v{x1}, 1, v{x0}
    v_and_b32 v{x0}, 1, v{x0}
    v_and_b32 v{x2}, 3, v1
    v_sub_u32 v{x0}, v{x0}, v{x2}
    v_lshlrev_b32 v{x0}, 10, v{x0}
    v_add_u32 v{x2}, s{S_SIG}, v{x1}
    v_and_b32 v{x2}, 3, v{x2}
    v_and_b32 v{x3}, 4, v{x1}
    s_lshl_b32 s{T+2}, s{S_P3}, 3
    v_add3_u32 v{x2}, v{x2}, v{x3}, s{T+2}
    s_mul_i32 s{T+2}, s{S_PX}, 10
    s_add_u32 s{T+2}, s{T+2}, {(WS_WOT - WS_CTX) // STA - 8}
    v_add_u32 v{x3}, s{T+2}, v{x1}
    v_cmp_gt_u32 vcc, 8, v{x1}
    s_mov_b32 s{T+3}, {STA}
    s_nop 0
    v_cndmask_b32 v{x2}, v{x3}, v{x2}, vcc
    v_mul_lo_u32 v{x2}, v{x2}, s{T+3}
    v_add_u32 v{x0}, {WS_CTX}, v{x0}
    v_add_u32 v{x2}, v{x2}, v{x0}""")
    for j in range(9): b(f"v_readlane_b32 s{T+2+(j&1)}, v{x2}, {j}\ns_nop 0") if False else b.l.append([f"v_readlane_b32 s{T+2}, v{x2}, {j}", "s_nop 1", f"v_add_u32 v{VD+j}, s{T+2}, v{t}"])
    b(f"""s_lshr_b32 s{T+2}, s{S_W}, 1
    s_lshl_b32 s{T+2}, s{T+2}, 13
    s_add_u32 s{T+2}, s{T+2}, {ASLOT[0]}
    v_add_u32 v{VL}, s{T+2}, v{t}
    s_and_b32 s{T+2}, s{S_W}, 1
    s_mul_i32 s{T+2}, s{T+2}, 10240
    s_add_u32 s{T+2}, s{T+2}, {ASLOT[0] + 16384}
    v_add_u32 v{VL+1}, s{T+2}, v{t}
    v_add_u32 v{VL+2}, {ASLOT[2] - ASLOT[0]}, v{VL}
    v_add_u32 v{VL+3}, {ASLOT[2] - ASLOT[0]}, v{VL+1}
    s_mul_i32 s{S_MA}, s{S_W}, 9216
    s_lshl_b32 s{S_OA}, s{S_SIG}, 15""")
    b(f"s_mul_i32 s{T+2}, s{S_RB}, {4*STB}\ns_add_u32 s{T+2}, s{T+2}, {WS_OB}")
    for i in range(4):
        b(f"""s_add_u32 s{T+3}, s{S_W}, {i}
        s_and_b32 s{T+3}, s{T+3}, 3
        s_mul_i32 s{T+3}, s{T+3}, {STB}
        s_add_u32 s{T+3}, s{T+3}, s{T+2}
        v_add_u32 v{VB+i}, s{T+3}, v{t}""")
    b(f"s_mul_i32 s{T+3}, s{S_CG}, {5*STB}\ns_add_u32 s{T+3}, s{T+3}, {WS_WOBT}\nv_add_u32 v{VB+4}, s{T+3}, v{t}")
    for j in range(1, 5): b(f"v_add_u32 v{VB+4+j}, {j*STB}, v{VB+4}")
    b(f"""s_lshl_b32 s{T+2}, s{S_P3}, 7
    s_lshr_b32 s{T+3}, s{S_W}, 1
    s_lshl_b32 s{T+3}, s{T+3}, 6
    s_add_u32 s{T+2}, s{T+2}, s{T+3}
    s_lshl_b32 s{T+3}, s{S_SIG}, 4
    s_add_u32 s{T+2}, s{T+2}, s{T+3}
    v_and_b32 v253, 15, v1
    v_add_u32 v253, s{T+2}, v253
    v_mul_u32_u24 v253, 2560, v253
    v_lshrrev_b32 v254, 4, v1
    v_lshl_add_u32 v253, v254, 3, v253
    s_mul_i32 s{T+2}, s{S_PX}, 320
    s_and_b32 s{T+3}, s{S_W}, 1
    s_mul_i32 s{T+3}, s{T+3}, 160
    s_add_u32 s{T+2}, s{T+2}, s{T+3}
    v_add_u32 v253, s{T+2}, v253""")
    b(f"""s_mul_i32 s{S_OB_}, s{S_W}, 5120
    s_lshl_b32 s{S_P2}, s{S_RT}, 8
    s_lshl_b32 s{T+2}, s{S_SIG}, 6
    s_add_u32 s{S_P2}, s{S_P2}, s{T+2}
    s_add_u32 s{S_P2}, s{S_P2}, {F_CTX}
    v_and_b32 v{V_P2}, 7, v1
    v_lshlrev_b32 v{V_P2}, 3, v{V_P2}
    s_lshl_b32 s{S_PX}, s{S_Q}, 1
    s_and_b32 s{T+2}, s2, 1
    s_add_u32 s{S_PX}, s{S_PX}, s{T+2}
    s_lshl_b32 s{S_PX}, s{S_PX}, 7
    s_add_u32 s{S_PX}, s{S_PX}, {F_X}
    s_lshl_b32 s{S_P3}, s{S_RB}, 7
    s_add_u32 s{S_P3}, s{S_P3}, {F_OB}
    s_lshl_b32 s{S_SIG}, s{S_CG}, 3
    s_add_u32 s{S_SIG}, s{S_SIG}, s{S_P3}""")
    srd(b, SRD_O, 22, SZ['out'])
    return b.l
def polls(): return [([], flag_load(V_D2, V_P2, S_P2), "p2")]
def check(ool):
    ool.ext(flag_spin("LO_s2", V_D2, V_P2, S_P2, 3, sleep=2))
    return flag_check("LO_s2", V_D2)
def dmaA(st):
    it = []
    so, V = (S_OA, VD) if st < 16 else (S_OB_, VB)
    for j in range(9):
        pre = [f"s_add_u32 m0, s{S_MA}, {ASLOT[st%3] + (j>>2)*4096}"] if j % 4 == 0 else []
        if j == 0 and st not in (0, 16): pre = [f"s_add_u32 s{so}, s{so}, 2048"] + pre
        it.append((pre, f"buffer_load_dwordx4 v{V+j}, {sr(SRD_WS)}, s{so} offen offset:{(j&3)*1024} sc1 lds", ("A", st)))
    return it
def rdA(kk):
    st, ks = kk // 2, kk & 1
    hi = 2 if st % 3 == 2 else 0; off = (ASLOT[1] - ASLOT[0]) if st % 3 == 1 else 0
    a = [f"ds_read_b128 {ar(FR[ks] + 4*i)}, v{VL+hi} offset:{off + i*2048 + ks*1024}" for i in range(4)]
    w = [f"ds_read_b128 {ar(FR[ks] + 16 + 4*j)}, v{VL+1+hi} offset:{off + j*2048 + ks*1024}" for j in range(5)]
    return [w[0]] + a + w[1:]
def loadsB(k):
    out = []
    for c, q in enumerate([4, 0, 1, 2, 3, 5, 6, 7, 8]):
        pre = [f"s_add_u32 s{S_OB_}, s{S_OB_}, 4096"] if (c == 0 and k == 4) else []
        out.append((pre, f"buffer_load_dwordx4 {ar(36*k + 4*q)}, v{VB+q}, {sr(SRD_WS)}, s{S_OB_} offen offset:{(k%4)*1024}{LD}", ("Bo", k)))
    return out
XB = 2560
def build(cx, b, vm, ool, B):
    c1, c2 = B.side_core()
    b.ext(add_lgkm_waits(["s_waitcnt lgkmcnt(0)", "s_barrier"] + c1 + c2 + ["s_waitcnt lgkmcnt(0)", f"s_waitcnt vmcnt({vm.need(('A', 0))})", "s_barrier"]))
    first = rdA(0); b.ext(first)
    b.ext(B.side_gather())
    for _ in range(3): vm.issue("ob")
    cx.stamp(b)
    post = Blk()
    for i in range(1, 4):
        post(f"""s_add_u32 s{T+2}, s{S_W}, {i}
        s_and_b32 s{T+2}, s{T+2}, 3
        s_mul_i32 s{T+2}, s{T+2}, 15360
        s_add_u32 s{T+2}, s{T+2}, {(i-1)*5120}
        v_add_u32 v{16+i}, s{T+2}, v252""")
    post(f"""v_lshlrev_b32 v22, 3, v1
    s_lshl_b32 s{S_P1}, s{S_W}, 9
    s_add_u32 s{S_P1}, s{S_P1}, {F_W2}
    s_mul_i32 s{T+2}, s{S_W}, 15360
    v_add_u32 v16, s{T+2}, v252
    s_lshl_b32 s{T+2}, s{S_RB}, 6
    s_lshl_b32 s{T+3}, s{S_W}, 4
    s_add_u32 s{T+2}, s{T+2}, s{T+3}
    v_and_b32 v20, 15, v1
    v_add_u32 v20, s{T+2}, v20
    v_mul_u32_u24 v20, 2560, v20
    v_lshrrev_b32 v21, 4, v1
    v_lshl_add_u32 v20, v21, 3, v20
    s_mul_i32 s{T+2}, s{S_CG}, 160
    v_add_u32 v20, s{T+2}, v20
    v_lshlrev_b32 v21, 3, v1
    v_and_b32 v{V_P1}, 3, v1
    v_lshlrev_b32 v{V_P1}, 3, v{V_P1}
    s_lshr_b32 s{T}, s2, 1
    s_and_b32 s{T}, s{T}, 3
    s_and_b32 s{T+1}, s2, 0xfffffff9
    s_lshl_b32 s{S_P2}, s{T}, 3
    s_add_u32 s{S_P2}, s{S_P2}, s{S_PX}
    s_mul_i32 s59, s2, 12
    s_add_u32 s59, s59, s{S_W}
    s_mul_i32 s59, s59, {XB}
    s_add_u32 s59, s59, {WS_X}""")
    XS = [48, 49, 50]
    for i in range(1, 4):
        post(f"""s_add_u32 s{T+2}, s{T}, {i}
        s_and_b32 s{T+2}, s{T+2}, 3
        s_lshl_b32 s{T+2}, s{T+2}, 1
        s_add_u32 s{T+2}, s{T+2}, s{T+1}
        s_mul_i32 s{T+2}, s{T+2}, 12
        s_add_u32 s{T+2}, s{T+2}, s{S_W}
        s_mul_i32 s{T+2}, s{T+2}, {XB}
        s_add_u32 s{XS[i-1]}, s{T+2}, {WS_X + (i-1)*4*XB}""")
    lb = [x for k in range(5) for x in loadsB(k)]
    KC = cx.opts.get("kc", 21)
    code = []
    for kk in range(32):
        st, ks = kk // 2, kk & 1
        mf = []
        order = [(i, j) for j in range(5) for i in range(4)] if kk < 31 else [(i, j) for i in (1, 2, 3, 0) for j in range(5)]
        for i, j in order:
            d = vr(ACC_A + (i*5 + j)*4)
            mf.append(mfma16(d, ar(FR[ks] + 16 + 4*j), ar(FR[ks] + 4*i), d if kk else "0"))
        f = Fill()
        if ks == 1 and kk < 31:
            need = [('A', st+1)] + (['ob'] if kk == 3 else []) + (['p3'] if kk == KC else [])
            f.put(1, [f"s_waitcnt vmcnt({vm.need(*need)}) lgkmcnt(0)"] + (flag_check("LO_s3", V_D1) + flag_check("LO_s5", V_D2) if kk == KC else []) + ["s_barrier"])
            if kk == 3:
                sg = Blk(); flag_store(sg, S_SIG, "LO_of"); f.put(1, sg.l)
        if kk + 1 < 32:
            for g, r in zip([2, 4, 6, 8, 10, 12, 13, 14, 15], rdA(kk+1)): f.put(g, r)
        sn = (kk - 1) // 2 + 3
        if kk >= 1 and sn < 16:
            it = dmaA(sn)
            sel = it[:5] if ks == 1 else [([f"s_add_u32 m0, s{S_MA}, {ASLOT[sn%3] + 4096}"],) + it[5][1:]] + it[6:]
            for k, (pre, d, tag) in enumerate(sel):
                if pre: f.put(2 + 4*k, pre)
                f.put(3 + 4*k, d)
        if kk == KC - 3: f.put(16, flag_load(V_D2, 22, S_P1)); f.put(18, flag_load(V_D1, V_P2, S_P3))
        if kk >= KC:
            n = min(len(lb), 2 if kk < 27 else 7)
            for k in range(n):
                pre, d, tag = lb.pop(0); f.put(5 + (12*k)//n, pre + [d])
        if 5 <= kk < 13:
            n8 = (len(post.l) + 7) // 8
            f.spread(post.l[(kk-5)*n8:(kk-4)*n8], 2, 20)
        body = interleave(mf, f)
        for l in body:
            if l.startswith("buffer_load_dwordx4"): vm.issue(("A", sn) if l.endswith("lds") else ("Bo", int(re.search(r"a\[(\d+)", l).group(1)) // 36))
            elif l.startswith("buffer_load_dwordx2"): vm.issue("p3")
        code += body
    assert not lb
    ool.ext(flag_spin("LO_s3", V_D1, V_P2, S_P3, 3, sleep=2)); ool.ext(flag_spin("LO_s5", V_D2, 22, S_P1, 3, sleep=2))
    b.ext(add_lgkm_waits(code, first))
    cx.stamp(b)
    sA = []
    for i in range(1, 4):
        r = ACC_A + 20*i
        sA += [f"v_cvt_pk_bf16_f32 v{r+k}, v{r+2*k}, v{r+2*k+1}" for k in range(10)]
        sA += [f"buffer_store_dwordx4 {vr(r)}, v252, {sr(SRD_WS)}, s{XS[i-1]} offen{SC}",
               f"buffer_store_dwordx4 {vr(r+4)}, v252, {sr(SRD_WS)}, s{XS[i-1]} offen offset:1024{SC}",
               f"buffer_store_dwordx2 {vr(r+8, 2)}, v21, {sr(SRD_WS)}, s{XS[i-1]} offen offset:2048{SC}"]
    def mfB(k):
        order = [(i, j) for j in range(5) for i in range(4)] if k < 4 else [(i, j) for i in (1, 2, 3, 0) for j in range(5)]
        return [mfma16(vr(ACC_B + (i*5 + j)*4), ar(36*k + 16 + 4*j), ar(36*k + 4*i), vr(ACC_B + (i*5 + j)*4) if k else "0") for i, j in order]
    b(f"s_waitcnt vmcnt({vm.need(('Bo', 0))})")
    f = Fill(); f.spread(sA, 0, 20); b.ext(interleave(mfB(0), f))
    b("s_waitcnt vmcnt(9)")
    b.ext(mfB(1)); b.ext(mfB(2))
    b("s_waitcnt vmcnt(0)\ns_barrier")
    flag_store(b, S_P2, "LO_xf")
    b.ext(mfB(3)); b.ext(mfB(4))
    code = [f"ds_write_b128 v{16+i}, {vr(ACC_B + (i*5 + j)*4)} offset:{j*1024}" for i in range(1, 4) for j in range(5)]
    code += [flag_load(V_D1, V_P1, S_PX), "s_waitcnt lgkmcnt(0)", "s_barrier"]
    code += [f"ds_read_b128 {vr(132 + (c*5 + j)*4)}, v16 offset:{c*5120 + j*1024}" for j in range(5) for c in range(3)]
    b.ext(code)
    cx.stamp(b)
    b("s_waitcnt vmcnt(0)")
    b.ext(flag_check("LO_s4", V_D1)); ool.ext(flag_spin("LO_s4", V_D1, V_P1, S_PX, T, sleep=1))
    cx.stamp(b)
    for c in range(3):
        r = 52 + 12*c
        if c: b(f"s_add_u32 s59, s59, {4*XB}")
        b(f"""buffer_load_dwordx4 {vr(r)}, v252, {sr(SRD_WS)}, s59 offen sc1
        buffer_load_dwordx4 {vr(r+4)}, v252, {sr(SRD_WS)}, s59 offen offset:1024 sc1
        buffer_load_dwordx2 {vr(r+8, 2)}, v21, {sr(SRD_WS)}, s59 offen offset:2048 sc1""")
    b("s_waitcnt lgkmcnt(0)")
    for j in range(5):
        r = ACC_B + 4*j
        x = [132 + (c*5 + j)*4 for c in range(3)]
        for q in (0, 2):
            b(f"v_pk_add_f32 v[{r+q}:{r+q+1}], v[{r+q}:{r+q+1}], v[{x[0]+q}:{x[0]+q+1}]")
            b(f"v_pk_add_f32 v[{x[1]+q}:{x[1]+q+1}], v[{x[1]+q}:{x[1]+q+1}], v[{x[2]+q}:{x[2]+q+1}]")
        for q in (0, 2): b(f"v_pk_add_f32 v[{r+q}:{r+q+1}], v[{r+q}:{r+q+1}], v[{x[1]+q}:{x[1]+q+1}]")
        b(f"v_cvt_pk_bf16_f32 v{r}, v{r}, v{r+1}\nv_cvt_pk_bf16_f32 v{r+1}, v{r+2}, v{r+3}")
        b(f"buffer_store_dwordx2 v[{r}:{r+1}], v20, {sr(SRD_O)}, 0 offen offset:{1280 + j*32}")
    for c in range(3):
        r = 52 + 12*c
        b(f"s_waitcnt vmcnt({5 + 3*(2-c)})")
        for k in range(10):
            b(f"v_lshlrev_b32 v{90+2*k}, 16, v{r+k}\nv_and_b32 v{91+2*k}, 0xffff0000, v{r+k}")
        for k in range(10): b(f"v_pk_add_f32 v[{ACC_A+2*k}:{ACC_A+2*k+1}], v[{ACC_A+2*k}:{ACC_A+2*k+1}], v[{90+2*k}:{91+2*k}]")
    for j in range(5):
        r = ACC_A + 4*j
        b(f"v_cvt_pk_bf16_f32 v{r}, v{r}, v{r+1}\nv_cvt_pk_bf16_f32 v{r+1}, v{r+2}, v{r+3}")
        b(f"buffer_store_dwordx2 v[{r}:{r+1}], v253, {sr(SRD_O)}, 0 offen offset:{j*32}")
    cx.stamp(b)
import re
```

```python
from g_common import *
T = 54
S_MW, S_MX, S_OW, S_OX = 48, 49, 50, 51
S_KVST, S_ST, S_SRC, S_POLL, S_SIG, S_C = 58, 57, 53, 52, 59, 58
V_XD, V_WQ, V_L16 = 4, 12, 16
V_WA = [22, 23, 24, 25, 26, 27, 28, 29]
V_XA = [18, 19, 30, 31]
V_PO, V_PD = 17, 20
ACC = 128
WFR = [64, 96]; XFR = [32, 128]
LQ = 98304
XSLOT = [65536, 0, 32768]
CSCALE = (128 ** -0.5) * 1.4426950408889634
def kvreg(fr): return 32 + 4*fr if fr < 24 else 32 + 4*(fr - 24)
SRD_E = 96
S_KVL = 3
ORDER = list(range(24, 32)) + list(range(8, 24))
NALL = 2
def park(k):
    return 160 + 4*k if k < 15 else 4*(k - 15)
def kv_store(fr, srd_=SRD_WS):
    return ([f"s_add_u32 s{S_ST}, s{S_KVST}, {(fr>>3)*16384 + ((fr&7)>>1)*4096}"],
            f"buffer_store_dwordx4 {vr(kvreg(fr))}, v{V_L16}, {sr(srd_)}, s{S_ST} offen offset:{(fr&1)*1024}{SC}")
def late_stores(vl, st):
    o = []
    for k, fr in enumerate(ORDER[NALL:]):
        o.append(([f"s_add_u32 s{st}, s{S_KVL}, {(fr>>3)*16384 + ((fr&7)>>1)*4096}"],
                  f"buffer_store_dwordx4 {ar(park(k) if k < 15 else park(k) + 132)}, v{vl}, {sr(SRD_WS)}, s{st} offen offset:{(fr&1)*1024}{SC}"))
    return o
def dmaW(st):
    return [([f"s_add_u32 m0, s{S_MW}, {(st%4)*16384}", f"s_mov_b32 s{S_OW}, {st*64*8192}"] if p in (0, 2) else [],
             f"buffer_load_dwordx4 v{V_WQ+p}, {sr(SRD_B)}, s{S_OW} offen offset:{p*1024} lds", ("W", st)) for p in range(4)]
def dmaX(st):
    return [([f"s_add_u32 m0, s{S_MX}, {XSLOT[st%3] + (p>>2)*4096}", f"s_mov_b32 s{S_OX}, {st*128}"] if p % 4 == 0 else [],
             f"buffer_load_dwordx4 v{V_XD+p}, {sr(SRD_A)}, s{S_OX} offen offset:{(p&3)*1024} lds", ("x", st)) for p in range(8)]
def setup_dma():
    b = Blk()
    srd(b, SRD_A, 4, SZ['A_x']); srd(b, SRD_B, 8, SZ['A_wq'])
    b(f"""s_lshl_b32 s{T}, s{S_W}, 17
    s_lshl_b32 s{T+1}, s{S_H}, 8
    s_add_u32 s{T}, s{T}, s{T+1}
    v_lshlrev_b32 v{V_L16}, 4, v1
    v_lshrrev_b32 v2, 4, v1
    v_lshlrev_b32 v3, 2, v2
    v_lshlrev_b32 v2, 13, v2
    v_add_u32 v2, s{T}, v2
    v_and_b32 v0, 15, v1
    v_xor_b32 v3, v3, v0
    v_lshl_add_u32 v0, v3, 4, v2
    v_xor_b32 v3, 2, v3
    v_lshl_add_u32 v3, v3, 4, v2""")
    for p in range(4): b(f"v_add_u32 v{V_WQ+p}, {p*4*8192 - p*1024}, v{3 if (p>>1)&1 else 0}")
    b(f"""s_lshl_b32 s{S_MW}, s{S_W}, 12
    s_add_u32 s{S_MW}, s{S_MW}, {LQ}
    s_lshl_b32 s{S_MX}, s{S_W}, 13
    s_lshl_b32 s{T}, s{S_RT}, 2
    s_add_u32 s{T}, s{T}, s{S_W}
    s_mul_i32 s{T}, s{T}, {32*1280}
    s_sub_u32 s{T+1}, {63*32*1280}, s{T}
    v_lshrrev_b32 v2, 3, v1
    v_mul_u32_u24 v2, 1280, v2
    v_lshrrev_b32 v3, 4, v1
    v_and_b32 v0, 7, v1
    v_xor_b32 v3, v3, v0
    v_lshl_add_u32 v0, v3, 4, v2
    v_xor_b32 v3, 4, v3
    v_lshl_add_u32 v3, v3, 4, v2""")
    for p in range(8):
        b(f"v_add_u32 v{V_XD+p}, {(p&3)*(8*1280 - 1024)}, v{3 if p&1 else 0}")
        b(f"v_add_u32 v{V_XD+p}, s{T if p < 4 else T+1}, v{V_XD+p}")
    return b.l
def setup_rd():
    b = Blk()
    tr_addr(b, V_WA, LQ, 8, (0, 2, 3))
    row_addr(b, V_XA[0], V_XA[1], f"s{S_MX}", (0, 2, 3))
    b(f"""v_add_u32 v{V_XA[2]}, 0x10000, v{V_XA[0]}
    v_add_u32 v{V_XA[3]}, 0x10000, v{V_XA[1]}
    v_mov_b32 v{V_PO}, 0
    s_mov_b32 s{SRD_E}, s26
    s_mov_b32 s{SRD_E+1}, s27
    s_mov_b32 s{SRD_E+3}, 0x20000""")
    b.l.append([f"s_cmp_lt_u32 s{S_RT}, {LATE}", f"s_cselect_b32 s{SRD_E+2}, {WS_SIZE}, 0"])
    return b.l
def wf(kk, dt): return WFR[kk & 1] + 4*dt
def rdW(kk, dt, u):
    return f"ds_read_b64_tr_b16 {ar(wf(kk, dt) + 2*u, 2)}, v{V_WA[dt]} offset:{((kk>>1)%4)*16384 + (32*(kk&1) + 4*u)*256}"
def xf(st, ks, qs): return XFR[st & 1] + (ks*4 + qs)*4
def rdX(st, ks, qs):
    sl = XSLOT[st % 3]; hi = sl >= 65536
    return f"ds_read_b128 {ar(xf(st, ks, qs))}, v{V_XA[ks + 2*hi]} offset:{sl - 65536*hi + qs*2048}"
def first_reads():
    return [rdW(0, 0, 0), rdW(0, 0, 1)] + [rdX(0, 0, qs) for qs in range(4)] + [rdW(0, dt, u) for dt in range(1, 8) for u in range(2)] + [rdX(0, 1, qs) for qs in range(4)]
def dma_blk(vl):
    return ([f"s_and_b32 m0, s{S_SRC}, 0x1ffff"],
            [f"buffer_load_dwordx4 v{vl}, {sr(SRD_WS)}, s{S_SRC} offen offset:{p*1024} sc1 lds" for p in range(4)],
            [f"s_add_u32 s{S_SRC}, s{S_SRC}, 16384"])

def build(cx, b, vm, ool, extra, wt):
    order = ORDER
    mv = [f"v_accvgpr_write_b32 a{park(k)+q}, v{kvreg(fr)+q}" for k, fr in enumerate(ORDER[NALL:]) for q in range(4)]
    last_kk = cx.opts.get("stk", 7)
    sched_st = {}
    for k in range(24): sched_st.setdefault((k * (last_kk + 1)) // 24, []).append(order[k])
    sig_kk = last_kk + 2 if last_kk % 2 else last_kk + 3
    pk = cx.opts.get("pk", 15); nkv = 0
    code = []
    for kk in range(20):
        st = kk // 2; ks = kk % 2
        mf = []
        for dt in range(8):
            for qs in range(4):
                d = vr(ACC + (dt*4 + qs)*4)
                mf.append(mfma16(d, ar(wf(kk, dt)), ar(xf(st, ks, qs)), d if kk else "0"))
        f = Fill(); put = f.put
        if kk in (4, 8, 12, 16) and 'qst' in cx.opts:
            sb = Blk(); cx.stamp(sb); put(0, sb.l)
        if ks == 1:
            need = ([('W', st+1)] if kk < 19 else []) + (['kvst'] if kk == sig_kk else []) + (['nonce'] if kk == 5 else [])
            put(1, [f"s_waitcnt vmcnt({vm.need(*need)}) lgkmcnt(0)" if need else "s_waitcnt lgkmcnt(0)", "s_barrier"])
            if kk == 5:
                put(2, [f"v_readfirstlane_b32 s{S_NC}, v{V_PD}", f"v_readfirstlane_b32 s{S_NC+1}, v{V_PD+1}"])
                put(3, [f"s_cmp_eq_u32 s{S_NC}, 0", "s_cbranch_scc1 LQ_nspin", "LQ_nspin_ret:"])
            if kk == sig_kk:
                sg = Blk(); flag_store(sg, S_SIG, "LQ_sig"); put(1, sg.l)
        if ks == 0 and st + 1 < 10:
            put(1, f"s_waitcnt vmcnt({vm.need(('x', st+1))}) lgkmcnt(0)")
        if kk + 1 < 20:
            rs = [rdW(kk+1, dt, u) for dt in range(8) for u in range(2)]
            for g, r in zip([2, 3, 5, 6, 8, 9, 11, 12, 14, 15, 17, 18, 20, 21, 23, 24], rs): put(g, r)
        if st + 1 < 10:
            for g, qs in zip([22, 25, 26, 27], range(4)): put(g, rdX(st+1, ks, qs))
        ev = []
        if st + 3 < 10:
            for g, it in zip([4, 7, 10, 13], dmaX(st+3)[ks*4:ks*4+4]): ev.append((g,) + it)
            for g, it in zip([16, 19], dmaW(st+3)[ks*2:ks*2+2]): ev.append((g,) + it)
        if kk == 1: ev.append((29, [], f"global_load_dwordx2 v[{V_PD}:{V_PD+1}], v{V_PO}, s[24:25] sc1", "nonce"))
        if 1 <= kk <= 6: f.spread(mv[(kk-1)*10:kk*10], 2, 32)
        if kk in (7, 8): f.spread(mv[60 + (kk-7)*14:74 + (kk-7)*14], 2, 32)
        for g, fr in zip([23, 30, 27, 21], sched_st.get(kk, [])):
            pre, d = kv_store(fr, SRD_WS if fr in ORDER[:NALL] else SRD_E); ev.append((g, pre, d, "kvst"))
        if kk == 7 and "ct7" in cx.opts:
            su, ld = code_touch("a", "L_qe", 92, 58, 2)
            f.spread(su, 2, 20)
            for k, g in enumerate(ld): ev.append((26 + 2*k, g[:-1], g[-1], "ct"))
        if kk == 6:
            f.spread(lines(f"""s_mul_i32 s{S_SRC}, s{S_H}, {KV_HS}
            s_lshl_b32 s{T}, s{S_W}, 12
            s_add_u32 s{S_SRC}, s{S_SRC}, s{T}
            s_lshl_b32 s{S_POLL}, s{S_H}, 7
            s_add_u32 s{S_POLL}, s{S_POLL}, {F_KV}
            s_lshl_b32 s{S_SIG}, s{S_RT}, 3
            s_add_u32 s{S_SIG}, s{S_SIG}, s{S_POLL}
            s_lshr_b32 s{T}, s{SRD_E+2}, 26
            s_sub_u32 s{T}, 1, s{T}
            s_mul_i32 s{T}, s{T}, {WS_SIZE}
            s_max_u32 s{S_SIG}, s{S_SIG}, s{T}
            v_and_b32 v{V_PO}, 7, v1
            v_min_u32 v{V_PO}, {LATE-1}, v{V_PO}
            v_lshlrev_b32 v{V_PO}, 3, v{V_PO}"""), 26, 32)
        if 11 <= kk < 19: f.spread([f'v_mov_b32 v{r}, 0' for r in range(64 + (kk-11)*8, 72 + (kk-11)*8)], 2, 32)
        if 9 <= kk < 19:
            n10 = (len(extra) + 9) // 10
            f.spread(extra[(kk-9)*n10:(kk-8)*n10], 2, 32)
        if kk == pk: ev.append((16 if pk == 19 else 2, [], flag_load(V_PD, V_PO, S_POLL), "poll"))
        if pk < 19 and kk == pk + 1:
            put(0, [f"s_waitcnt vmcnt({vm.need('poll')})"] + flag_check("LQ_spin", V_PD))
        if pk < 19 and kk > pk:
            for hb in range(2):
                if nkv < (2 if kk < 17 else 4 if kk < 19 else 5):
                    pr, d, post = dma_blk(V_L16)
                    for q, g in enumerate([4, 7, 10, 13]): ev.append((g + 13*hb, pr if q == 0 else [], d[q], ("KV", nkv)))
                    put(15 + 13*hb, post); nkv += 1
        for g, pre, d, tag in sorted(ev, key=lambda e: e[0]):
            if pre: put(g - 1, pre)
            put(g, d); vm.issue(tag)
        body = interleave(mf, f)
        if "q_nox" in cx.opts: body = [x for x in body if not (x.endswith("lds") and "s[32:35]" in x)]
        if "q_now" in cx.opts: body = [x for x in body if not (x.endswith("lds") and "s[36:39]" in x)]
        if "q_nov" in cx.opts: body = [x for x in body if x.startswith("v_mfma") or not x.startswith("v_") or "v20" in x or "v17" in x or "v0," in x or "v2," in x or "v3," in x]
        code += body
    b.ext(add_lgkm_waits(code, first_reads()))
    ool(f"""LQ_nspin:
    s_mov_b32 s{T}, 0x10000
    LQ_nspin_l:
    s_sleep 8
    global_load_dwordx2 v[{V_PD}:{V_PD+1}], v{V_PO}, s[24:25] sc1
    s_sub_u32 s{T}, s{T}, 1
    s_waitcnt vmcnt(0)
    v_readfirstlane_b32 s{S_NC}, v{V_PD}
    v_readfirstlane_b32 s{S_NC+1}, v{V_PD+1}
    s_cmp_eq_u32 s{T}, 0
    s_cbranch_scc1 LQ_nspin_ret
    s_cmp_eq_u32 s{S_NC}, 0
    s_cbranch_scc1 LQ_nspin_l
    s_branch LQ_nspin_ret""")
    b('L_qe:')
    cx.stamp(b)
    if pk == 19:
        b("s_waitcnt vmcnt(0)")
        b.ext(flag_check("LQ_spin", V_PD))
    ool.ext(flag_spin("LQ_spin", V_PD, V_PO, S_POLL, 95, sleep=2))
    cx.stamp(b)
    if nkv == 5 and wt:
        pre, d, post = dma_blk(V_L16)
        b(f"s_cmp_lg_u32 s{S_RT}, 0\ns_cbranch_scc1 LA_nob5")
        b.ext(pre); b("s_nop 0"); b.ext(d); b.ext(post); b("LA_nob5:")
        b(f"s_mov_b32 s{S_KVL}, s{S_KVST}")
        b.ext(wt)
    ep = []
    if not (nkv == 5 and wt): ep.append(f"s_mov_b32 s{S_KVL}, s{S_KVST}")
    ep += [f"v_accvgpr_mov_b32 a{132+k}, a{k}" for k in range(28)]
    ep.append(f"s_mov_b32 s{S_C}, {f2u(CSCALE)}"); ep.append(f"s_mov_b32 s{S_C+1}, {f2u(CSCALE)}")
    groups = []
    for qs in range(4):
        for s in range(4):
            g = []
            r0 = ACC + ((2*s)*4 + qs)*4; r1 = ACC + ((2*s + 1)*4 + qs)*4
            for r in (r0, r1):
                g.append(f"v_pk_mul_f32 v[{r}:{r+1}], v[{r}:{r+1}], s[{S_C}:{S_C+1}]")
                g.append(f"v_pk_mul_f32 v[{r+2}:{r+3}], v[{r+2}:{r+3}], s[{S_C}:{S_C+1}]")
            g += [f"v_cvt_pk_bf16_f32 v{r0}, v{r0}, v{r0+1}", f"v_cvt_pk_bf16_f32 v{r0+1}, v{r0+2}, v{r0+3}",
                  f"v_cvt_pk_bf16_f32 v{r0+2}, v{r1}, v{r1+1}", f"v_cvt_pk_bf16_f32 v{r0+3}, v{r1+2}, v{r1+3}"]
            for k in range(4): g.append(f"v_accvgpr_write_b32 a{(qs*4+s)*4 + k}, v{r0+k}")
            groups.append(g)
    dm = []
    for blk in range(5 - nkv):
        pr, d, post = dma_blk(V_L16)
        dm += [pr + ["s_nop 0", d[0]], [d[1]], [d[2]], [d[3]] + post]
    for x in dm[:8]: ep += x
    for k, g in enumerate(groups):
        ep += g
        if 8 + k < len(dm): ep += dm[8 + k]
    b.ext(ep)
    if not (nkv == 5 and wt):
        pre, d, post = dma_blk(V_L16)
        b(f"s_cmp_lg_u32 s{S_RT}, 0\ns_cbranch_scc1 LA_nob5")
        b.ext(pre); b("s_nop 0"); b.ext(d); b.ext(post); b("LA_nob5:")
```

```python
import sys
from g_common import *
import g_kv as KV, g_q as Q, g_b as B, g_a as A, g_p as O
from lint import lint
HDR = open("cdna_kernels/" + NAME + ".s.ref").read().split("; Override launch")[0]
def build(dev=False, opts=None):
    cx = Ctx(dev, opts or {})
    lab = NAME + "_kernel"
    b = Blk(); ool = Blk()
    b(f"{lab}:")
    trs, vm = KV.build(cx, b, ool)
    mid = Blk()
    cx.stamp(mid)
    wtl = Blk()
    if A.WTQ: A.wt1(wtl); A.wq1(wtl)
    wtl = wtl.l
    Q.build(cx, mid, vm, ool, A.early() + B.setup_early(), wtl)
    A.attn_prologue(mid)
    cx.stamp(mid)
    b.ext(mid)
    ool1 = ool; ool = Blk()
    trace = A.build_attn(cx, b, ool1)
    b.ext(ool1)
    fin = Blk(); vm = VM()
    rest = A.finalize(cx, fin, vm, ool)
    cx.stamp(fin)
    B.gemm(cx, fin, vm, O.setup(), O.polls(), rest, A.ctxb_stores(), O.check(ool), O.dmaA(0) + O.dmaA(1) + O.dmaA(2))
    cx.stamp(fin)
    O.build(cx, fin, vm, ool, B)
    if dev: fin("s_waitcnt vmcnt(0)")
    cx.stamp(fin)
    cx.stamp_store(fin, "LF")
    fin("L_end:\ns_endpgm")
    b.ext(fin); b.ext(ool); b('L_codeend:\ns_endpgm')
    out = [HDR.rstrip(), "; @launch grid=(256,1,1) block=(256,1,1) lds=163840",
           '.amdgcn_target "amdgcn-amd-amdhsa--gfx950"\n.text', f".globl {lab}\n.p2align 8\n.type {lab},@function", b.text(),
           '.section .rodata,"a"\n.p2align 6\n' + kdesc(lab, 512, 256)]
    nerr = 0
    for k, (i, w) in enumerate(((0, 0), (0, 1), (1, 2), (7, 3), (7, 2), (3, 0))):
        e = lint(trs[k & 1] + mid.l + trace(i, w) + fin.l, f"t{i}{w}")
        for x in e[:4]: print("LINT", x, file=sys.stderr)
        nerr += len(e)
    e = lint(cx.slow + cx.slow, 'slow')
    for x in e[:8]: print('LINT', x, file=sys.stderr)
    nerr += len(e)
    return "\n".join(out) + "\n", nerr
if __name__ == "__main__":
    opts = {}
    for a in sys.argv[2:]:
        if "=" in a: k, v = a.split("="); opts[k] = int(v, 0)
        else: opts[a] = True
    txt, nerr = build("dev" in opts, opts)
    import re
    def filt(pred, rep="  s_nop 0"):
        global txt
        txt = "\n".join((rep if pred(l) else l) for l in txt.split("\n"))
    if "nobdma" in opts: filt(lambda l: re.search(r"buffer_load_dwordx4 v2(0\d|1[01]),", l) and " lds" in l)
    if "nobw" in opts: filt(lambda l: re.search(r"buffer_load_dwordx4 v1(6[3-9]|7[01]),", l) and " lds" in l)
    if "noctxst" in opts: filt(lambda l: "buffer_store_dwordx4 v[24" in l)
    if "nokvst" in opts: filt(lambda l: "buffer_store_dwordx4" in l and "s57 offen" in l)
    open(sys.argv[1], "w").write(txt)
    print("lint errors:", nerr, "lines", txt.count("\n"))
```

```python
from common import *
from sched import *
import struct
def f2u(x): return struct.unpack("<I", struct.pack("<f", x))[0]
S_W, S_H, S_RT = 28, 29, 30
S_Q = 31
SRD_A, SRD_B, SRD_WS, SRD_X = 32, 36, 40, 44
S_RB, S_CG = 100, 101
WS_FLAG = 70 << 20
F_CTX = WS_FLAG
F_KV = WS_FLAG + 4096
F_WT = WS_FLAG + 8192 + 4096
F_W2 = WS_FLAG + 40960
F_OB = WS_FLAG + 16384
S_NC = 0
WS_SIZE = 79 << 20
WS_STAMP = 200 << 20
SC = " sc1"
class Ctx:
    def __init__(self, dev, opts): self.dev = dev; self.opts = opts; self.nst = 0; self.cnt = 0
    def stamp(self, b, wait=True):
        if not self.dev: return
        k = self.nst; self.nst += 1
        if 'only' in self.opts and not ((self.opts['only'] >> self.cnt) & 1):
            self.nst -= 1; self.cnt += 1; return
        self.cnt += 1
        assert k < 14, k
        b(f"s_memrealtime s[88:89]\ns_memtime s[90:91]\ns_waitcnt lgkmcnt(0)\ns_mov_b32 s{60+k}, s88\ns_mov_b32 s{74+k}, s90")
    def stamp_store(self, b, pfx):
        if not self.dev: return
        if "dbg" in self.opts:
            b(f"""s_load_dwordx2 s[24:25], s[88:89], 80
            s_waitcnt lgkmcnt(0)""".replace("s[88:89]", "s[90:91]")) if False else None
            b(f"s_lshl_b32 s48, s2, 2\ns_add_u32 s48, s48, s{S_W}\ns_cmp_lg_u32 s48, {4*self.opts['dbg']}\ns_cbranch_scc1 {pfx}_nost\nv_mov_b32 v2, 0")
            for k in range(1, self.nst):
                b(f"s_sub_u32 s49, s{60+k}, s60\nv_mov_b32 v3, s49\nglobal_store_dword v2, v3, s[24:25] offset:{4*(k+1)}")
            b(f"{pfx}_nost:")
            return
        b(f"""s_waitcnt lgkmcnt(0)
        s_cmp_lg_u32 s{S_W}, {self.opts.get('sw', 0)}
        s_cbranch_scc1 {pfx}_nost
        s_mov_b32 s{SRD_WS+2}, {SZ['ws']}
        s_lshl_b32 s48, s2, 7
        s_add_u32 s48, s48, {WS_STAMP}
        v_mov_b32 v2, 0""")
        for k in range(self.nst):
            b(f"v_mov_b32 v3, s{60+k}\nbuffer_store_dword v3, v2, {sr(SRD_WS)}, s48 offen offset:{4*k}")
            b(f"v_mov_b32 v3, s{74+k}\nbuffer_store_dword v3, v2, {sr(SRD_WS)}, s48 offen offset:{64+4*k}")
        b(f"{pfx}_nost:")
class Fill(dict):
    def put(self, g, x):
        self.setdefault(g, []).extend([x] if isinstance(x, str) else list(x))
    def spread(self, items, lo, hi):
        n = len(items)
        for k, it in enumerate(items): self.put(lo + (k * (hi - lo)) // max(n, 1), it)
def lines(s): return [x.strip() for x in s.split("\n") if x.strip()]

def flag_store(b, s_off, lab, vt=(0, 2), s_off2=None):
    b(f"""s_cmp_lg_u32 s{S_W}, 0
    s_cbranch_scc1 {lab}
    v_mov_b32 v{vt[1]}, s{S_NC}
    v_mov_b32 v{vt[1]+1}, s{S_NC+1}
    v_mov_b32 v{vt[0]}, 0
    s_mov_b64 exec, 1
    buffer_store_dwordx2 v[{vt[1]}:{vt[1]+1}], v{vt[0]}, {sr(SRD_WS)}, s{s_off} offen sc1""")
    if s_off2 is not None: b(f"buffer_store_dwordx2 v[{vt[1]}:{vt[1]+1}], v{vt[0]}, {sr(SRD_WS)}, s{s_off2} offen sc1")
    b(f"""s_mov_b64 exec, -1
    {lab}:""")
def flag_load(vdat, voff, s_off):
    return f"buffer_load_dwordx2 v[{vdat}:{vdat+1}], v{voff}, {sr(SRD_WS)}, s{s_off} offen sc1"
def flag_check(lab, vdat):
    return [f"v_cmp_ne_u64 vcc, s[{S_NC}:{S_NC+1}], v[{vdat}:{vdat+1}]", "s_nop 1", f"s_cbranch_vccnz {lab}", f"{lab}_ret:"]
def flag_spin(lab, vdat, voff, s_off, st, sleep=8):
    b = Blk()
    b(f"""{lab}:
    s_mov_b32 s{st}, 0x10000
    {lab}_l:
    s_sleep {sleep}
    {flag_load(vdat, voff, s_off)}
    s_sub_u32 s{st}, s{st}, 1
    s_cmp_eq_u32 s{st}, 0
    s_waitcnt vmcnt(0)
    s_cbranch_scc1 {lab}_ret
    v_cmp_ne_u64 vcc, s[{S_NC}:{S_NC+1}], v[{vdat}:{vdat+1}]
    s_nop 1
    s_cbranch_vccnz {lab}_l
    s_branch {lab}_ret""")
    return b

def tr_addr(b, dsts, base, rowshift, vt, xor_s=None):
    a, c, d = vt
    b(f"""v_lshrrev_b32 v{a}, 4, v1
    v_lshrrev_b32 v{c}, 2, v1
    v_and_b32 v{c}, 3, v{c}
    v_lshl_add_u32 v{d}, v{a}, 3, v{c}
    v_lshlrev_b32 v{d}, {rowshift}, v{d}
    v_add_u32 v{d}, {base}, v{d}
    v_and_b32 v{a}, 1, v{a}
    v_lshlrev_b32 v{a}, 1, v{a}
    v_lshl_or_b32 v{a}, v{c}, 2, v{a}
    v_and_b32 v{c}, 1, v1
    v_lshl_add_u32 v{d}, v{c}, 3, v{d}
    v_lshrrev_b32 v{c}, 1, v1
    v_and_b32 v{c}, 1, v{c}
    v_xor_b32 v{a}, v{a}, v{c}""")
    if xor_s is not None: b(f"v_xor_b32 v{a}, s{xor_s}, v{a}")
    for ct, r in enumerate(dsts): b(f"v_xor_b32 v{c}, {2*ct}, v{a}\nv_lshl_add_u32 v{r}, v{c}, 4, v{d}")
def row_addr(b, d0, d1, base, vt):
    a, c, d = vt
    b(f"""v_and_b32 v{a}, 15, v1
    v_lshrrev_b32 v{c}, 1, v{a}
    v_lshlrev_b32 v{a}, 7, v{a}""")
    if base is not None: b(f"v_add_u32 v{a}, {base}, v{a}")
    b(f"""v_lshrrev_b32 v{d}, 4, v1
    v_xor_b32 v{c}, v{c}, v{d}
    v_lshl_add_u32 v{d0}, v{c}, 4, v{a}
    v_xor_b32 v{c}, 4, v{c}
    v_lshl_add_u32 v{d1}, v{c}, 4, v{a}""")
def oob_mask(v, n, vt):
    return [f"v_cmp_gt_u32 vcc, {n}, v1", f"v_mov_b32 v{vt}, 0x40000000", "s_nop 0", f"v_cndmask_b32 v{v}, v{vt}, v{v}, vcc"]

def code_touch(tag, start, sp, v, n=1):
    su = [[f"s_getpc_b64 s[{sp}:{sp+1}]", f"L_ct{tag}:"], f"s_lshl_b32 s{sp+2}, s{S_W}, 13", f"s_add_u32 s{sp+2}, s{sp+2}, {start} - L_ct{tag}",
          f"v_lshlrev_b32 v{v}, 7, v1", f"v_add_u32 v{v}, s{sp+2}, v{v}", f"s_mov_b32 s{sp+2}, L_codeend - L_ct{tag} - 4"]
    ld = []
    for k in range(n):
        ld.append(([f"v_add_u32 v{v}, 0x8000, v{v}"] if k else []) + [f"v_min_u32 v{v+1}, s{sp+2}, v{v}", f"global_load_dword a{252+k}, v{v+1}, s[{sp}:{sp+1}]"])
    return su, ld

import sys as _s
LATE = 3
for _a in _s.argv:
    if _a.startswith("late="): LATE = int(_a[5:])
```

```python
import sys
def kernel(body, nwaves=4, vgpr=512, accum=256, iters=200, lds=65536, grid=256, pre="", post=""):
    s = []
    s.append(f"; @launch grid=({grid},1,1) block=({nwaves*64},1,1) lds={lds}")
    s.append('.amdgcn_target "amdgcn-amd-amdhsa--gfx950"')
    s.append(".text\n.globl mb_kernel\n.p2align 8\n.type mb_kernel,@function\nmb_kernel:")
    s.append(f"""
  s_cmp_ge_u32 s2, {grid}
  s_cbranch_scc1 L_end
  s_load_dwordx4 s[4:7], s[0:1], 0
  s_load_dwordx2 s[28:29], s[0:1], 24
  s_waitcnt lgkmcnt(0)
  s_mov_b32 s8, s4
  s_mov_b32 s9, s5
  s_mov_b32 s10, 0x4000000
  s_mov_b32 s11, 0x20000
  s_mov_b32 s12, s6
  s_mov_b32 s13, s7
  s_mov_b32 s14, 0x400000
  s_mov_b32 s15, 0x20000
  s_mov_b32 s32, s28
  s_mov_b32 s33, s29
  s_mov_b32 s34, 0x4000000
  s_mov_b32 s35, 0x20000
  v_lshlrev_b32 v1, 4, v0
  v_and_b32 v2, 63, v0
  v_lshlrev_b32 v2, 4, v2
  v_lshrrev_b32 v3, 6, v0
  s_nop 0
  v_readfirstlane_b32 s30, v3
""")
    nv = min(vgpr, accum)
    for r in range(8, nv-3, 4):
        s.append(f"  buffer_load_dwordx4 v[{r}:{r+3}], v1, s[8:11], 0 offen offset:{(r*16)%4096}")
        if (r//4) % 8 == 7: s.append("  s_waitcnt vmcnt(0)")
    s.append("  s_waitcnt vmcnt(0)")
    for i in range(0, min(lds,65536)//(nwaves*64*16)):
        s.append(f"  ds_write_b128 v1, v[{8+4*(i%8)}:{11+4*(i%8)}] offset:{i*nwaves*64*16}")
    nacc = vgpr - accum
    for a in range(nacc):
        s.append(f"  v_accvgpr_write_b32 a{a}, v{8+(a%64)}")
    s.append(pre)
    s.append("  s_waitcnt lgkmcnt(0)\n  s_barrier")
    s.append(f"  s_mov_b32 s16, {iters}")
    s.append("  s_memtime s[20:21]\n  s_memrealtime s[22:23]\n  s_waitcnt lgkmcnt(0)")
    s.append(".p2align 6\nL_loop:")
    s.append(body)
    s.append("  s_sub_u32 s16, s16, 1\n  s_cmp_lg_u32 s16, 0\n  s_cbranch_scc1 L_loop")
    s.append(post)
    s.append("  s_waitcnt vmcnt(0) lgkmcnt(0)")
    s.append("  s_memtime s[24:25]\n  s_memrealtime s[26:27]\n  s_waitcnt lgkmcnt(0)")
    s.append(f"""
  s_sub_u32 s24, s24, s20
  s_sub_u32 s26, s26, s22
  s_cmp_lg_u32 s30, 0
  s_cbranch_scc1 L_end
  v_mov_b32 v4, s24
  v_mov_b32 v5, s26
  s_lshl_b32 s3, s2, 6
  v_mov_b32 v6, s3
  v_cmp_eq_u32 vcc, 0, v0
  s_and_saveexec_b64 s[18:19], vcc
  buffer_store_dwordx2 v[4:5], v6, s[12:15], 0 offen
  s_waitcnt vmcnt(0)
L_end:
  s_endpgm
.section .rodata,"a"
.p2align 6
.amdhsa_kernel mb_kernel
  .amdhsa_next_free_vgpr {vgpr}
  .amdhsa_next_free_sgpr 102
  .amdhsa_accum_offset {accum}
  .amdhsa_group_segment_fixed_size 0
  .amdhsa_kernarg_size 32
  .amdhsa_user_sgpr_count 2
  .amdhsa_user_sgpr_kernarg_segment_ptr 1
  .amdhsa_system_sgpr_workgroup_id_x 1
.end_amdhsa_kernel
""")
    return "\n".join(s)

def mfma_body(fill, nm=16, acc_in_a=True, nacc=4):
    out = []
    for i in range(nm):
        d = (i % nacc) * 16
        a = 16 + (i % 4) * 4
        b = 32 + (i % 4) * 4
        if acc_in_a:
            out.append(f"  v_mfma_f32_32x32x16_bf16 a[{d}:{d+15}], v[{a}:{a+3}], v[{b}:{b+3}], a[{d}:{d+15}]")
        else:
            dd = 64 + d
            out.append(f"  v_mfma_f32_32x32x16_bf16 v[{dd}:{dd+15}], v[{a}:{a+3}], v[{b}:{b+3}], v[{dd}:{dd+15}]")
        out += ["  " + x for x in fill(i)]
    return "\n".join(out)

if __name__ == "__main__":
    files = []
    def emit(name, txt):
        open(name, "w").write(txt); files.append(name)
    R = 48
    def plain(k):
        return lambda i: [f"v_add_f32 v{R+((i*k+j)%12)}, v{R+12}, v{R+((i*k+j)%12)}" for j in range(k)]
    def mix(ne, k, nds=0):
        def f(i):
            l = []
            for j in range(ne): l.append(f"v_exp_f32 v{R+((i*ne+j)%6)}, v{R+13}")
            for j in range(k): l.append(f"v_add_f32 v{R+6+((i*k+j)%6)}, v{R+12}, v{R+6+((i*k+j)%6)}")
            for j in range(nds): l.append(f"ds_read_b128 v[{64+((i*nds+j)%8)*4}:{67+((i*nds+j)%8)*4}], v2 offset:{((i*nds+j)%32)*1024}")
            if nds and i % 4 == 3: l.append(f"s_waitcnt lgkmcnt({min(15,2*nds)})")
            return l
        return f
    for nw, vg, ac in [(4, 512, 256), (8, 256, 128)]:
        emit(f"mb_m0_w{nw}.s", kernel(mfma_body(lambda i: []), nw, vg, ac))
        for k in [4, 5, 6, 8, 10, 12]:
            emit(f"mb_p{k}_w{nw}.s", kernel(mfma_body(plain(k)), nw, vg, ac))
        for ne, k, nds in [(1,2,0),(1,2,1),(1,3,1),(1,4,0),(1,4,1),(2,2,0),(2,4,0),(3,0,0),(2,4,1),(3,3,0),(4,0,0)]:
            emit(f"mb_e{ne}p{k}d{nds}_w{nw}.s", kernel(mfma_body(mix(ne,k,nds)), nw, vg, ac))
    print(" ".join(files))
```

```python
from mbgen import kernel
files=[]
def emit(name, txt):
    open(name, "w").write(txt); files.append(name)
def mk(name, first, rest, n):
    body = f"""{first}
{rest}
  s_waitcnt vmcnt({n})
  s_memtime s[36:37]
  s_waitcnt lgkmcnt(0)
  s_sub_u32 s38, s36, s40
  s_add_u32 s39, s39, s38
  s_waitcnt vmcnt(0)
  s_add_u32 s44, s44, 4096
  s_memtime s[40:41]
  s_waitcnt lgkmcnt(0)"""
    pre = "  s_mul_i32 s44, s2, 131072\n  s_mov_b32 s39, 0\n  s_mov_b32 m0, 0\n  buffer_load_dwordx4 v[96:99], v1, s[8:11], 0 offen\n  s_waitcnt vmcnt(0)\n  s_memtime s[40:41]\n  s_waitcnt lgkmcnt(0)\n"
    k = kernel(body, 4, 512, 256, iters=32, pre=pre)
    k = k.replace("  v_mov_b32 v5, s26\n", "  v_mov_b32 v5, s26\n  v_mov_b32 v7, s39\n").replace("  buffer_store_dwordx2 v[4:5], v6, s[12:15], 0 offen\n", "  buffer_store_dwordx2 v[4:5], v6, s[12:15], 0 offen\n  buffer_store_dword v7, v6, s[12:15], 0 offen offset:8\n")
    emit(name, k)
st = "  buffer_store_dwordx4 v[64:67], v1, s[32:35], s44 offen sc1"
ld4 = "\n".join(f"  buffer_load_dwordx4 v[{96+4*k}:{99+4*k}], v1, s[8:11], 0 offen" for k in range(4))
dma4 = "\n".join("  buffer_load_dwordx4 v1, s[8:11], 0 offen lds" for k in range(4))
mk("z_st_only.s", st, "", 0)
mk("z_st_ld.s", st, ld4, 4)
mk("z_st_dma.s", st, dma4, 4)
mk("z_ld_only.s", "", ld4, 3)
mk("z_ld_only0.s", "", ld4, 0)
print(" ".join(files))
```

```python
from mbgen import kernel
files=[]
def emit(name, txt):
    open(name, "w").write(txt); files.append(name)
for nm, ins in (("fma", lambda i: f"  v_fma_f32 v{48+i%8}, v60, v61, v{48+i%8}"), ("cvt", lambda i: f"  v_cvt_pk_bf16_f32 v{48+i%8}, v60, v{62+i%2}"), ("add", lambda i: f"  v_add_f32 v{48+i%8}, v60, v{48+i%8}"),
                ("pk", lambda i: f"  v_pk_mul_f32 v[{48+2*(i%4)}:{49+2*(i%4)}], v[60:61], s[58:59]"), ("acc", lambda i: f"  v_accvgpr_write_b32 a{i%64}, v{48+i%8}"), ("cnd", lambda i: f"  v_cndmask_b32 v{48+i%8}, v60, v61, s[58:59]")):
    for n in (2048, 12288):
        emit(f"k_{nm}_{n}.s", kernel("\n".join(ins(i) for i in range(n)), 4, 512, 256, iters=12288*3//n, pre="  s_mov_b32 s58, 0\n  s_mov_b32 s59, 0\n"))
print(" ".join(files))
```
